```python
import torch

def _softmax(x, axis=-1):
    return torch.softmax(x, dim=axis)
def _gelu(x):
    return torch.nn.functional.gelu(x, approximate="tanh")
def _silu(x):
    return torch.nn.functional.silu(x)
def _sigmoid(x):
    return torch.sigmoid(x)
def _layernorm(x, axis=-1, eps=1e-5):
    m = x.mean(dim=axis, keepdim=True)
    v = x.var(dim=axis, keepdim=True, unbiased=False)
    return (x - m) / torch.sqrt(v + eps)
def _scatter_add(tgt, idx, src, axis=0):
    return tgt.clone().index_add_(axis, idx, src)
def _segment_sum(src, seg, n):
    out = torch.zeros((n,) + src.shape[1:], dtype=src.dtype)
    return out.index_add_(0, seg, src)
def _pad(x, pw):
    flat = tuple(v for pair in reversed(pw) for v in pair)
    return torch.nn.functional.pad(x, flat)

kernel_name = 'parallel_sum__gqa_block_cached__dense_activation_squared_relu__decode'

def setup_inputs():

    _w = (lambda a: (lambda t: t.to(torch.bfloat16) if t.is_floating_point() else t)(torch.as_tensor(a)))
    def _A_setup():
        B, Sq, D = 4, 1, 640
        Hq, Hkv, Sk, Dh = 32, 32, 8192, 128
        assert Hq % Hkv == 0, (Hq, Hkv)
        return {
            "x": _w((lambda *s: torch.randn(*s, dtype=torch.bfloat16) * 0.05)(B, Sq, D)),
            "k_cache": _w((lambda *s: torch.randn(*s, dtype=torch.bfloat16) * 1.6)(B, Hkv, Sk, Dh)),
            "v_cache": _w((lambda *s: torch.randn(*s, dtype=torch.bfloat16) * 3.2)(B, Hkv, Sk, Dh)),
            "wq": _w((lambda *s: torch.randn(*s, dtype=torch.bfloat16) * 1.6)(D, Hq * Dh) * (D ** -0.5)),
            "wo": _w((lambda *s: torch.randn(*s, dtype=torch.bfloat16) * 3.2)(Hq * Dh, D) * ((Hq * Dh) ** -0.5)),
        }
    _A_in = _A_setup()

    def _B_setup():
        B, S, D, F = 4, 1, 640, 1728
        return {
            "x": _w((lambda *s: torch.randn(*s, dtype=torch.bfloat16) * 0.05)(B, S, D)),
            "w1": _w((lambda *s: torch.randn(*s, dtype=torch.bfloat16) * 0.05)(D, F)),
            "b1": _w((lambda *s: torch.randn(*s, dtype=torch.bfloat16) * 0.4)(F)),
            "w2": _w((lambda *s: torch.randn(*s, dtype=torch.bfloat16) * 0.05)(F, D)),
            "b2": _w((lambda *s: torch.randn(*s, dtype=torch.bfloat16) * 1.6)(D)),
        }
    _B_in = _B_setup()

    return {
        "A_x": _A_in["x"],
        "A_k_cache": _A_in["k_cache"],
        "A_v_cache": _A_in["v_cache"],
        "A_wq": _A_in["wq"],
        "A_wo": _A_in["wo"],
        "B_x": _B_in["x"],
        "B_w1": _B_in["w1"],
        "B_b1": _B_in["b1"],
        "B_w2": _B_in["w2"],
        "B_b2": _B_in["b2"],
    }

def reference(A_x, A_k_cache, A_v_cache, A_wq, A_wo, B_x, B_w1, B_b1, B_w2, B_b2):
    def _A_ref(x, k_cache, v_cache, wq, wo):
        B, Sq, D = x.shape
        Hq, Dh = 32, 128
        Hkv = k_cache.shape[1]
        rep = Hq // Hkv
        q = (lambda x, *d: x.permute(*d))((x @ wq).reshape(B, Sq, Hq, Dh), 0, 2, 1, 3)
        k = (lambda x, n, axis: torch.repeat_interleave(x, n, dim=axis))(k_cache, rep, axis=1)
        v = (lambda x, n, axis: torch.repeat_interleave(x, n, dim=axis))(v_cache, rep, axis=1)
        scores = torch.einsum("bhqd,bhkd->bhqk", q, k) * (Dh ** -0.5)
        p = _softmax(scores, axis=-1)
        o = torch.einsum("bhqk,bhkd->bhqd", p, v)
        return (lambda x, *d: x.permute(*d))(o, 0, 2, 1, 3).reshape(B, Sq, Hq * Dh) @ wo

    def _B_ref(x, w1, b1, w2, b2):
        h = torch.einsum("bsd,df->bsf", x, w1) + b1
        zero = torch.zeros_like(h)
        r = torch.where(h > zero, h, zero)
        h = r * r
        out = torch.einsum("bsf,fd->bsd", h, w2) + b2
        return out

    x = A_x
    xn = _layernorm(x, axis=-1)
    return x + _A_ref(xn, A_k_cache, A_v_cache, A_wq, A_wo) + _B_ref(xn, B_w1, B_b1, B_w2, B_b2)
```

```python
import struct, math

KNAME = "parallel_sum__gqa_block_cached__dense_activation_squared_relu__decode_kernel"

WS_CTR = 0x0
WS_QP = 0x10000
WS_OP = 0x100000
WS_OPML = 0x280000
WS_HP = 0x190000
WS_YP = 0x200000
WS_GO = 0x8000
WS_DB = 0x2A0000
WS_STAMP = 0x300000
L_WT = 0
L_W2T = 20480
L_XN = 30720
L_QPART = 40960
L_QB = 49152
L_HB = 50176
L_YB = 50688
L_OA = 51968
L_TK = 52992
L_PROG = 54016
L_SYNC = 54048
L_ML = 54272
L_OST = 55296
L_TOTAL = L_OST + 32768

NEG_MAX = 0xFF7FFFFF
def f2u(x): return struct.unpack("<I", struct.pack("<f", x))[0]
C_SCALE = f2u((128 ** -0.5) * math.log2(math.e))
INV640 = f2u(1.0 / 640.0)
EPS = f2u(1e-5)

class Asm:
    def __init__(self):
        self.L = []
        self.uid = 0
    def __call__(self, s):
        self.L.append("  " + s)
    def label(self, s):
        self.L.append(s + ":")
    def u(self, base):
        self.uid += 1
        return f"{base}_{self.uid}"
    def raw(self, s):
        self.L.append(s)

def gen(dyn=True, S=48, stamps=False, pol="nt", NB=3, spin_cap=1 << 16, th=12, nocomp=0, prio=0,
        cut=0, noq=0, cpf=False, opoll_sleep=2, sprof=0, hprio=3, hprio_off=0, qpoll_sleep=2, nopoll=0, nosent=0, mlsh=7, dbwave=7, dbneed=8):
    KL = 4
    NX = 6 - NB
    CH = KL * 4096
    NCH = (1 << 20) // CH
    if not dyn:
        S = NCH
    P = NCH - S
    logP = P.bit_length() - 1 if P else 0
    assert (P & (P - 1)) == 0
    D = 8 * P * 4
    logPW = logP + 2
    a = Asm()
    a.raw("; @launch grid=(256,1,1) block=(512,1,1) lds=%d" % L_TOTAL)
    a.raw('.amdgcn_target "amdgcn-amd-amdhsa--gfx950"')
    a.raw(".text")
    a.raw(f".globl {KNAME}")
    a.raw(".p2align 8")
    a.raw(f".type {KNAME},@function")
    a.label(KNAME)

    sX, sK, sV, sWQ, sWO, sW1, sB1, sW2, sB2, sOUT, sDBG, sWS = 16, 18, 20, 22, 24, 28, 30, 32, 34, 36, 38, 40
    sWave, sH, sG = 42, 43, 44
    sHW = 45
    sMask, sC = 46, 47
    SRD_K, SRD_V, SRD_A, SRD_B = 48, 52, 56, 60
    sStatic, sHeadW, sIdx, sN, sNT, sOff, sCur, sBn, sXc = 64, 65, 66, 67, 68, 69, 70, 71, 72
    sBq = [73, 74, 75]
    sT0, sT1, sT2, sT3, sT4 = 76, 77, 78, 79, 6
    sRet = 80
    sB = 82
    sSpin = 83
    STAMP0 = 84
    def P2(s): return f"s[{s}:{s+1}]"
    def P4(s): return f"s[{s}:{s+3}]"
    def tstamp(i):
        if stamps and sprof == 2:
            a(f"s_memrealtime s[{STAMP0+2*i}:{STAMP0+2*i+1}]")
    def sstamp(i):
        if stamps and sprof == 1:
            a(f"s_memrealtime s[{STAMP0+2*i}:{STAMP0+2*i+1}]")
    def stamp(i):
        if sprof and i != 0:
            return
        if stamps:
            a(f"s_memrealtime s[{STAMP0+2*i}:{STAMP0+2*i+1}]")
    def V(n, cnt=1):
        return f"v{n}" if cnt == 1 else f"v[{n}:{n+cnt-1}]"
    DPPM = "row_mask:0xf bank_mask:0xf"
    def row_allreduce(op, regs, nop_first=True):
        steps = ["quad_perm:[1,0,3,2]", "quad_perm:[2,3,0,1]", "row_half_mirror", "row_mirror"]
        need = max(0, 2 - (len(regs) - 1))
        if nop_first:
            a("s_nop 1")
        for si, st in enumerate(steps):
            for r in regs:
                a(f"{op}_dpp v{r}, v{r}, v{r} {st} {DPPM}")
            if need and si < 3:
                a(f"s_nop {need-1}")
    def wave_sum_to_sgpr(r, sdst):
        row_allreduce("v_add_f32", [r])
        a("s_nop 1")
        a(f"v_add_f32_dpp v{r}, v{r}, v{r} row_bcast:15 row_mask:0xa bank_mask:0xf")
        a("s_nop 1")
        a(f"v_add_f32_dpp v{r}, v{r}, v{r} row_bcast:31 row_mask:0xc bank_mask:0xf")
        a("s_nop 1")
        a(f"v_readlane_b32 s{sdst}, v{r}, 63")
    def rnd_bf16(dst, src):
        a(f"v_cvt_pk_bf16_f32 v{dst}, v{src}, v{src}")
        a(f"v_and_b32 v{dst}, s{sMask}, v{dst}")
    def spin_timeout(lbl_retry):
        d = a.u("L_to")
        a(f"s_cmp_eq_u32 s{sSpin}, 0")
        a(f"s_cbranch_scc1 {d}")
        a(f"s_sub_u32 s{sSpin}, s{sSpin}, 1")
        a(f"s_branch {lbl_retry}")
        a.label(d)
    def lds_arrive(k, vaddr, vone):
        a("s_mov_b64 exec, 1")
        a(f"ds_add_u32 v{vaddr}, v{vone} offset:{4*k}")
        a("s_mov_b64 exec, -1")
    def lds_wait(k, target, vaddr, vtmp, stmp, sleep=1):
        l = a.u("L_lw")
        ok = a.u("L_lwok")
        a.label(l)
        a(f"ds_read_b32 v{vtmp}, v{vaddr} offset:{4*k}")
        a("s_waitcnt lgkmcnt(0)")
        a(f"v_readfirstlane_b32 s{stmp}, v{vtmp}")
        a("s_nop 1")
        a(f"s_cmp_ge_u32 s{stmp}, {target}")
        a(f"s_cbranch_scc1 {ok}")
        if sleep:
            a(f"s_sleep {sleep}")
        spin_timeout(l)
        a.label(ok)
    def srd(base, sptr, nrec):
        a(f"s_mov_b32 s{base}, s{sptr}")
        a(f"s_mov_b32 s{base+1}, s{sptr+1}")
        a(f"s_mov_b32 s{base+2}, {nrec}")
        a(f"s_mov_b32 s{base+3}, 0x20000")

    vLane = 1
    a("s_cmp_ge_u32 s2, 256")
    a("s_cbranch_scc1 L_end")
    a("s_load_dwordx16 s[16:31], s[0:1], 0")
    a("s_load_dwordx8 s[32:39], s[0:1], 64")
    a("s_load_dwordx2 s[40:41], s[0:1], 96")
    stamp(0)
    if cpf:
        a("s_getpc_b64 s[4:5]")
        a.label("L_pcref")
        a("v_lshlrev_b32 v2, 6, v0")
        a("v_min_u32 v2, L_end-L_pcref, v2")
        a("global_load_dword v63, v2, s[4:5]")
    a("v_lshrrev_b32 v2, 6, v0")
    a(f"v_and_b32 v{vLane}, 63, v0")
    a(f"v_readfirstlane_b32 s{sWave}, v2")
    a(f"s_lshr_b32 s{sH}, s2, 3")
    a(f"s_and_b32 s{sG}, s2, 7")
    a(f"s_mov_b32 s{sMask}, 0xffff0000")
    a(f"s_mov_b32 s{sC}, 0x{C_SCALE:08x}")
    a(f"s_mov_b32 s{sSpin}, {spin_cap}")
    a(f"v_lshlrev_b32 v3, 2, v{vLane}")
    a("v_mov_b32 v4, 0")
    a(f"s_cmp_eq_u32 s{sWave}, 4")
    a("s_cbranch_scc0 L_nosyinit")
    a(f"ds_write_b32 v3, v4 offset:{L_PROG}")
    a.label("L_nosyinit")
    a("s_waitcnt lgkmcnt(0)")
    a("s_barrier")
    sstamp(1)
    a(f"s_cmp_lt_u32 s{sWave}, 4")
    a("s_cbranch_scc1 L_swave")

    vL16, vL4, vXo, vXo2, vSy, vOne = 2, 3, 4, 5, 6, 7
    vXr = 8
    vE = 16
    vW = 32
    vXN = 64
    vAcc = 144
    vU = 152
    vSent = 168
    vWO = 172
    vWO2 = 188
    vBo = 204
    vL2 = 205
    vW2 = 208
    if hprio:
        a(f"s_setprio {hprio}")
    a(f"s_sub_u32 s{sHW}, s{sWave}, 4")
    a(f"v_lshlrev_b32 v{vL16}, 4, v{vLane}")
    a(f"s_lshl_b32 s{sHeadW}, s{sH}, 2")
    a(f"s_add_u32 s{sHeadW}, s{sHeadW}, s{sHW}")
    a(f"s_lshl_b32 s{sIdx}, s{sHeadW}, 3")
    a(f"s_add_u32 s{sIdx}, s{sIdx}, s{sG}")
    a(f"v_lshlrev_b32 v{vU}, 3, v{vLane}")
    a(f"s_lshl_b32 s{sT2}, s{sIdx}, 9")
    a(f"s_add_u32 s{sT2}, s{sT2}, {WS_QP}")
    a(f"v_add_u32 v{vU+2}, s{sT2}, v{vU}")
    for i in range(4):
        a(f"v_mov_b32 v{vSent+i}, -1")
    a(f"global_store_dwordx2 v{vU+2}, {V(vSent,2)}, {P2(sWS)} sc1")
    a(f"s_mul_i32 s{sT0}, s{sHW}, 1280")
    a(f"v_add_u32 v{vXo}, s{sT0}, v{vL16}")
    a(f"v_add_u32 v{vXo2}, s{sT0}, v{vL4}")
    a(f"v_add_u32 v{vU+3}, {WS_OP-WS_QP}, v{vU+2}")
    a(f"global_store_dwordx2 v{vU+3}, {V(vSent,2)}, {P2(sWS)} sc1")
    a(f"s_lshl_b32 s{sT2}, s{sIdx}, 8")
    a(f"s_add_u32 s{sT2}, s{sT2}, {WS_HP}")
    a(f"v_add_u32 v{vU+3}, s{sT2}, v{vL4}")
    a(f"global_store_dword v{vU+3}, v{vSent}, {P2(sWS)} sc1")
    a(f"s_lshl_b32 s{sT2}, s{sG}, 2")
    a(f"s_add_u32 s{sT2}, s{sT2}, s{sHW}")
    a(f"s_lshl_b32 s{sT2}, s{sT2}, 5")
    a(f"s_add_u32 s{sT2}, s{sT2}, s{sH}")
    a(f"s_mul_i32 s{sT2}, s{sT2}, 320")
    a(f"s_add_u32 s{sT2}, s{sT2}, {WS_YP}")
    a(f"v_add_u32 v{vU+4}, s{sT2}, v{vL16}")
    a(f"s_lshl_b32 s{sT3}, s{sIdx}, {mlsh}")
    a(f"s_add_u32 s{sT3}, s{sT3}, {WS_OPML}")
    a(f"v_mov_b32 v{vU+5}, s{sT3}")
    a(f"s_lshl_b32 s{sT3}, s{sH}, 8")
    a(f"s_lshl_b32 s{sT4}, s{sG}, 2")
    a(f"s_add_u32 s{sNT}, s{sT3}, s{sT4}")
    a(f"s_add_u32 s{sNT}, s{sNT}, {WS_GO}")
    a(f"v_mov_b32 v{vU+6}, s{sNT}")
    a(f"v_mov_b32 v{vU+7}, s{sT3}")
    a(f"v_mov_b32 v{vU+8}, 0")
    a("s_mov_b64 exec, 0xfffff")
    a(f"global_store_dwordx4 v{vU+4}, {V(vSent,4)}, {P2(sWS)} sc1")
    a("s_mov_b64 exec, 1")
    a(f"global_store_dwordx2 v{vU+5}, {V(vSent,2)}, {P2(sWS)} sc1")
    a(f"s_cmp_eq_u32 s{sHW}, 0")
    a("s_cbranch_scc0 L_nogo")
    a(f"global_store_dword v{vU+6}, v{vSent}, {P2(sWS)} sc1")
    a.label("L_nogo")
    a(f"s_cmp_eq_u32 s{sHW}, 2")
    a("s_cbranch_scc0 L_nodb")
    a(f"s_lshl_b32 s{sT3}, s2, 7")
    a(f"s_add_u32 s{sT3}, s{sT3}, {WS_DB}")
    a(f"v_mov_b32 v{vU+6}, s{sT3}")
    a(f"global_store_dword v{vU+6}, v{vSent}, {P2(sWS)} sc1")
    a.label("L_nodb")
    a(f"s_lshl_b32 s{sT3}, s{sG}, 2")
    a(f"s_add_u32 s{sT3}, s{sT3}, s{sHW}")
    a(f"s_cmp_eq_u32 s{sT3}, 1")
    a("s_cbranch_scc0 L_noctr")
    a(f"global_store_dword v{vU+7}, v{vU+8}, {P2(sWS)} offset:{WS_CTR} sc1")
    a.label("L_noctr")
    a("s_mov_b64 exec, -1")
    a(f"global_load_dwordx4 {V(vXr,4)}, v{vXo}, {P2(sX)}")
    a(f"global_load_dword v{vXr+4}, v{vXo2}, {P2(sX)} offset:1024")
    a(f"s_mul_i32 s{sT1}, s{sG}, 80")
    a(f"s_mul_i32 s{sT2}, s{sHW}, 20")
    a(f"s_add_u32 s{sStatic}, s{sT1}, s{sT2}")
    a(f"s_lshl_b32 s{sOff}, s{sStatic}, 13")
    a(f"s_lshl_b32 s{sT2}, s{sH}, 8")
    a(f"s_add_u32 s{sOff}, s{sOff}, s{sT2}")
    srd(SRD_A, sWQ, 640 * 8192)
    for i in range(20):
        a(f"buffer_load_dword v{vW+i}, v{vL4}, {P4(SRD_A)}, s{sOff} offen {pol}")
        if i < 19:
            a(f"s_add_u32 s{sOff}, s{sOff}, 8192")
    sstamp(2)
    a(f"v_mov_b32 v{vSy}, {L_SYNC}")
    a(f"v_mov_b32 v{vOne}, 1")
    a(f"s_lshr_b32 s{sT1}, s{sH}, 4")
    a(f"s_lshl_b32 s{sT1}, s{sT1}, 5")
    a(f"s_and_b32 s{sT2}, s{sH}, 15")
    a(f"s_add_u32 s{sT1}, s{sT1}, s{sT2}")
    a(f"s_lshl_b32 s{sT1}, s{sT1}, 2")
    a(f"v_mov_b32 v{vU+5}, s{sT1}")
    a(f"v_mov_b32 v{vU+9}, 0")
    a("s_waitcnt vmcnt(20)")
    sstamp(3)
    a("s_mov_b64 exec, 1")
    a(f"ds_add_rtn_u32 v{vU+4}, v{vSy}, v{vOne} offset:0")
    a("s_waitcnt lgkmcnt(0)")
    a(f"v_readfirstlane_b32 s{sT0}, v{vU+4}")
    a("s_nop 1")
    a(f"s_cmp_eq_u32 s{sT0}, 3")
    a("s_cbranch_scc0 L_noflag")
    a(f"global_atomic_add v{vU+9}, v{vU+5}, v{vOne}, {P2(sDBG)} sc0")
    a.label("L_noflag")
    a("s_mov_b64 exec, -1")
    for j in range(5):
        a(f"v_lshlrev_b32 v{vE+2*j}, 16, v{vXr+j}")
        a(f"v_and_b32 v{vE+2*j+1}, s{sMask}, v{vXr+j}")
    vs = vU + 12
    a(f"v_add_f32 v{vs}, v{vE}, v{vE+1}")
    for j in range(2, 10):
        a(f"v_add_f32 v{vs}, v{vs}, v{vE+j}")
    wave_sum_to_sgpr(vs, sT0)
    a("s_nop 1")
    vMean = vU + 13
    vt = vU + 10
    a(f"v_mov_b32 v{vMean}, s{sT0}")
    a(f"v_mul_f32 v{vMean}, 0x{INV640:08x}, v{vMean}")
    a(f"v_sub_f32 v{vt}, v{vE}, v{vMean}")
    a(f"v_mul_f32 v{vs}, v{vt}, v{vt}")
    for j in range(1, 10):
        a(f"v_sub_f32 v{vt}, v{vE+j}, v{vMean}")
        a(f"v_fmac_f32 v{vs}, v{vt}, v{vt}")
    wave_sum_to_sgpr(vs, sT0)
    a("s_nop 1")
    vR = vU + 14
    a(f"v_mov_b32 v{vR}, s{sT0}")
    a(f"v_mul_f32 v{vR}, 0x{INV640:08x}, v{vR}")
    rnd_bf16(vR, vR)
    a(f"v_add_f32 v{vR}, 0x{EPS:08x}, v{vR}")
    rnd_bf16(vR, vR)
    a(f"v_sqrt_f32 v{vR}, v{vR}")
    a("s_nop 0")
    rnd_bf16(vR, vR)
    a(f"v_rcp_f32 v{vR}, v{vR}")
    rnd_bf16(vMean, vMean)
    for j in range(10):
        a(f"v_sub_f32 v{vE+j}, v{vE+j}, v{vMean}")
    for j in range(0, 10, 2):
        a(f"v_cvt_pk_bf16_f32 v{vt}, v{vE+j}, v{vE+j+1}")
        a(f"v_lshlrev_b32 v{vE+j}, 16, v{vt}")
        a(f"v_and_b32 v{vE+j+1}, s{sMask}, v{vt}")
    for j in range(10):
        a(f"v_mul_f32 v{vE+j}, v{vE+j}, v{vR}")
    for j in range(0, 10, 2):
        a(f"v_cvt_pk_bf16_f32 v{vt}, v{vE+j}, v{vE+j+1}")
        a(f"v_lshlrev_b32 v{vE+j}, 16, v{vt}")
        a(f"v_and_b32 v{vE+j+1}, s{sMask}, v{vt}")
    a(f"s_mul_i32 s{sT0}, s{sHW}, 2560")
    a(f"v_lshlrev_b32 v{vt}, 5, v{vLane}")
    a(f"v_add_u32 v{vt}, s{sT0}, v{vt}")
    a(f"v_add_u32 v{vt+1}, s{sT0}, v{vU}")
    a(f"ds_write_b128 v{vt}, {V(vE,4)} offset:{L_XN}")
    a(f"ds_write_b128 v{vt}, {V(vE+4,4)} offset:{L_XN+16}")
    a(f"ds_write_b64 v{vt+1}, {V(vE+8,2)} offset:{L_XN+2048}")
    lds_arrive(1, vSy, vOne)
    sstamp(4)
    a(f"s_lshl_b32 s{sT1}, s{sStatic}, 2")
    a(f"v_mov_b32 v{vt}, s{sT1}")
    for i in range(8):
        a(f"v_mov_b32 v{vAcc+i}, 0")
    lds_wait(1, 4, vSy, vt + 1, sT0)
    stamp(2)
    for b in range(4):
        for k in range(5):
            a(f"ds_read_b128 {V(vXN+b*20+4*k,4)}, v{vt} offset:{L_XN+b*2560+16*k}")
    a("s_waitcnt vmcnt(0) lgkmcnt(0)")
    sstamp(5)
    a(f"v_readfirstlane_b32 s{sT0}, v{vU+9}")
    a("s_nop 1")
    a(f"s_cmp_eq_u32 s{sT0}, 7")
    a("s_cbranch_scc0 L_nogo2")
    a(f"s_lshl_b32 s{sT1}, s{sH}, 8")
    a(f"s_add_u32 s{sT1}, s{sT1}, {WS_GO}")
    a(f"v_add_u32 v{vU+4}, s{sT1}, v{vL4}")
    a("s_mov_b64 exec, 0xff")
    a(f"global_store_dword v{vU+4}, v{vOne}, {P2(sWS)} sc1")
    a("s_mov_b64 exec, -1")
    a.label("L_nogo2")
    for i in range(20):
        t = vU + 10 + 2 * (i % 3)
        a(f"v_lshlrev_b32 v{t}, 16, v{vW+i}")
        a(f"v_and_b32 v{t+1}, s{sMask}, v{vW+i}")
        for b in range(4):
            x = vXN + b * 20 + i
            xb = x & ~1
            sel = "op_sel:[0,1,0] op_sel_hi:[1,1,1]" if (x & 1) else "op_sel_hi:[1,0,1]"
            a(f"v_pk_fma_f32 {V(vAcc+2*b,2)}, {V(t,2)}, {V(xb,2)}, {V(vAcc+2*b,2)} {sel}")
    assert (vU + 10) % 2 == 0
    a(f"s_lshl_b32 s{sT0}, s{sHW}, 11")
    a(f"v_add_u32 v{vU+1}, s{sT0}, v{vU}")
    for b in range(4):
        a(f"ds_write_b64 v{vU+1}, {V(vAcc+2*b,2)} offset:{L_QPART+b*512}")
    lds_arrive(2, vSy, vOne)
    a(f"s_lshl_b32 s{sT0}, s{sHW}, 9")
    a(f"v_add_u32 v{vU+1}, s{sT0}, v{vU}")
    lds_wait(2, 4, vSy, vU + 4, sT0)
    for w in range(4):
        a(f"ds_read_b64 {V(vAcc+2*w,2)}, v{vU+1} offset:{L_QPART+w*2048}")
    a("s_waitcnt lgkmcnt(0)")
    a(f"v_pk_add_f32 {V(vAcc,2)}, {V(vAcc,2)}, {V(vAcc+2,2)}")
    a(f"v_pk_add_f32 {V(vAcc+4,2)}, {V(vAcc+4,2)}, {V(vAcc+6,2)}")
    a(f"v_pk_add_f32 {V(vAcc,2)}, {V(vAcc,2)}, {V(vAcc+4,2)}")
    sstamp(6)
    a(f"global_store_dwordx2 v{vU+2}, {V(vAcc,2)}, {P2(sWS)} sc1")
    stamp(3)
    sstamp(7)
    a(f"s_cmp_eq_u32 s{sHW}, 0")
    a("s_cbranch_scc0 L_h_b4")
    a(f"v_mov_b32 v{vU+4}, s{sNT}")
    if nopoll:
        a("s_branch L_qok")
    a.label("L_qpoll")
    a(f"global_load_dword v{vU+6}, v{vU+4}, {P2(sWS)} sc1")
    a("s_waitcnt vmcnt(0)")
    a(f"v_readfirstlane_b32 s{sT1}, v{vU+6}")
    a("s_nop 1")
    a(f"s_cmp_eq_u32 s{sT1}, 1")
    a("s_cbranch_scc1 L_qok")
    a(f"s_sleep {qpoll_sleep}")
    spin_timeout("L_qpoll")
    a.label("L_qok")
    lds_arrive(4, vSy, vOne)
    a.label("L_h_b4")
    a(f"s_lshl_b32 s{sT2}, s{sHeadW}, 12")
    a(f"s_add_u32 s{sT2}, s{sT2}, {WS_QP}")
    a(f"v_add_u32 v{vU+2}, s{sT2}, v{vU}")
    lds_wait(4, 1, vSy, vU + 4, sT0)
    stamp(4)
    vG = vXN
    a.label("L_qg")
    for g_ in range(8):
        a(f"global_load_dwordx2 {V(vG+2*g_,2)}, v{vU+2}, {P2(sWS)} offset:{g_*512} sc1")
    a("s_waitcnt vmcnt(0)")
    a(f"v_max3_u32 v{vU+4}, v{vG}, v{vG+1}, v{vG+2}")
    for k in range(3, 15, 2):
        a(f"v_max3_u32 v{vU+4}, v{vU+4}, v{vG+k}, v{vG+k+1}")
    a(f"v_max_u32 v{vU+4}, v{vU+4}, v{vG+15}")
    a(f"v_cmp_eq_u32 vcc, -1, v{vU+4}")
    a("s_nop 4")
    a("s_cbranch_vccz L_qgok")
    spin_timeout("L_qg")
    a.label("L_qgok")
    for g_ in range(1, 8):
        a(f"v_pk_add_f32 {V(vG,2)}, {V(vG,2)}, {V(vG+2*g_,2)}")
    a(f"v_cvt_pk_bf16_f32 v{vU+4}, v{vG}, v{vG+1}")
    a(f"s_lshl_b32 s{sT0}, s{sHW}, 8")
    a(f"v_add_u32 v{vU+5}, s{sT0}, v{vL4}")
    a(f"ds_write_b32 v{vU+5}, v{vU+4} offset:{L_QB}")
    lds_arrive(5, vSy, vOne)
    if hprio and hprio_off:
        a("s_setprio 0")
    stamp(5)
    if cut == 1:
        stamp(6); stamp(7)
        a("s_branch L_fin_stamp")
    a("s_branch L_h_post")

    a.label("L_swave")
    vOff, vOst, vMl, vQa, vProg = 2, 4, 5, 6, 7
    vQ = 8
    vO = 12
    vM, vL = 20, 21
    vAl, vMn = 22, 23
    vS = 24
    vT = 28
    vTmp, vTk = 36, 38
    RING = 64
    def buf(i): return RING + 32 * i
    def kslot(bb, i): return bb + 4 * i
    def vslot(bb, i): return bb + 16 + 4 * i
    def ldK(bb, soff):
        for i in range(KL):
            a(f"buffer_load_dwordx4 {V(kslot(bb,i),4)}, v{vOff}, {P4(SRD_K)}, s{soff} offen offset:{i*1024} {pol}")
    def ldV(bb, soff):
        for i in range(KL):
            a(f"buffer_load_dwordx4 {V(vslot(bb,i),4)}, v{vOff}, {P4(SRD_V)}, s{soff} offen offset:{i*1024} {pol}")
    if prio:
        a(f"s_setprio {prio}")
    vSn = 40
    vTkt = [48, 49, 50]
    vCo = 51
    SRD_C = SRD_A
    a(f"v_lshlrev_b32 v{vOff}, 4, v{vLane}")
    a(f"s_lshl_b32 s{sHeadW}, s{sH}, 21")
    a(f"s_lshr_b32 s{sCur}, s{sG}, 1")
    a(f"s_lshl_b32 s{sT0}, s{sCur}, 26")
    a(f"s_and_b32 s{sT1}, s{sG}, 1")
    a(f"s_lshl_b32 s{sT1}, s{sT1}, 20")
    a(f"s_add_u32 s{sStatic}, s{sHeadW}, s{sT0}")
    a(f"s_add_u32 s{sStatic}, s{sStatic}, s{sT1}")
    a(f"s_lshl_b32 s{sT0}, s{sWave}, 12")
    a(f"s_add_u32 s{sStatic}, s{sStatic}, s{sT0}")
    a(f"s_mov_b32 s{sOff}, s{sStatic}")
    srd(SRD_K, sK, 0x10000000)
    srd(SRD_V, sV, 0x10000000)
    def s_lds_init():
        a(f"s_lshl_b32 s{sT0}, s{sWave}, 13")
        a(f"v_lshlrev_b32 v{vOst}, 5, v{vLane}")
        a(f"v_add_u32 v{vOst}, s{sT0}, v{vOst}")
        a(f"v_add_u32 v{vOst}, {L_OST}, v{vOst}")
        a(f"v_lshrrev_b32 v{vMl}, 4, v{vLane}")
        a(f"s_lshl_b32 s{sT0}, s{sWave}, 2")
        a(f"v_add_u32 v{vMl}, s{sT0}, v{vMl}")
        a(f"v_lshlrev_b32 v{vMl}, 3, v{vMl}")
        a(f"v_add_u32 v{vMl}, {L_ML}, v{vMl}")
        a(f"v_and_b32 v{vQa}, 15, v{vLane}")
        a(f"v_lshlrev_b32 v{vQa}, 4, v{vQa}")
        a(f"v_add_u32 v{vQa}, {L_QB}, v{vQa}")
        for i in range(8):
            a(f"v_mov_b32 v{vO+i}, 0")
        a(f"v_mov_b32 v{vM}, 0x{NEG_MAX:08x}")
        a(f"v_mov_b32 v{vL}, 0")
        for b in range(4):
            a(f"ds_write_b128 v{vOst}, {V(vO,4)} offset:{b*2048}")
            a(f"ds_write_b128 v{vOst}, {V(vO,4)} offset:{b*2048+16}")
            a(f"ds_write_b64 v{vMl}, {V(vM,2)} offset:{b*128}")
    a(f"v_mov_b32 v{vTk}, {L_SYNC}")
    srd(SRD_C, sWS, 0x2000)
    a(f"v_mov_b32 v{vCo}, 0x7ff00000")
    nld = 0
    th_ = min(th, 48)
    for bi in range(6):
        if dyn and bi >= NX:
            a(f"v_mov_b32 v{vTkt[bi-NX]}, 1")
            a("s_mov_b64 exec, 1")
            a(f"buffer_atomic_add v{vTkt[bi-NX]}, v{vCo}, {P4(SRD_C)}, 0 offen sc0")
            a("s_mov_b64 exec, -1")
        for (srd_, slotf) in ((SRD_K, kslot), (SRD_V, vslot)):
            for i in range(KL):
                if nld == th_ or (nld == 0 and False):
                    pass
                if nld >= th_:
                    a(f"s_waitcnt vmcnt({th_-1})")
                a(f"buffer_load_dwordx4 {V(slotf(buf(bi), i),4)}, v{vOff}, {P4(srd_)}, s{sOff} offen offset:{i*1024} {pol}")
                nld += 1
                if nld == th_:
                    sstamp(2)
        a(f"s_add_u32 s{sOff}, s{sOff}, {CH}")
    stamp(1)
    sstamp(5)
    s_lds_init()
    if not noq:
        lds_wait(5, 4, vTk, vTmp, sT0, sleep=1)
    stamp(2)
    sstamp(6)
    a(f"s_lshl_b32 s{sT0}, s{sCur}, 8")
    a(f"v_add_u32 v{vTmp}, s{sT0}, v{vQa}")
    a(f"ds_read_b128 {V(vQ,4)}, v{vTmp}")
    a(f"s_mov_b32 s{sIdx}, 6")
    a(f"s_mov_b32 s{sN}, {NX}")
    a(f"s_mov_b32 s{sNT}, {NCH if not dyn else 0x7fffffff}")
    for k in range(NB):
        a(f"s_mov_b32 s{sBq[k]}, s{sCur}")
    a(f"s_mov_b32 s{sXc}, 0")
    a("s_waitcnt lgkmcnt(0)")

    def qk(bb):
        if nocomp & 1:
            for i in range(KL):
                a(f"v_xor_b32 v{vS+i}, v{kslot(bb,i)}, v{kslot(bb,i)+3}")
            return
        for j in range(4):
            for i in range(KL):
                k = kslot(bb, i) + j
                if j == 0:
                    a(f"v_dot2_f32_bf16 v{vS+i}, v{k}, v{vQ+j}, 0")
                else:
                    a(f"v_dot2_f32_bf16 v{vS+i}, v{k}, v{vQ+j}, v{vS+i}")
    def softmax():
        if nocomp & 2:
            return
        row_allreduce("v_add_f32", [vS, vS+1, vS+2, vS+3], nop_first=False)
        a(f"v_max3_f32 v{vMn}, v{vS}, v{vS+1}, v{vS+2}")
        a(f"v_max_f32 v{vMn}, v{vMn}, v{vS+3}")
        a(f"v_mul_f32 v{vMn}, s{sC}, v{vMn}")
        a(f"v_max_f32 v{vMn}, v{vMn}, v{vM}")
        a(f"v_sub_f32 v{vAl}, v{vM}, v{vMn}")
        for i in range(4):
            a(f"v_fma_f32 v{vS+i}, v{vS+i}, s{sC}, -v{vMn}")
        a(f"v_exp_f32 v{vAl}, v{vAl}")
        for i in range(4):
            a(f"v_exp_f32 v{vS+i}, v{vS+i}")
        a(f"v_mov_b32 v{vM}, v{vMn}")
        a(f"v_fma_f32 v{vL}, v{vL}, v{vAl}, v{vS}")
        a(f"v_add_f32 v{vT}, v{vS+1}, v{vS+2}")
        a(f"v_add_f32 v{vL}, v{vL}, v{vS+3}")
        a(f"v_add_f32 v{vL}, v{vL}, v{vT}")
        for j in range(4):
            a(f"v_pk_mul_f32 {V(vO+2*j,2)}, {V(vO+2*j,2)}, {V(vAl,2)} op_sel_hi:[1,0]")
    def pv(bb):
        if nocomp & 4:
            for i in range(KL):
                a(f"v_xor_b32 v{vO+i}, v{vslot(bb,i)}, v{vslot(bb,i)+3}")
            return
        for i in range(KL):
            p = vS + i
            pb = p & ~1
            sel = "op_sel:[0,1,0] op_sel_hi:[1,1,1]" if (p & 1) else "op_sel_hi:[1,0,1]"
            for j in range(4):
                v = vslot(bb, i) + j
                t = vT + 2 * j
                a(f"v_lshlrev_b32 v{t}, 16, v{v}")
                a(f"v_and_b32 v{t+1}, s{sMask}, v{v}")
            for j in range(4):
                t = vT + 2 * j
                a(f"v_pk_fma_f32 {V(vO+2*j,2)}, {V(t,2)}, {V(pb,2)}, {V(vO+2*j,2)} {sel}")
    TKOP = 1 if dyn else 0
    WAITN = (2 * NB - 1) * KL + (NB - 1) * TKOP
    WAITV = (2 * NB - 1) * KL + NB * TKOP
    def body(bi, k, tag):
        bb = buf(bi)
        sBr = sBq[k]
        if dyn:
            a(f"s_cmp_eq_u32 s{sBr}, s{sCur}")
            a(f"s_cbranch_scc1 L_nosw_{tag}")
            a(f"s_mov_b32 s{sBn}, s{sBr}")
            a(f"s_call_b64 {P2(sRet)}, L_switch")
            a.label(f"L_nosw_{tag}")
            a(f"s_cmp_eq_u32 s{sIdx}, {S-NB}")
            a(f"s_cbranch_scc1 L_en_{tag}")
            a.label(f"L_enr_{tag}")
        a(f"s_waitcnt vmcnt({WAITN})")
        qk(bb)
        a(f"s_cmp_lt_u32 s{sIdx}, {S}")
        a(f"s_cbranch_scc0 L_dy_{tag}")
        a(f"s_mul_i32 s{sOff}, s{sIdx}, {CH}")
        a(f"s_add_u32 s{sOff}, s{sOff}, s{sStatic}")
        a(f"s_mov_b32 s{sBn}, s{sBr}")
        a.label(f"L_go_{tag}")
        a(f"s_add_u32 s{sIdx}, s{sIdx}, 1")
        if dyn:
            a(f"v_mov_b32 v{vTkt[k]}, 1")
            a("s_mov_b64 exec, 1")
            a(f"buffer_atomic_add v{vTkt[k]}, v{vCo}, {P4(SRD_C)}, 0 offen sc0")
            a("s_mov_b64 exec, -1")
        ldK(bb, sOff)
        softmax()
        a(f"s_waitcnt vmcnt({WAITV})")
        pv(bb)
        ldV(bb, sOff)
        a(f"s_mov_b32 s{sBr}, s{sBn}")
        a(f"s_add_u32 s{sN}, s{sN}, 1")
        a(f"s_cmp_ge_u32 s{sN}, s{sNT}")
        a("s_cbranch_scc1 L_sfin")
    def body_dyn_part(tag, k):
        if dyn:
            a.label(f"L_en_{tag}")
            a(f"s_lshl_b32 s{sT0}, s{sH}, 8")
            a(f"v_mov_b32 v{vCo}, s{sT0}")
            a(f"s_branch L_enr_{tag}")
        a.label(f"L_dy_{tag}")
        if dyn:
            a(f"s_cmp_ge_u32 s{sIdx}, s{sNT}")
            a(f"s_cbranch_scc1 L_ex_{tag}")
            a(f"v_readfirstlane_b32 s{sT1}, v{vTkt[k]}")
            a("s_nop 1")
            a(f"s_cmp_lt_u32 s{sT1}, {D}")
            a(f"s_cbranch_scc1 L_tk_{tag}")
            a(f"s_mov_b32 s{sNT}, s{sIdx}")
            a(f"v_mov_b32 v{vCo}, 0x7ff00000")
            a(f"s_branch L_ex_{tag}")
            a.label(f"L_tk_{tag}")
            a(f"s_lshr_b32 s{sT2}, s{sT1}, {logPW}")
            a(f"s_and_b32 s{sT3}, s{sT1}, {4*P-1}")
            a(f"s_lshl_b32 s{sT3}, s{sT3}, 12")
            a(f"s_add_u32 s{sT3}, s{sT3}, {S*CH}")
            a(f"s_lshr_b32 s{sBn}, s{sT2}, 1")
            a(f"s_lshl_b32 s{sT0}, s{sBn}, 26")
            a(f"s_and_b32 s{sT2}, s{sT2}, 1")
            a(f"s_lshl_b32 s{sT2}, s{sT2}, 20")
            a(f"s_add_u32 s{sOff}, s{sHeadW}, s{sT3}")
            a(f"s_add_u32 s{sOff}, s{sOff}, s{sT0}")
            a(f"s_add_u32 s{sOff}, s{sOff}, s{sT2}")
            a(f"s_branch L_go_{tag}")
        a.label(f"L_ex_{tag}")
        a(f"s_mov_b32 s{sOff}, 0x7ff00000")
        a(f"s_mov_b32 s{sBn}, s{sCur}")
        a(f"s_branch L_go_{tag}")
    def bodyX(bi):
        bb = buf(bi)
        qk(bb)
        a("s_nop 2")
        softmax()
        pv(bb)

    tags = ["A", "B", "C"][:NB]
    a.label("L_loop")
    for k, tg in enumerate(tags):
        body(NX + k, k, tg)
        a(f"s_cmp_lt_u32 s{sXc}, {NX}")
        a(f"s_cbranch_scc1 L_x{tg}")
        a.label(f"L_x{tg}_ret")
    a("s_branch L_loop")
    for k, tg in enumerate(tags):
        a.label(f"L_x{tg}")
        a(f"s_add_u32 s{sXc}, s{sXc}, 1")
        a(f"s_call_b64 {P2(sRet)}, L_xbody")
        a(f"s_branch L_x{tg}_ret")
    for k, tg in enumerate(tags):
        body_dyn_part(tg, k)
    a.label("L_xbody")
    for x in range(NX):
        if x < NX - 1:
            a(f"s_cmp_eq_u32 s{sXc}, {x+1}")
            a(f"s_cbranch_scc0 L_xn{x}")
        bodyX(x)
        a(f"s_setpc_b64 {P2(sRet)}")
        if x < NX - 1:
            a.label(f"L_xn{x}")
    def save_state():
        a(f"s_lshl_b32 s{sT0}, s{sCur}, 11")
        a(f"v_add_u32 v{vTmp}, s{sT0}, v{vOst}")
        a(f"ds_write_b128 v{vTmp}, {V(vO,4)}")
        a(f"ds_write_b128 v{vTmp}, {V(vO+4,4)} offset:16")
        a(f"s_lshl_b32 s{sT0}, s{sCur}, 7")
        a(f"v_add_u32 v{vTmp+1}, s{sT0}, v{vMl}")
        a(f"ds_write_b64 v{vTmp+1}, {V(vM,2)}")
    a.label("L_switch")
    save_state()
    a(f"s_mov_b32 s{sCur}, s{sBn}")
    a(f"s_lshl_b32 s{sT0}, s{sCur}, 11")
    a(f"v_add_u32 v{vTmp}, s{sT0}, v{vOst}")
    a(f"ds_read_b128 {V(vO,4)}, v{vTmp}")
    a(f"ds_read_b128 {V(vO+4,4)}, v{vTmp} offset:16")
    a(f"s_lshl_b32 s{sT0}, s{sCur}, 7")
    a(f"v_add_u32 v{vTmp+1}, s{sT0}, v{vMl}")
    a(f"ds_read_b64 {V(vM,2)}, v{vTmp+1}")
    a(f"s_lshl_b32 s{sT0}, s{sCur}, 8")
    a(f"v_add_u32 v{vTk}, s{sT0}, v{vQa}")
    a(f"ds_read_b128 {V(vQ,4)}, v{vTk}")
    a("s_waitcnt lgkmcnt(0)")
    a(f"s_setpc_b64 {P2(sRet)}")

    a.label("L_sfin")
    stamp(3)
    sstamp(7)
    if cut:
        stamp(6); stamp(7)
        a("s_branch L_fin_stamp")
    save_state()
    a("s_waitcnt lgkmcnt(0)")
    a("s_barrier")
    a("s_branch L_tail")

    a.label("L_h_post")
    vTo = 8
    vTd = 64
    a(f"v_mul_u32_u24 v{vTo}, 205, v{vLane}")
    a(f"v_lshrrev_b32 v{vTo}, 11, v{vTo}")
    a(f"v_mul_u32_u24 v{vTo+1}, 10, v{vTo}")
    a(f"v_sub_u32 v{vTo+1}, v{vLane}, v{vTo+1}")
    a(f"v_mul_u32_u24 v{vTo}, 1280, v{vTo}")
    a(f"v_lshlrev_b32 v{vTo+1}, 4, v{vTo+1}")
    a(f"v_add_u32 v{vTo}, v{vTo}, v{vTo+1}")
    srd(SRD_A, sWO, 4096 * 1280)
    a(f"s_lshl_b32 s{sT0}, s{sH}, 7")
    a(f"s_lshl_b32 s{sT1}, s{sHW}, 5")
    a(f"s_add_u32 s{sT0}, s{sT0}, s{sT1}")
    a(f"s_mul_i32 s{sT0}, s{sT0}, 1280")
    a(f"s_mul_i32 s{sT1}, s{sG}, 160")
    a(f"s_add_u32 s{sT0}, s{sT0}, s{sT1}")
    def set_exec(n):
        if n >= 64:
            a("s_mov_b64 exec, -1")
        elif n > 32:
            a("s_mov_b32 exec_lo, -1")
            a(f"s_mov_b32 exec_hi, 0x{(1 << (n-32)) - 1:x}")
        else:
            a(f"s_mov_b32 exec_lo, 0x{((1 << n) - 1) & 0xffffffff:x}")
            a("s_mov_b32 exec_hi, 0")
    def stage_tile(srd_, sbase, nrows, ldsbase_v, ldsoff):
        n = (nrows + 5) // 6
        set_exec(60)
        for i in range(n):
            rows = min(6, nrows - 6 * i)
            if rows < 6:
                set_exec(rows * 10)
            a(f"buffer_load_dwordx4 {V(vTd+4*i,4)}, v{vTo}, {P4(srd_)}, s{sbase} offen {pol}")
            if i < n - 1:
                a(f"s_add_u32 s{sbase}, s{sbase}, {6*1280}")
        set_exec(60)
        a("s_waitcnt vmcnt(0)")
        for i in range(n):
            rows = min(6, nrows - 6 * i)
            if rows < 6:
                set_exec(rows * 10)
            a(f"ds_write_b128 v{ldsbase_v}, {V(vTd+4*i,4)} offset:{ldsoff + i*960}")
        a("s_mov_b64 exec, -1")
    a(f"s_mul_i32 s{sT1}, s{sHW}, {32*160}")
    a(f"v_add_u32 v{vTo+1}, s{sT1}, v{vL16}")
    stage_tile(SRD_A, sT0, 32, vTo + 1, L_WT)
    lds_arrive(6, vSy, vOne)
    a(f"v_lshrrev_b32 v{vU}, 4, v{vLane}")
    a(f"v_mul_u32_u24 v{vBo}, {8*160}, v{vU}")
    a(f"v_and_b32 v{vU+1}, 15, v{vLane}")
    a(f"v_lshlrev_b32 v{vU+1}, 1, v{vU+1}")
    a(f"v_add_u32 v{vBo}, v{vBo}, v{vU+1}")
    def build_btile(dst, vaddr, ldsoff, nsteps, tmp):
        for s in range(nsteps):
            for j in range(8):
                a(f"ds_read_u16 v{tmp+8*s+j}, v{vaddr} offset:{ldsoff + (32*s+j)*160}")
            a("s_waitcnt lgkmcnt(0)")
            for j2 in range(4):
                a(f"v_lshl_or_b32 v{dst+4*s+j2}, v{tmp+8*s+2*j2+1}, 16, v{tmp+8*s+2*j2}")
    lds_wait(6, 4, vSy, vU + 4, sT0, sleep=1)
    a(f"s_lshl_b32 s{sT1}, s{sHW}, 5")
    a(f"v_add_u32 v{vU+2}, s{sT1}, v{vBo}")
    build_btile(vWO, vU + 2, L_WT, 4, 64)
    a(f"s_cmp_eq_u32 s{sHW}, 1")
    a("s_cbranch_scc0 L_h_no2")
    build_btile(vWO2, vBo, L_WT + 4 * 32, 4, 64)
    a.label("L_h_no2")
    a(f"s_cmp_eq_u32 s{sHW}, 0")
    a("s_cbranch_scc1 L_h0")
    a(f"s_cmp_eq_u32 s{sHW}, 3")
    a("s_cbranch_scc1 L_h3")
    a("s_branch L_h_b6")

    a.label("L_h0")
    a(f"s_cmp_lt_u32 s{sH}, 4")
    a("s_cbranch_scc0 L_h0_tk")
    a.label("L_fflag")
    a(f"global_load_dword v{vU+1}, v{vL4}, {P2(sDBG)} sc1")
    a(f"v_and_b32 v{vU+2}, 16, v{vLane}")
    a(f"v_lshrrev_b32 v{vU+2}, 1, v{vU+2}")
    a("s_waitcnt vmcnt(0)")
    a(f"v_add_u32 v{vU+1}, v{vU+1}, v{vU+2}")
    a(f"v_cmp_gt_u32 vcc, 8, v{vU+1}")
    a("s_nop 4")
    a("s_cbranch_vccz L_h0_tk")
    a("s_sleep 8")
    spin_timeout("L_fflag")
    a.label("L_h0_tk")
    a("s_branch L_h_b6")

    a.label("L_h3")
    vW1 = 32
    vXq = 112
    vHA = 128
    vHG = 32
    vYB = 112
    vHAo = 132
    a(f"v_lshlrev_b32 v{vL2}, 1, v{vLane}")
    srd(SRD_B, sW1, 640 * 3456)
    a(f"s_mul_i32 s{sOff}, s{sG}, {80*3456}")
    a(f"s_lshl_b32 s{sT0}, s{sH}, 7")
    a(f"s_add_u32 s{sOff}, s{sOff}, s{sT0}")
    a(f"s_cmp_lt_u32 s{sH}, 27")
    a(f"s_cselect_b32 s{sOff}, s{sOff}, 0x7f000000")
    for q4 in range(5):
        for i in range(16):
            a(f"buffer_load_ushort v{vW1+16*q4+i}, v{vL2}, {P4(SRD_B)}, s{sOff} offen {pol}")
            a(f"s_add_u32 s{sOff}, s{sOff}, 3456")
        a("s_waitcnt vmcnt(0)")
    for b in range(4):
        a(f"v_mov_b32 v{vHA+b}, 0")
    a(f"s_mul_i32 s{sT0}, s{sG}, 320")
    a(f"v_mov_b32 v{vU}, s{sT0}")
    for q4 in range(20):
        for b in range(4):
            a(f"ds_read_b128 {V(vXq+4*b,4)}, v{vU} offset:{L_XN+b*2560+16*q4}")
        for r in range(4):
            a(f"v_lshlrev_b32 v{vW1+4*q4+r}, 16, v{vW1+4*q4+r}")
        a("s_waitcnt lgkmcnt(0)")
        for r in range(4):
            for b in range(4):
                a(f"v_fmac_f32 v{vHA+b}, v{vXq+4*b+r}, v{vW1+4*q4+r}")
    a(f"s_lshl_b32 s{sT0}, s{sH}, 5")
    a(f"s_add_u32 s{sT0}, s{sT0}, s{sG}")
    a(f"s_lshl_b32 s{sT0}, s{sT0}, 8")
    a(f"s_add_u32 s{sT0}, s{sT0}, {WS_HP}")
    a(f"v_add_u32 v{vU+1}, s{sT0}, v{vL4}")
    a(f"v_add_u32 v{vU+2}, 4096, v{vU+1}")
    for b in range(4):
        base = vU + 1 if b < 2 else vU + 2
        a(f"global_store_dword v{base}, v{vHA+b}, {P2(sWS)} offset:{(b&1)*2048} sc1")
    srd(SRD_B, sW2, 1728 * 1280)
    a(f"s_mul_i32 s{sT0}, s{sH}, {64*1280}")
    a(f"s_mul_i32 s{sT1}, s{sG}, 160")
    a(f"s_add_u32 s{sT0}, s{sT0}, s{sT1}")
    stage_tile(SRD_B, sT0, 64, vL16, L_W2T)
    srd(SRD_B, sB1, 1728 * 2)
    a(f"s_lshl_b32 s{sT0}, s{sH}, 7")
    a(f"buffer_load_ushort v{vU+3}, v{vL2}, {P4(SRD_B)}, s{sT0} offen")
    a(f"s_lshl_b32 s{sT0}, s{sH}, 13")
    a(f"s_add_u32 s{sT0}, s{sT0}, {WS_HP}")
    a(f"v_add_u32 v{vU+1}, s{sT0}, v{vL4}")
    a(f"v_add_u32 v{vU+2}, 4096, v{vU+1}")
    a.label("L_hg")
    for b in range(4):
        base = vU + 1 if b < 2 else vU + 2
        for g_ in range(8):
            a(f"global_load_dword v{vHG+8*b+g_}, v{base}, {P2(sWS)} offset:{(b&1)*2048+g_*256} sc1")
    a("s_waitcnt vmcnt(0)")
    a(f"v_max3_u32 v{vU+4}, v{vHG}, v{vHG+1}, v{vHG+2}")
    for k in range(3, 31, 2):
        a(f"v_max3_u32 v{vU+4}, v{vU+4}, v{vHG+k}, v{vHG+k+1}")
    a(f"v_max_u32 v{vU+4}, v{vU+4}, v{vHG+31}")
    a(f"v_cmp_eq_u32 vcc, -1, v{vU+4}")
    a("s_nop 4")
    a("s_cbranch_vccz L_hgok")
    a("s_sleep 16")
    spin_timeout("L_hg")
    a.label("L_hgok")
    a(f"v_lshlrev_b32 v{vU+3}, 16, v{vU+3}")
    for b in range(4):
        r = vHG + 8 * b
        for g_ in range(1, 8):
            a(f"v_add_f32 v{r}, v{r}, v{r+g_}")
        rnd_bf16(r, r)
        a(f"v_add_f32 v{r}, v{r}, v{vU+3}")
        rnd_bf16(r, r)
        a(f"v_max_f32 v{r}, 0, v{r}")
        a(f"v_mul_f32 v{r}, v{r}, v{r}")
        a(f"v_cvt_pk_bf16_f32 v{r}, v{r}, v{r}")
        a(f"ds_write_b16 v{vL2}, v{r} offset:{L_HB+b*128}")
    for t in range(5):
        build_btile(vW2 + 8 * t, vBo, L_W2T + t * 32, 2, 64)
    a(f"v_and_b32 v{vU}, 3, v{vLane}")
    a(f"v_lshlrev_b32 v{vU}, 7, v{vU}")
    a(f"v_lshrrev_b32 v{vU+1}, 4, v{vLane}")
    a(f"v_lshlrev_b32 v{vU+1}, 4, v{vU+1}")
    a(f"v_add_u32 v{vU}, v{vU}, v{vU+1}")
    a(f"ds_read_b128 {V(vHAo,4)}, v{vU} offset:{L_HB}")
    a(f"ds_read_b128 {V(vHAo+4,4)}, v{vU} offset:{L_HB+64}")
    for i in range(20):
        a(f"v_mov_b32 v{vYB+i}, 0")
    a("s_waitcnt lgkmcnt(0)")
    for s in range(2):
        for t in range(5):
            a(f"v_mfma_f32_16x16x32_bf16 {V(vYB+4*t,4)}, {V(vHAo+4*s,4)}, {V(vW2+8*t+4*s,4)}, {V(vYB+4*t,4)}")
    a("s_nop 7")
    a("s_nop 1")
    a("s_mov_b64 exec, 0xffff")
    for t in range(5):
        for b in range(4):
            a(f"ds_write_b32 v{vL4}, v{vYB+4*t+b} offset:{L_YB+b*320+t*64}")
    a("s_mov_b64 exec, -1")

    a.label("L_h_b6")
    stamp(1)
    a("s_waitcnt vmcnt(0) lgkmcnt(0)")
    a("s_barrier")

    a.label("L_tail")
    stamp(6)
    tstamp(1)
    vD4, vA, vMl2, vC, vLs, vOo = 2, 3, 4, 6, 7, 8
    vOv = 12
    vGg = 12
    vMx = 28
    vZ = 30
    a(f"s_lshr_b32 s{sB}, s{sWave}, 1")
    a(f"s_and_b32 s{sT0}, s{sWave}, 1")
    a(f"s_lshl_b32 s{sT0}, s{sT0}, 6")
    a(f"v_add_u32 v{vD4}, s{sT0}, v{vLane}")
    a(f"v_lshlrev_b32 v{vD4}, 2, v{vD4}")
    a(f"s_lshl_b32 s{sT0}, s{sB}, 11")
    a(f"s_add_u32 s{sT0}, s{sT0}, {L_OST}")
    a(f"v_add_u32 v{vA}, s{sT0}, v{vD4}")
    a(f"v_and_b32 v{vZ}, 15, v{vLane}")
    a(f"v_lshlrev_b32 v{vZ}, 3, v{vZ}")
    a(f"s_lshl_b32 s{sT0}, s{sB}, 7")
    a(f"v_add_u32 v{vZ}, s{sT0}, v{vZ}")
    a(f"ds_read_b64 {V(vMl2,2)}, v{vZ} offset:{L_ML}")
    for i in range(16):
        a(f"ds_read_b32 v{vOv+i}, v{vA} offset:{(i>>2)*8192+(i&3)*512}")
    a("s_waitcnt lgkmcnt(0)")
    def merge_coef(dup):
        a(f"v_mov_b32 v{vMx}, v{vMl2}")
        row_allreduce("v_max_f32", [vMx])
        a(f"v_sub_f32 v{vC}, v{vMl2}, v{vMx}")
        a(f"v_exp_f32 v{vC}, v{vC}")
        a("s_nop 0")
        a(f"v_mul_f32 v{vLs}, v{vC}, v{vMl2+1}")
        row_allreduce("v_add_f32", [vLs])
        if dup:
            a(f"v_mul_f32 v{vLs}, 0.5, v{vLs}")
    def merge_o(n, regs):
        a(f"v_mov_b32 v{vOo}, 0")
        a(f"v_mov_b32 v{vOo+1}, 0")
        for i in range(n):
            a(f"v_fmac_f32_dpp v{vOo+(i&1)}, v{vC}, v{regs[i]} row_newbcast:{i} {DPPM}")
        a(f"v_add_f32 v{vOo}, v{vOo}, v{vOo+1}")
    merge_coef(False)
    merge_o(16, [vOv + i for i in range(16)])
    a(f"s_lshl_b32 s{sT0}, s{sH}, 2")
    a(f"s_add_u32 s{sT0}, s{sT0}, s{sB}")
    a(f"s_lshl_b32 s{sT1}, s{sT0}, 12")
    a(f"s_add_u32 s{sT1}, s{sT1}, {WS_OP}")
    a(f"v_add_u32 v{vA}, s{sT1}, v{vD4}")
    a(f"s_lshl_b32 s{sT2}, s{sG}, 9")
    a(f"v_add_u32 v{vZ}, s{sT2}, v{vA}")
    a(f"global_store_dword v{vZ}, v{vOo}, {P2(sWS)} sc1")
    a(f"s_lshl_b32 s{sT1}, s{sT0}, {mlsh+3}")
    a(f"s_add_u32 s{sT1}, s{sT1}, {WS_OPML}")
    a(f"s_lshl_b32 s{sT2}, s{sG}, {mlsh}")
    a(f"s_add_u32 s{sT2}, s{sT2}, s{sT1}")
    a(f"v_mov_b32 v{vZ+1}, s{sT2}")
    a(f"v_mov_b32 v{vZ+2}, v{vMx}")
    a(f"v_mov_b32 v{vZ+3}, v{vLs}")
    assert (vZ + 2) % 2 == 0
    a(f"s_and_b32 s{sT3}, s{sWave}, 1")
    a(f"s_cmp_eq_u32 s{sT3}, 0")
    a("s_cbranch_scc0 L_t_noml")
    a("s_mov_b64 exec, 1")
    a(f"global_store_dwordx2 v{vZ+1}, {V(vZ+2,2)}, {P2(sWS)} sc1")
    a("s_mov_b64 exec, -1")
    a.label("L_t_noml")
    tstamp(2)
    a(f"v_and_b32 v{vZ+1}, 7, v{vLane}")
    a(f"v_lshlrev_b32 v{vZ+4}, 7, v{vZ+1}")
    a(f"v_lshlrev_b32 v{vZ+1}, {mlsh}, v{vZ+1}")
    a(f"v_add_u32 v{vZ+1}, s{sT1}, v{vZ+1}")
    a(f"s_mov_b32 s{sSpin}, {spin_cap}")
    a(f"v_mov_b32 v{vZ+2}, {L_SYNC}")
    a(f"v_mov_b32 v{vZ+3}, 1")
    a("s_mov_b64 exec, 1")
    a(f"ds_add_rtn_u32 v{vZ+5}, v{vZ+2}, v{vZ+3} offset:28")
    a(f"s_lshl_b32 s{sT2}, s2, 7")
    a(f"s_add_u32 s{sT2}, s{sT2}, {WS_DB}")
    a(f"v_mov_b32 v{vZ+6}, s{sT2}")
    a("s_waitcnt lgkmcnt(0)")
    a(f"v_readfirstlane_b32 s{sT3}, v{vZ+5}")
    a("s_nop 1")
    a(f"s_cmp_eq_u32 s{sT3}, 7")
    a("s_cbranch_scc0 L_t_nodb")
    a(f"global_store_dword v{vZ+6}, v{vZ+3}, {P2(sWS)} sc1")
    a.label("L_t_nodb")
    a("s_mov_b64 exec, -1")
    a(f"s_cmp_eq_u32 s{sWave}, {dbwave}")
    a("s_cbranch_scc0 L_dbok")
    a(f"s_lshl_b32 s{sT2}, s{sH}, 10")
    a(f"s_add_u32 s{sT2}, s{sT2}, {WS_DB}")
    a(f"v_add_u32 v{vZ+4}, s{sT2}, v{vZ+4}")
    a("s_mov_b64 exec, 0xff")
    a.label("L_dbpoll")
    a(f"global_load_dword v{vZ+5}, v{vZ+4}, {P2(sWS)} sc1")
    a("s_waitcnt vmcnt(0)")
    a(f"v_cmp_eq_u32 vcc, 1, v{vZ+5}")
    a("s_nop 4")
    a(f"s_bcnt1_i32_b64 s{sT3}, vcc")
    a(f"s_cmp_ge_u32 s{sT3}, {dbneed}")
    a("s_cbranch_scc1 L_dbok2")
    if opoll_sleep:
        a(f"s_sleep {opoll_sleep}")
    spin_timeout("L_dbpoll")
    a.label("L_dbok2")
    a("s_mov_b64 exec, -1")
    a.label("L_dbok")
    a("s_barrier")
    a.label("L_opoll")
    tstamp(3)
    a(f"global_load_dwordx2 {V(vMl2,2)}, v{vZ+1}, {P2(sWS)} sc1")
    for g_ in range(8):
        a(f"global_load_dword v{vGg+g_}, v{vA}, {P2(sWS)} offset:{g_*512} sc1")
    a("s_waitcnt vmcnt(0)")
    a(f"v_max3_u32 v{vZ+2}, v{vGg}, v{vGg+1}, v{vGg+2}")
    a(f"v_max3_u32 v{vZ+3}, v{vGg+3}, v{vGg+4}, v{vGg+5}")
    a(f"v_max3_u32 v{vZ+2}, v{vZ+2}, v{vGg+6}, v{vGg+7}")
    a(f"v_max3_u32 v{vZ+3}, v{vZ+3}, v{vMl2}, v{vMl2+1}")
    a(f"v_max_u32 v{vZ+2}, v{vZ+2}, v{vZ+3}")
    a(f"v_cmp_eq_u32 vcc, -1, v{vZ+2}")
    a("s_nop 4")
    a("s_cbranch_vccz L_ook")
    spin_timeout("L_opoll")
    a.label("L_ook")
    stamp(7)
    tstamp(4)
    merge_coef(True)
    a(f"v_rcp_f32 v{vLs}, v{vLs}")
    merge_o(8, [vGg + i for i in range(8)])
    a(f"v_mul_f32 v{vOo}, v{vOo}, v{vLs}")
    a(f"v_cvt_pk_bf16_f32 v{vOo}, v{vOo}, v{vOo}")
    a(f"v_lshrrev_b32 v{vZ}, 1, v{vD4}")
    a(f"s_lshl_b32 s{sT0}, s{sB}, 8")
    a(f"v_add_u32 v{vZ}, s{sT0}, v{vZ}")
    a(f"ds_write_b16 v{vZ}, v{vOo} offset:{L_OA}")
    a("s_waitcnt lgkmcnt(0)")
    a("s_barrier")
    tstamp(5)
    a(f"s_cmp_lt_u32 s{sWave}, 4")
    a("s_cbranch_scc1 L_final_chk")
    vAo = 64
    vY = 80
    a(f"v_and_b32 v{vZ}, 3, v{vLane}")
    a(f"v_lshlrev_b32 v{vZ}, 8, v{vZ}")
    a(f"v_lshrrev_b32 v{vZ+1}, 4, v{vLane}")
    a(f"v_lshlrev_b32 v{vZ+1}, 4, v{vZ+1}")
    a(f"v_add_u32 v{vZ}, v{vZ}, v{vZ+1}")
    for s in range(4):
        a(f"ds_read_b128 {V(vAo+4*s,4)}, v{vZ} offset:{L_OA+64*s}")
    a(f"v_and_b32 v{vZ+1}, 15, v{vLane}")
    a(f"v_lshlrev_b32 v{vZ+1}, 2, v{vZ+1}")
    a(f"s_lshl_b32 s{sT0}, s{sHW}, 6")
    a(f"v_add_u32 v{vZ+2}, s{sT0}, v{vZ+1}")
    for b in range(4):
        a(f"ds_read_b32 v{vY+b}, v{vZ+2} offset:{L_YB+b*320}")
    for b in range(4):
        a(f"ds_read_b32 v{vY+4+b}, v{vZ+1} offset:{L_YB+b*320+256}")
    a(f"s_lshl_b32 s{sT1}, s{sG}, 7")
    a(f"s_add_u32 s{sT1}, s{sT1}, s{sH}")
    a(f"s_mul_i32 s{sT1}, s{sT1}, 320")
    a(f"s_add_u32 s{sT1}, s{sT1}, {WS_YP}")
    a(f"v_add_u32 v{vZ+3}, s{sT1}, v{vZ+2}")
    a(f"v_add_u32 v{vZ+4}, s{sT1}, v{vZ+1}")
    a("s_waitcnt lgkmcnt(0)")
    for s in range(4):
        a(f"v_mfma_f32_16x16x32_bf16 {V(vY,4)}, {V(vAo+4*s,4)}, {V(vWO+4*s,4)}, {V(vY,4)}")
    a(f"s_cmp_eq_u32 s{sHW}, 1")
    a("s_cbranch_scc0 L_t_one")
    for s in range(4):
        a(f"v_mfma_f32_16x16x32_bf16 {V(vY+4,4)}, {V(vAo+4*s,4)}, {V(vWO2+4*s,4)}, {V(vY+4,4)}")
    for b in range(4):
        a(f"v_add_u32 v{vZ+5+(b&1)}, {b*10240+256}, v{vZ+4}") if False else None
    a("s_nop 7")
    a("s_nop 1")
    a("s_mov_b64 exec, 0xffff")
    for b in range(4):
        a(f"v_add_u32 v{vZ+5}, {b*10240+256}, v{vZ+4}")
        a(f"global_store_dword v{vZ+5}, v{vY+4+b}, {P2(sWS)} sc1")
    a("s_mov_b64 exec, -1")
    a.label("L_t_one")
    a("s_nop 7")
    a("s_nop 1")
    a("s_mov_b64 exec, 0xffff")
    for b in range(4):
        a(f"v_add_u32 v{vZ+5}, {b*10240}, v{vZ+3}")
        a(f"global_store_dword v{vZ+5}, v{vY+b}, {P2(sWS)} sc1")
    a("s_mov_b64 exec, -1")
    tstamp(6)
    a(f"s_cmp_eq_u32 s{sWave}, 4")
    a("s_cbranch_scc0 L_fin_stamp")
    a.label("L_final_chk")
    a(f"s_cmp_lt_u32 s{sH}, 4")
    a("s_cbranch_scc0 L_fin_stamp")
    vFa, vFx, vF0 = 2, 4, 8
    a(f"v_lshrrev_b32 v{vZ}, 4, v{vLane}")
    a(f"v_lshlrev_b32 v{vZ}, 2, v{vZ}")
    a(f"s_lshl_b32 s{sT0}, s{sWave}, 4")
    a(f"v_add_u32 v{vZ}, s{sT0}, v{vZ}")
    a(f"v_and_b32 v{vZ+1}, 15, v{vLane}")
    a(f"v_mul_u32_u24 v{vFa}, 320, v{vZ+1}")
    a(f"v_lshlrev_b32 v{vZ+2}, 2, v{vZ}")
    a(f"v_add_u32 v{vFa}, v{vFa}, v{vZ+2}")
    a(f"s_lshl_b32 s{sT1}, s{sG}, 2")
    a(f"s_add_u32 s{sT1}, s{sT1}, s{sH}")
    a(f"s_mul_i32 s{sT1}, s{sT1}, 10240")
    a(f"s_add_u32 s{sT1}, s{sT1}, {WS_YP}")
    a(f"v_add_u32 v{vFa}, s{sT1}, v{vFa}")
    a(f"v_add_u32 v{vFa+1}, {16*320}, v{vFa}")
    a(f"s_mul_i32 s{sT2}, s{sG}, 80")
    a(f"v_add_u32 v{vZ}, s{sT2}, v{vZ}")
    a(f"v_lshlrev_b32 v{vZ}, 1, v{vZ}")
    a(f"s_mul_i32 s{sT3}, s{sH}, 1280")
    a(f"v_add_u32 v{vZ+3}, s{sT3}, v{vZ}")
    a(f"global_load_dwordx2 {V(vFx,2)}, v{vZ+3}, {P2(sX)}")
    a(f"global_load_dwordx2 {V(vFx+2,2)}, v{vZ}, {P2(sB2)}")
    a(f"s_mov_b32 s{sSpin}, {spin_cap}")
    a.label("L_ypoll")
    a(f"global_load_dwordx4 {V(vF0,4)}, v{vFa}, {P2(sWS)} sc1")
    a(f"global_load_dwordx4 {V(vF0+4,4)}, v{vFa+1}, {P2(sWS)} sc1")
    a("s_waitcnt vmcnt(0)")
    a(f"v_max3_u32 v{vZ+4}, v{vF0}, v{vF0+1}, v{vF0+2}")
    a(f"v_max3_u32 v{vZ+5}, v{vF0+3}, v{vF0+4}, v{vF0+5}")
    a(f"v_max3_u32 v{vZ+4}, v{vZ+4}, v{vF0+6}, v{vF0+7}")
    a(f"v_max_u32 v{vZ+4}, v{vZ+4}, v{vZ+5}")
    a(f"v_cmp_eq_u32 vcc, -1, v{vZ+4}")
    a("s_nop 4")
    a("s_cbranch_vccz L_yok")
    spin_timeout("L_ypoll")
    a.label("L_yok")
    tstamp(7)
    for i in range(4):
        a(f"v_add_f32 v{vF0+i}, v{vF0+i}, v{vF0+4+i}")
    row_allreduce("v_add_f32", [vF0, vF0+1, vF0+2, vF0+3])
    for j in range(2):
        a(f"v_lshlrev_b32 v{vZ+4}, 16, v{vFx+j}")
        a(f"v_and_b32 v{vZ+5}, s{sMask}, v{vFx+j}")
        a(f"v_add_f32 v{vF0+2*j}, v{vF0+2*j}, v{vZ+4}")
        a(f"v_add_f32 v{vF0+2*j+1}, v{vF0+2*j+1}, v{vZ+5}")
        a(f"v_lshlrev_b32 v{vZ+4}, 16, v{vFx+2+j}")
        a(f"v_and_b32 v{vZ+5}, s{sMask}, v{vFx+2+j}")
        a(f"v_add_f32 v{vF0+2*j}, v{vF0+2*j}, v{vZ+4}")
        a(f"v_add_f32 v{vF0+2*j+1}, v{vF0+2*j+1}, v{vZ+5}")
    a(f"v_cvt_pk_bf16_f32 v{vF0+4}, v{vF0}, v{vF0+1}")
    a(f"v_cvt_pk_bf16_f32 v{vF0+5}, v{vF0+2}, v{vF0+3}")
    a("s_mov_b32 exec_lo, 0x00010001")
    a("s_mov_b32 exec_hi, 0x00010001")
    a(f"global_store_dwordx2 v{vZ+3}, {V(vF0+4,2)}, {P2(sOUT)}")
    a("s_mov_b64 exec, -1")
    a.label("L_fin_stamp")
    if stamps:
        a("s_memrealtime s[4:5]")
        a("s_waitcnt lgkmcnt(0)")
        a(f"s_lshl_b32 s{sT0}, s2, 3")
        a(f"s_add_u32 s{sT0}, s{sT0}, s{sWave}")
        a(f"s_lshl_b32 s{sT0}, s{sT0}, 6")
        a(f"s_add_u32 s{sT0}, s{sT0}, {WS_STAMP}")
        a(f"v_mov_b32 v2, s{sT0}")
        for i in range(8):
            a(f"v_mov_b32 v{8+i}, s{STAMP0+2*i}")
        a("v_mov_b32 v16, s4")
        a("s_getreg_b32 s6, hwreg(HW_REG_XCC_ID)")
        a("v_mov_b32 v17, s6")
        a(f"v_mov_b32 v18, s{sN}")
        a("v_mov_b32 v19, 0")
        a("s_mov_b64 exec, 1")
        a(f"global_store_dwordx4 v2, v[8:11], {P2(sWS)}")
        a(f"global_store_dwordx4 v2, v[12:15], {P2(sWS)} offset:16")
        a(f"global_store_dwordx4 v2, v[16:19], {P2(sWS)} offset:32")
    a.label("L_end")
    a("s_endpgm")
    a.raw('.section .rodata,"a"')
    a.raw(".p2align 6")
    a.raw(f".amdhsa_kernel {KNAME}")
    a.raw("  .amdhsa_next_free_vgpr 256")
    a.raw("  .amdhsa_next_free_sgpr 102")
    a.raw("  .amdhsa_accum_offset 256")
    a.raw("  .amdhsa_group_segment_fixed_size 0")
    a.raw("  .amdhsa_kernarg_size 104")
    a.raw("  .amdhsa_user_sgpr_count 2")
    a.raw("  .amdhsa_user_sgpr_kernarg_segment_ptr 1")
    a.raw("  .amdhsa_system_sgpr_workgroup_id_x 1")
    a.raw(".end_amdhsa_kernel")
    return "\n".join(x for x in a.L if x is not None) + "\n"

if __name__ == "__main__":
    import argparse, ast
    ap = argparse.ArgumentParser()
    ap.add_argument("-o", default="k.s")
    ap.add_argument("kv", nargs="*")
    args = ap.parse_args()
    kw = {}
    for x in args.kv:
        k, v = x.split("=")
        try: v = ast.literal_eval(v)
        except Exception: pass
        kw[k] = v
    open(args.o, "w").write(gen(**kw))
```

```python
import struct, math

KNAME = "parallel_sum__gqa_block_cached__dense_activation_squared_relu__decode_kernel"

WS_CTR = 0x0
WS_OPML = 0x10000
WS_OB = 0x100000
OB_QP, OB_OP, OB_HP, OB_YP, OB_DB, OB_GO = 0, 2048, 4096, 5120, 6400, 6528
OB_FILL = 7
WS_STAMP = 0x300000
L_WT = 0
L_W2T = 20480
L_XN = 30720
L_QPART = 40960
L_QB = 49152
L_HB = 50176
L_YB = 50688
L_OA = 51968
L_TK = 52992
L_PROG = 54016
L_SYNC = 54048
L_ML = 54272
L_OST = 55296
L_LPW = 24576
L_TOTAL = L_OST + 4 * L_LPW

NEG_MAX = 0xFF7FFFFF
def f2u(x): return struct.unpack("<I", struct.pack("<f", x))[0]
C_SCALE = f2u((128 ** -0.5) * math.log2(math.e))
INV640 = f2u(1.0 / 640.0)
EPS = f2u(1e-5)

class Asm:
    def __init__(self):
        self.L = []
        self.uid = 0
    def __call__(self, s):
        self.L.append("  " + s)
    def label(self, s):
        self.L.append(s + ":")
    def u(self, base):
        self.uid += 1
        return f"{base}_{self.uid}"
    def raw(self, s):
        self.L.append(s)

def gen(dyn=True, S=48, stamps=False, pol="nt", NB=3, spin_cap=1 << 16, th=12, nocomp=0, prio=0,
        cut=0, noq=0, cpf=False, opoll_sleep=2, sprof=0, hprio=3, hprio_off=0, qpoll_sleep=2, nopoll=0, nosent=0, dbwave=7, dbneed=7, skipffn=0, skippost=0, w1b=40, NL=3, rot=0):
    KL = 4
    NX = 6 - NB
    assert NL <= NX
    NXT = NX + NL
    NPRE = 6 + NL
    CH = KL * 4096
    NCH = (1 << 20) // CH
    if not dyn:
        S = NCH
    P = NCH - S
    logP = P.bit_length() - 1 if P else 0
    assert (P & (P - 1)) == 0
    D = 8 * P * 4
    logPW = logP + 2
    a = Asm()
    a.raw("; @launch grid=(256,1,1) block=(512,1,1) lds=%d" % L_TOTAL)
    a.raw('.amdgcn_target "amdgcn-amd-amdhsa--gfx950"')
    a.raw(".text")
    a.raw(f".globl {KNAME}")
    a.raw(".p2align 8")
    a.raw(f".type {KNAME},@function")
    a.label(KNAME)

    sX, sK, sV, sWQ, sWO, sW1, sB1, sW2, sB2, sOUT, sDBG, sWS = 16, 18, 20, 22, 24, 28, 30, 32, 34, 36, 38, 40
    sWave, sH, sG = 42, 43, 44
    sHW = 45
    sMask, sC = 46, 47
    SRD_K, SRD_V, SRD_A, SRD_B = 48, 52, 56, 60
    sStatic, sHeadW, sIdx, sN, sNT, sOff, sCur, sBn, sXc = 64, 65, 66, 67, 68, 69, 70, 71, 72
    sBq = [73, 74, 75]
    sT0, sT1, sT2, sT3, sT4 = 76, 77, 78, 79, 6
    sRet = 80
    sB = 82
    sSpin = 83
    STAMP0 = 84
    def P2(s): return f"s[{s}:{s+1}]"
    def P4(s): return f"s[{s}:{s+3}]"
    def tstamp(i):
        if stamps and sprof == 2:
            a(f"s_memrealtime s[{STAMP0+2*i}:{STAMP0+2*i+1}]")
    def sstamp(i):
        if stamps and sprof == 1:
            a(f"s_memrealtime s[{STAMP0+2*i}:{STAMP0+2*i+1}]")
    def stamp(i):
        if sprof and i != 0:
            return
        if stamps:
            a(f"s_memrealtime s[{STAMP0+2*i}:{STAMP0+2*i+1}]")
    def V(n, cnt=1):
        return f"v{n}" if cnt == 1 else f"v[{n}:{n+cnt-1}]"
    DPPM = "row_mask:0xf bank_mask:0xf"
    def row_allreduce(op, regs, nop_first=True):
        steps = ["quad_perm:[1,0,3,2]", "quad_perm:[2,3,0,1]", "row_half_mirror", "row_mirror"]
        need = max(0, 2 - (len(regs) - 1))
        if nop_first:
            a("s_nop 1")
        for si, st in enumerate(steps):
            for r in regs:
                a(f"{op}_dpp v{r}, v{r}, v{r} {st} {DPPM}")
            if need and si < 3:
                a(f"s_nop {need-1}")
    def wave_sum_to_sgpr(r, sdst):
        row_allreduce("v_add_f32", [r])
        a("s_nop 1")
        a(f"v_add_f32_dpp v{r}, v{r}, v{r} row_bcast:15 row_mask:0xa bank_mask:0xf")
        a("s_nop 1")
        a(f"v_add_f32_dpp v{r}, v{r}, v{r} row_bcast:31 row_mask:0xc bank_mask:0xf")
        a("s_nop 1")
        a(f"v_readlane_b32 s{sdst}, v{r}, 63")
    def rnd_bf16(dst, src):
        a(f"v_cvt_pk_bf16_f32 v{dst}, v{src}, v{src}")
        a(f"v_and_b32 v{dst}, s{sMask}, v{dst}")
    def spin_timeout(lbl_retry):
        d = a.u("L_to")
        a(f"s_cmp_eq_u32 s{sSpin}, 0")
        a(f"s_cbranch_scc1 {d}")
        a(f"s_sub_u32 s{sSpin}, s{sSpin}, 1")
        a(f"s_branch {lbl_retry}")
        a.label(d)
    def lds_arrive(k, vaddr, vone):
        a("s_mov_b64 exec, 1")
        a(f"ds_add_u32 v{vaddr}, v{vone} offset:{4*k}")
        a("s_mov_b64 exec, -1")
    def lds_wait(k, target, vaddr, vtmp, stmp, sleep=1):
        l = a.u("L_lw")
        ok = a.u("L_lwok")
        a.label(l)
        a(f"ds_read_b32 v{vtmp}, v{vaddr} offset:{4*k}")
        a("s_waitcnt lgkmcnt(0)")
        a(f"v_readfirstlane_b32 s{stmp}, v{vtmp}")
        a("s_nop 1")
        a(f"s_cmp_ge_u32 s{stmp}, {target}")
        a(f"s_cbranch_scc1 {ok}")
        if sleep:
            a(f"s_sleep {sleep}")
        spin_timeout(l)
        a.label(ok)
    def srd(base, sptr, nrec):
        a(f"s_mov_b32 s{base}, s{sptr}")
        a(f"s_mov_b32 s{base+1}, s{sptr+1}")
        a(f"s_mov_b32 s{base+2}, {nrec}")
        a(f"s_mov_b32 s{base+3}, 0x20000")

    vLane = 1
    a("s_cmp_ge_u32 s2, 256")
    a("s_cbranch_scc1 L_end")
    a("s_load_dwordx16 s[16:31], s[0:1], 0")
    a("s_load_dwordx8 s[32:39], s[0:1], 64")
    a("s_load_dwordx2 s[40:41], s[0:1], 96")
    stamp(0)
    if cpf:
        a("s_getpc_b64 s[4:5]")
        a.label("L_pcref")
        a("v_lshlrev_b32 v2, 6, v0")
        a("v_min_u32 v2, L_end-L_pcref, v2")
        a("global_load_dword v63, v2, s[4:5]")
    a("v_lshrrev_b32 v2, 6, v0")
    a(f"v_and_b32 v{vLane}, 63, v0")
    a(f"v_readfirstlane_b32 s{sWave}, v2")
    a(f"s_lshr_b32 s{sH}, s2, 3")
    a(f"s_and_b32 s{sG}, s2, 7")
    a(f"s_mov_b32 s{sMask}, 0xffff0000")
    a(f"s_mov_b32 s{sC}, 0x{C_SCALE:08x}")
    a(f"s_mov_b32 s{sSpin}, {spin_cap}")
    a(f"v_lshlrev_b32 v3, 2, v{vLane}")
    a("v_mov_b32 v4, 0")
    a(f"s_cmp_eq_u32 s{sWave}, 4")
    a("s_cbranch_scc0 L_nosyinit")
    a(f"ds_write_b32 v3, v4 offset:{L_PROG}")
    a.label("L_nosyinit")
    a("s_waitcnt lgkmcnt(0)")
    a("s_barrier")
    sstamp(1)
    a(f"s_cmp_lt_u32 s{sWave}, 4")
    a("s_cbranch_scc1 L_swave")

    vL16, vL4, vXo, vXo2, vSy, vOne = 2, 3, 4, 5, 6, 7
    vXr = 8
    vE = 16
    vW = 32
    vXN = 64
    vAcc = 144
    vU = 152
    vSent = 168
    vWO = 172
    vWO2 = 188
    vBo = 204
    vL2 = 205
    vW2 = 208
    if hprio:
        a(f"s_setprio {hprio}")
    a(f"s_sub_u32 s{sHW}, s{sWave}, 4")
    a(f"v_lshlrev_b32 v{vL16}, 4, v{vLane}")
    a(f"s_mul_i32 s{sT0}, s{sHW}, 1280")
    a(f"v_add_u32 v{vXo}, s{sT0}, v{vL16}")
    a(f"v_add_u32 v{vXo2}, s{sT0}, v{vL4}")
    a(f"global_load_dwordx4 {V(vXr,4)}, v{vXo}, {P2(sX)}")
    a(f"global_load_dword v{vXr+4}, v{vXo2}, {P2(sX)} offset:1024")
    a(f"s_mul_i32 s{sT1}, s{sG}, 80")
    a(f"s_mul_i32 s{sT2}, s{sHW}, 20")
    a(f"s_add_u32 s{sStatic}, s{sT1}, s{sT2}")
    a(f"s_lshl_b32 s{sOff}, s{sStatic}, 13")
    a(f"s_lshl_b32 s{sT2}, s{sH}, 8")
    a(f"s_add_u32 s{sOff}, s{sOff}, s{sT2}")
    srd(SRD_A, sWQ, 640 * 8192)
    for i in range(20):
        a(f"buffer_load_dword v{vW+i}, v{vL4}, {P4(SRD_A)}, s{sOff} offen {pol}")
        if i < 19:
            a(f"s_add_u32 s{sOff}, s{sOff}, 8192")
    sstamp(2)
    a(f"v_lshlrev_b32 v{vU}, 3, v{vLane}")
    a(f"s_lshl_b32 s{sIdx}, s2, 13")
    a(f"s_add_u32 s{sIdx}, s{sIdx}, {WS_OB}")
    a(f"s_lshl_b32 s{sHeadW}, s{sH}, 16")
    a(f"s_add_u32 s{sHeadW}, s{sHeadW}, {WS_OB}")
    a(f"s_lshl_b32 s{sT2}, s{sHW}, 9")
    a(f"s_add_u32 s{sT2}, s{sT2}, s{sIdx}")
    a(f"v_add_u32 v{vU+2}, s{sT2}, v{vU}")
    a(f"v_mov_b32 v{vSy}, {L_SYNC}")
    a(f"v_mov_b32 v{vOne}, 1")
    a("s_waitcnt vmcnt(20)")
    sstamp(3)
    for j in range(5):
        a(f"v_lshlrev_b32 v{vE+2*j}, 16, v{vXr+j}")
        a(f"v_and_b32 v{vE+2*j+1}, s{sMask}, v{vXr+j}")
    vs = vU + 12
    a(f"v_add_f32 v{vs}, v{vE}, v{vE+1}")
    for j in range(2, 10):
        a(f"v_add_f32 v{vs}, v{vs}, v{vE+j}")
    wave_sum_to_sgpr(vs, sT0)
    a("s_nop 1")
    vMean = vU + 13
    vt = vU + 10
    a(f"v_mov_b32 v{vMean}, s{sT0}")
    a(f"v_mul_f32 v{vMean}, 0x{INV640:08x}, v{vMean}")
    a(f"v_sub_f32 v{vt}, v{vE}, v{vMean}")
    a(f"v_mul_f32 v{vs}, v{vt}, v{vt}")
    for j in range(1, 10):
        a(f"v_sub_f32 v{vt}, v{vE+j}, v{vMean}")
        a(f"v_fmac_f32 v{vs}, v{vt}, v{vt}")
    wave_sum_to_sgpr(vs, sT0)
    a("s_nop 1")
    vR = vU + 14
    a(f"v_mov_b32 v{vR}, s{sT0}")
    a(f"v_mul_f32 v{vR}, 0x{INV640:08x}, v{vR}")
    rnd_bf16(vR, vR)
    a(f"v_add_f32 v{vR}, 0x{EPS:08x}, v{vR}")
    rnd_bf16(vR, vR)
    a(f"v_sqrt_f32 v{vR}, v{vR}")
    a("s_nop 0")
    rnd_bf16(vR, vR)
    a(f"v_rcp_f32 v{vR}, v{vR}")
    rnd_bf16(vMean, vMean)
    for j in range(10):
        a(f"v_sub_f32 v{vE+j}, v{vE+j}, v{vMean}")
    for j in range(0, 10, 2):
        a(f"v_cvt_pk_bf16_f32 v{vt}, v{vE+j}, v{vE+j+1}")
        a(f"v_lshlrev_b32 v{vE+j}, 16, v{vt}")
        a(f"v_and_b32 v{vE+j+1}, s{sMask}, v{vt}")
    for j in range(10):
        a(f"v_mul_f32 v{vE+j}, v{vE+j}, v{vR}")
    for j in range(0, 10, 2):
        a(f"v_cvt_pk_bf16_f32 v{vt}, v{vE+j}, v{vE+j+1}")
        a(f"v_lshlrev_b32 v{vE+j}, 16, v{vt}")
        a(f"v_and_b32 v{vE+j+1}, s{sMask}, v{vt}")
    a(f"s_mul_i32 s{sT0}, s{sHW}, 2560")
    a(f"v_lshlrev_b32 v{vt}, 5, v{vLane}")
    a(f"v_add_u32 v{vt}, s{sT0}, v{vt}")
    a(f"v_add_u32 v{vt+1}, s{sT0}, v{vU}")
    a(f"ds_write_b128 v{vt}, {V(vE,4)} offset:{L_XN}")
    a(f"ds_write_b128 v{vt}, {V(vE+4,4)} offset:{L_XN+16}")
    a(f"ds_write_b64 v{vt+1}, {V(vE+8,2)} offset:{L_XN+2048}")
    lds_arrive(1, vSy, vOne)
    sstamp(4)
    a(f"s_lshl_b32 s{sT1}, s{sStatic}, 2")
    a(f"v_mov_b32 v{vt}, s{sT1}")
    for i in range(8):
        a(f"v_mov_b32 v{vAcc+i}, 0")
    lds_wait(1, 4, vSy, vt + 1, sT0)
    stamp(2)
    for b in range(4):
        for k in range(5):
            a(f"ds_read_b128 {V(vXN+b*20+4*k,4)}, v{vt} offset:{L_XN+b*2560+16*k}")
    a("s_waitcnt vmcnt(0) lgkmcnt(0)")
    sstamp(5)
    for i in range(20):
        t = vU + 10 + 2 * (i % 3)
        a(f"v_lshlrev_b32 v{t}, 16, v{vW+i}")
        a(f"v_and_b32 v{t+1}, s{sMask}, v{vW+i}")
        for b in range(4):
            x = vXN + b * 20 + i
            xb = x & ~1
            sel = "op_sel:[0,1,0] op_sel_hi:[1,1,1]" if (x & 1) else "op_sel_hi:[1,0,1]"
            a(f"v_pk_fma_f32 {V(vAcc+2*b,2)}, {V(t,2)}, {V(xb,2)}, {V(vAcc+2*b,2)} {sel}")
    assert (vU + 10) % 2 == 0
    a(f"s_lshl_b32 s{sT0}, s{sHW}, 11")
    a(f"v_add_u32 v{vU+1}, s{sT0}, v{vU}")
    for b in range(4):
        a(f"ds_write_b64 v{vU+1}, {V(vAcc+2*b,2)} offset:{L_QPART+b*512}")
    lds_arrive(2, vSy, vOne)
    a(f"s_lshl_b32 s{sT0}, s{sHW}, 9")
    a(f"v_add_u32 v{vU+1}, s{sT0}, v{vU}")
    lds_wait(2, 4, vSy, vU + 4, sT0)
    for w in range(4):
        a(f"ds_read_b64 {V(vAcc+2*w,2)}, v{vU+1} offset:{L_QPART+w*2048}")
    a("s_waitcnt lgkmcnt(0)")
    a(f"v_pk_add_f32 {V(vAcc,2)}, {V(vAcc,2)}, {V(vAcc+2,2)}")
    a(f"v_pk_add_f32 {V(vAcc+4,2)}, {V(vAcc+4,2)}, {V(vAcc+6,2)}")
    a(f"v_pk_add_f32 {V(vAcc,2)}, {V(vAcc,2)}, {V(vAcc+4,2)}")
    sstamp(6)
    lds_wait(0, 1, vSy, vU + 4, sT0)
    a(f"global_store_dwordx2 v{vU+2}, {V(vAcc,2)}, {P2(sWS)} sc1")
    stamp(3)
    sstamp(7)
    a(f"s_cmp_eq_u32 s{sHW}, 0")
    a("s_cbranch_scc0 L_h_b4")
    a(f"s_add_u32 s{sT0}, s{sIdx}, {OB_GO}")
    a(f"v_mov_b32 v{vU+4}, s{sT0}")
    if nopoll:
        a("s_branch L_qok")
    a.label("L_qpoll")
    a(f"global_load_dword v{vU+6}, v{vU+4}, {P2(sWS)} sc1")
    a("s_waitcnt vmcnt(0)")
    a(f"v_readfirstlane_b32 s{sT1}, v{vU+6}")
    a("s_nop 1")
    a(f"s_cmp_eq_u32 s{sT1}, 1")
    a("s_cbranch_scc1 L_qok")
    a(f"s_sleep {qpoll_sleep}")
    spin_timeout("L_qpoll")
    a.label("L_qok")
    lds_arrive(4, vSy, vOne)
    a.label("L_h_b4")
    a(f"s_lshl_b32 s{sT2}, s{sHW}, 9")
    a(f"s_add_u32 s{sT2}, s{sT2}, s{sHeadW}")
    vGa = 80
    for g_ in range(8):
        a(f"s_add_u32 s{sT3}, s{sT2}, {g_*8192}")
        a(f"v_add_u32 v{vGa+g_}, s{sT3}, v{vU}")
    lds_wait(4, 1, vSy, vU + 4, sT0)
    stamp(4)
    vG = vXN
    a.label("L_qg")
    for g_ in range(8):
        a(f"global_load_dwordx2 {V(vG+2*g_,2)}, v{vGa+g_}, {P2(sWS)} sc1")
    a("s_waitcnt vmcnt(0)")
    a(f"v_max3_u32 v{vU+4}, v{vG}, v{vG+1}, v{vG+2}")
    for k in range(3, 15, 2):
        a(f"v_max3_u32 v{vU+4}, v{vU+4}, v{vG+k}, v{vG+k+1}")
    a(f"v_max_u32 v{vU+4}, v{vU+4}, v{vG+15}")
    a(f"v_cmp_eq_u32 vcc, -1, v{vU+4}")
    a("s_nop 4")
    a("s_cbranch_vccz L_qgok")
    spin_timeout("L_qg")
    a.label("L_qgok")
    for g_ in range(1, 8):
        a(f"v_pk_add_f32 {V(vG,2)}, {V(vG,2)}, {V(vG+2*g_,2)}")
    a(f"v_cvt_pk_bf16_f32 v{vU+4}, v{vG}, v{vG+1}")
    a(f"s_lshl_b32 s{sT0}, s{sHW}, 8")
    a(f"v_add_u32 v{vU+5}, s{sT0}, v{vL4}")
    a(f"ds_write_b32 v{vU+5}, v{vU+4} offset:{L_QB}")
    lds_arrive(5, vSy, vOne)
    if hprio and hprio_off:
        a("s_setprio 0")
    stamp(5)
    if cut == 1:
        stamp(6); stamp(7)
        a("s_branch L_fin_stamp")
    a("s_branch L_h_post")

    a.label("L_swave")
    vOff, vOst, vMl, vQa, vProg = 2, 4, 5, 6, 7
    vQ = 8
    vO = 12
    vM, vL = 20, 21
    vAl, vMn = 22, 23
    vS = 24
    vT = 28
    vTmp, vTk = 36, 38
    RING = 64
    def buf(i): return RING + 32 * i
    def kslot(bb, i): return bb + 4 * i
    def vslot(bb, i): return bb + 16 + 4 * i
    def ldK(bb, soff):
        for i in range(KL):
            a(f"buffer_load_dwordx4 {V(kslot(bb,i),4)}, v{vOff}, {P4(SRD_K)}, s{soff} offen offset:{i*1024} {pol}")
    def ldV(bb, soff):
        for i in range(KL):
            a(f"buffer_load_dwordx4 {V(vslot(bb,i),4)}, v{vOff}, {P4(SRD_V)}, s{soff} offen offset:{i*1024} {pol}")
    if prio:
        a(f"s_setprio {prio}")
    vSn = 40
    vTkt = [48, 49, 50]
    vCo = 51
    SRD_C = SRD_A
    a(f"v_lshlrev_b32 v{vOff}, 4, v{vLane}")
    a(f"s_cmp_eq_u32 s{sWave}, 0")
    a("s_cbranch_scc0 L_s_nop0")
    a("s_setprio 3")
    for i in range(4):
        a(f"v_mov_b32 v{vSn+i}, -1")
    a(f"s_lshl_b32 s{sT0}, s2, 13")
    a(f"s_add_u32 s{sT0}, s{sT0}, {WS_OB}")
    a(f"v_add_u32 v{vSn+4}, s{sT0}, v{vOff}")
    a(f"v_add_u32 v{vSn+5}, 4096, v{vSn+4}")
    for k in range(OB_FILL):
        a(f"global_store_dwordx4 v{vSn+4+(k>>2)}, {V(vSn,4)}, {P2(sWS)} offset:{(k&3)*1024} sc1")
    a(f"s_lshl_b32 s{sT0}, s{sH}, 8")
    a(f"s_lshl_b32 s{sT1}, s{sG}, 3")
    a(f"s_add_u32 s{sT1}, s{sT1}, s{sT0}")
    a(f"s_add_u32 s{sT1}, s{sT1}, {WS_OPML}")
    a(f"v_lshlrev_b32 v{vSn+6}, 6, v{vLane}")
    a(f"v_add_u32 v{vSn+6}, s{sT1}, v{vSn+6}")
    a(f"v_mov_b32 v{vSn+7}, s{sT0}")
    a(f"v_mov_b32 v{vTmp}, 0")
    a("s_mov_b64 exec, 0xf")
    a(f"global_store_dwordx2 v{vSn+6}, {V(vSn,2)}, {P2(sWS)} sc1")
    a("s_mov_b64 exec, 1")
    a(f"s_cmp_eq_u32 s{sG}, 0")
    a("s_cbranch_scc0 L_noctr")
    a(f"global_store_dword v{vSn+7}, v{vTmp}, {P2(sWS)} offset:{WS_CTR} sc1")
    a.label("L_noctr")
    a(f"s_lshr_b32 s{sT1}, s{sH}, 4")
    a(f"s_lshl_b32 s{sT1}, s{sT1}, 5")
    a(f"s_and_b32 s{sT2}, s{sH}, 15")
    a(f"s_add_u32 s{sT1}, s{sT1}, s{sT2}")
    a(f"s_lshl_b32 s{sT1}, s{sT1}, 2")
    a(f"v_mov_b32 v{vSn+6}, s{sT1}")
    a(f"v_mov_b32 v{vTmp}, 1")
    a(f"v_mov_b32 v{vTk}, {L_SYNC}")
    a("s_waitcnt vmcnt(0)")
    sstamp(3)
    a(f"global_atomic_add v{vSn+7}, v{vSn+6}, v{vTmp}, {P2(sDBG)} sc0")
    a(f"ds_write_b32 v{vTk}, v{vTmp}")
    a("s_waitcnt vmcnt(0)")
    a(f"v_readfirstlane_b32 s{sT0}, v{vSn+7}")
    a("s_mov_b64 exec, -1")
    a("s_nop 0")
    a(f"s_cmp_eq_u32 s{sT0}, 7")
    a("s_cbranch_scc0 L_s_nogo")
    a(f"s_lshl_b32 s{sT1}, s{sH}, 16")
    a(f"s_add_u32 s{sT1}, s{sT1}, {WS_OB+OB_GO}")
    a(f"v_lshlrev_b32 v{vSn+4}, 13, v{vLane}")
    a(f"v_add_u32 v{vSn+4}, s{sT1}, v{vSn+4}")
    a(f"v_mov_b32 v{vTmp}, 1")
    a("s_mov_b64 exec, 0xff")
    a(f"global_store_dword v{vSn+4}, v{vTmp}, {P2(sWS)} sc1")
    a("s_mov_b64 exec, -1")
    a.label("L_s_nogo")
    sstamp(4)
    a("s_setprio 0")
    a.label("L_s_nop0")
    a(f"s_lshl_b32 s{sHeadW}, s{sH}, 21")
    a(f"s_lshr_b32 s{sCur}, s{sG}, 1")
    a(f"s_lshl_b32 s{sT0}, s{sCur}, 26")
    a(f"s_and_b32 s{sT1}, s{sG}, 1")
    a(f"s_lshl_b32 s{sT1}, s{sT1}, 20")
    a(f"s_add_u32 s{sStatic}, s{sHeadW}, s{sT0}")
    a(f"s_add_u32 s{sStatic}, s{sStatic}, s{sT1}")
    a(f"s_lshl_b32 s{sT0}, s{sWave}, 12")
    a(f"s_add_u32 s{sStatic}, s{sStatic}, s{sT0}")
    a(f"s_mov_b32 s{sOff}, s{sStatic}")
    if stamps and sprof == 3:
        a("v_mov_b32 v52, 0")
        a("v_writelane_b32 v52, s84, 0")
    srd(SRD_K, sK, 0x10000000)
    srd(SRD_V, sV, 0x10000000)
    def s_lds_init():
        a(f"s_mul_i32 s{sT0}, s{sWave}, {L_LPW}")
        a(f"v_lshlrev_b32 v{vOst}, 5, v{vLane}")
        a(f"v_add_u32 v{vOst}, s{sT0}, v{vOst}")
        a(f"v_add_u32 v{vOst}, {L_OST}, v{vOst}")
        a(f"v_lshrrev_b32 v{vMl}, 4, v{vLane}")
        a(f"s_lshl_b32 s{sT0}, s{sWave}, 2")
        a(f"v_add_u32 v{vMl}, s{sT0}, v{vMl}")
        a(f"v_lshlrev_b32 v{vMl}, 3, v{vMl}")
        a(f"v_add_u32 v{vMl}, {L_ML}, v{vMl}")
        a(f"v_and_b32 v{vQa}, 15, v{vLane}")
        a(f"v_lshlrev_b32 v{vQa}, 4, v{vQa}")
        a(f"v_add_u32 v{vQa}, {L_QB}, v{vQa}")
        for i in range(8):
            a(f"v_mov_b32 v{vO+i}, 0")
        a(f"v_mov_b32 v{vM}, 0x{NEG_MAX:08x}")
        a(f"v_mov_b32 v{vL}, 0")
        for b in range(4):
            a(f"ds_write_b64 v{vMl}, {V(vM,2)} offset:{b*128}")
        if NL == 0:
            ost_init()
    def ost_init():
        for i in range(4):
            a(f"v_mov_b32 v{vT+i}, 0")
        for b in range(4):
            a(f"ds_write_b128 v{vOst}, {V(vT,4)} offset:{b*2048}")
            a(f"ds_write_b128 v{vOst}, {V(vT,4)} offset:{b*2048+16}")
    a(f"v_mov_b32 v{vTk}, {L_SYNC}")
    srd(SRD_C, sWS, 0x2000)
    a(f"s_lshl_b32 s{sT0}, s{sH}, 8")
    a(f"v_mov_b32 v{vCo}, s{sT0}")
    nld = 0
    th_ = min(th, 48)
    seq = [("r", i) for i in range(NX)] + [("l", j) for j in range(NL)] + [("r", NX + k) for k in range(NB)]
    a(f"s_mul_i32 s{sT4}, s{sWave}, {L_LPW}")
    a(f"s_add_u32 s{sT4}, s{sT4}, {L_OST}")
    for kind, bi in seq:
        for half, (srd_, slotf) in enumerate(((SRD_K, kslot), (SRD_V, vslot))):
            if kind == "l":
                a(f"s_add_u32 m0, s{sT4}, {bi*8192 + half*4096}")
            for i in range(KL):
                if nld >= th_:
                    a(f"s_waitcnt vmcnt({th_-1})")
                elif kind == "l" and i == 0:
                    a("s_nop 0")
                if kind == "r":
                    a(f"buffer_load_dwordx4 {V(slotf(buf(bi), i),4)}, v{vOff}, {P4(srd_)}, s{sOff} offen offset:{i*1024} {pol}")
                else:
                    a(f"buffer_load_dwordx4 v{vOff}, {P4(srd_)}, s{sOff} offen offset:{i*1024} {pol} lds")
                nld += 1
                if nld == th_:
                    sstamp(2)
        a(f"s_add_u32 s{sOff}, s{sOff}, {CH}")
    stamp(1)
    sstamp(5)
    s_lds_init()
    if not noq:
        lds_wait(5, 4, vTk, vTmp, sT0, sleep=1)
    stamp(2)
    sstamp(6)
    a(f"s_lshl_b32 s{sT0}, s{sCur}, 8")
    a(f"v_add_u32 v{vTmp}, s{sT0}, v{vQa}")
    a(f"ds_read_b128 {V(vQ,4)}, v{vTmp}")
    a(f"s_mov_b32 s{sIdx}, {NPRE}")
    a(f"s_mov_b32 s{sN}, {NXT}")
    a(f"s_mov_b32 s{sNT}, {NCH if not dyn else 0x7fffffff}")
    for k in range(NB):
        a(f"s_mov_b32 s{sBq[k]}, s{sCur}")
    a(f"s_mov_b32 s{sXc}, 0")
    a("s_waitcnt lgkmcnt(0)")

    def qk(bb):
        if nocomp & 1:
            for i in range(KL):
                a(f"v_xor_b32 v{vS+i}, v{kslot(bb,i)}, v{kslot(bb,i)+3}")
            return
        for j in range(4):
            for i in range(KL):
                k = kslot(bb, i) + j
                if j == 0:
                    a(f"v_dot2_f32_bf16 v{vS+i}, v{k}, v{vQ+j}, 0")
                else:
                    a(f"v_dot2_f32_bf16 v{vS+i}, v{k}, v{vQ+j}, v{vS+i}")
    def softmax():
        if nocomp & 2:
            return
        row_allreduce("v_add_f32", [vS, vS+1, vS+2, vS+3], nop_first=False)
        a(f"v_max3_f32 v{vMn}, v{vS}, v{vS+1}, v{vS+2}")
        a(f"v_max_f32 v{vMn}, v{vMn}, v{vS+3}")
        a(f"v_mul_f32 v{vMn}, s{sC}, v{vMn}")
        a(f"v_max_f32 v{vMn}, v{vMn}, v{vM}")
        a(f"v_sub_f32 v{vAl}, v{vM}, v{vMn}")
        for i in range(4):
            a(f"v_fma_f32 v{vS+i}, v{vS+i}, s{sC}, -v{vMn}")
        a(f"v_exp_f32 v{vAl}, v{vAl}")
        for i in range(4):
            a(f"v_exp_f32 v{vS+i}, v{vS+i}")
        a(f"v_mov_b32 v{vM}, v{vMn}")
        a(f"v_fma_f32 v{vL}, v{vL}, v{vAl}, v{vS}")
        a(f"v_add_f32 v{vT}, v{vS+1}, v{vS+2}")
        a(f"v_add_f32 v{vL}, v{vL}, v{vS+3}")
        a(f"v_add_f32 v{vL}, v{vL}, v{vT}")
        for j in range(4):
            a(f"v_pk_mul_f32 {V(vO+2*j,2)}, {V(vO+2*j,2)}, {V(vAl,2)} op_sel_hi:[1,0]")
    def pv(bb):
        if nocomp & 4:
            for i in range(KL):
                a(f"v_xor_b32 v{vO+i}, v{vslot(bb,i)}, v{vslot(bb,i)+3}")
            return
        for i in range(KL):
            p = vS + i
            pb = p & ~1
            sel = "op_sel:[0,1,0] op_sel_hi:[1,1,1]" if (p & 1) else "op_sel_hi:[1,0,1]"
            for j in range(4):
                v = vslot(bb, i) + j
                t = vT + 2 * j
                a(f"v_lshlrev_b32 v{t}, 16, v{v}")
                a(f"v_and_b32 v{t+1}, s{sMask}, v{v}")
            for j in range(4):
                t = vT + 2 * j
                a(f"v_pk_fma_f32 {V(vO+2*j,2)}, {V(t,2)}, {V(pb,2)}, {V(vO+2*j,2)} {sel}")
    WAITN = (2 * NB - 1) * KL
    WAITV = (2 * NB - 1) * KL
    def body(bi, k, tag):
        bb = buf(bi)
        sBr = sBq[k]
        if dyn:
            a(f"s_cmp_eq_u32 s{sBr}, s{sCur}")
            a(f"s_cbranch_scc1 L_nosw_{tag}")
            a(f"s_mov_b32 s{sBn}, s{sBr}")
            a(f"s_call_b64 {P2(sRet)}, L_switch")
            a.label(f"L_nosw_{tag}")
        a(f"s_waitcnt vmcnt({WAITN})")
        qk(bb)
        a(f"s_cmp_lt_u32 s{sIdx}, {S}")
        a(f"s_cbranch_scc0 L_dy_{tag}")
        a(f"s_mul_i32 s{sOff}, s{sIdx}, {CH}")
        a(f"s_add_u32 s{sOff}, s{sOff}, s{sStatic}")
        a(f"s_mov_b32 s{sBn}, s{sBr}")
        a.label(f"L_go_{tag}")
        if dyn:
            a(f"s_cmp_lt_u32 s{sIdx}, {S-NB}")
            a(f"s_cbranch_scc1 L_notk_{tag}")
            a(f"s_cmp_lg_u32 s{sNT}, 0x7fffffff")
            a(f"s_cbranch_scc1 L_notk_{tag}")
            a(f"v_mov_b32 v{vTkt[k]}, 1")
            a("s_mov_b64 exec, 1")
            a(f"buffer_atomic_add v{vTkt[k]}, v{vCo}, {P4(SRD_C)}, 0 offen sc0")
            a("s_mov_b64 exec, -1")
            a.label(f"L_notk_{tag}")
        a(f"s_add_u32 s{sIdx}, s{sIdx}, 1")
        ldK(bb, sOff)
        softmax()
        a(f"s_waitcnt vmcnt({WAITV})")
        pv(bb)
        ldV(bb, sOff)
        a(f"s_mov_b32 s{sBr}, s{sBn}")
        a(f"s_add_u32 s{sN}, s{sN}, 1")
        if stamps and sprof == 3:
            a(f"s_and_b32 s{sT0}, s{sN}, 3")
            a(f"s_cbranch_scc1 L_nops_{tag}")
            a(f"s_memrealtime s[84:85]")
            a(f"s_lshr_b32 m0, s{sN}, 2")
            a("s_waitcnt lgkmcnt(0)")
            a(f"v_writelane_b32 v52, s84, m0")
            a.label(f"L_nops_{tag}")
        a(f"s_cmp_ge_u32 s{sN}, s{sNT}")
        a("s_cbranch_scc1 L_sfin")
    def body_dyn_part(tag, k):
        a.label(f"L_dy_{tag}")
        if dyn:
            a(f"s_cmp_ge_u32 s{sIdx}, s{sNT}")
            a(f"s_cbranch_scc1 L_ex_{tag}")
            a(f"v_readfirstlane_b32 s{sT1}, v{vTkt[k]}")
            a("s_nop 1")
            a(f"s_cmp_lt_u32 s{sT1}, {D}")
            a(f"s_cbranch_scc1 L_tk_{tag}")
            a(f"s_mov_b32 s{sNT}, s{sIdx}")
            a(f"s_branch L_ex_{tag}")
            a.label(f"L_tk_{tag}")
            a(f"s_lshr_b32 s{sT2}, s{sT1}, {logPW}")
            if rot == 1:
                a(f"s_add_u32 s{sT2}, s{sT2}, s{sH}")
            elif rot == 2:
                a(f"s_lshr_b32 s{sT0}, s{sH}, 2")
                a(f"s_add_u32 s{sT2}, s{sT2}, s{sT0}")
            elif rot == 3:
                a(f"s_lshr_b32 s{sT0}, s{sH}, 3")
                a(f"s_lshl_b32 s{sT0}, s{sT0}, 1")
                a(f"s_add_u32 s{sT2}, s{sT2}, s{sT0}")
            elif rot == 4:
                a(f"s_and_b32 s{sT0}, s{sH}, 1")
                a(f"s_xor_b32 s{sT2}, s{sT2}, s{sT0}")
            elif rot == 5:
                a(f"s_and_b32 s{sT0}, s{sH}, 3")
                a(f"s_lshl_b32 s{sT0}, s{sT0}, 1")
                a(f"s_add_u32 s{sT2}, s{sT2}, s{sT0}")
            elif rot == 6:
                a(f"s_lshr_b32 s{sT0}, s{sH}, 4")
                a(f"s_lshl_b32 s{sT0}, s{sT0}, 2")
                a(f"s_add_u32 s{sT2}, s{sT2}, s{sT0}")
            if rot:
                a(f"s_and_b32 s{sT2}, s{sT2}, 7")
            a(f"s_and_b32 s{sT3}, s{sT1}, {4*P-1}")
            a(f"s_lshl_b32 s{sT3}, s{sT3}, 12")
            a(f"s_add_u32 s{sT3}, s{sT3}, {S*CH}")
            a(f"s_lshr_b32 s{sBn}, s{sT2}, 1")
            a(f"s_lshl_b32 s{sT0}, s{sBn}, 26")
            a(f"s_and_b32 s{sT2}, s{sT2}, 1")
            a(f"s_lshl_b32 s{sT2}, s{sT2}, 20")
            a(f"s_add_u32 s{sOff}, s{sHeadW}, s{sT3}")
            a(f"s_add_u32 s{sOff}, s{sOff}, s{sT0}")
            a(f"s_add_u32 s{sOff}, s{sOff}, s{sT2}")
            a(f"s_branch L_go_{tag}")
        a.label(f"L_ex_{tag}")
        a(f"s_mov_b32 s{sOff}, 0x7ff00000")
        a(f"s_mov_b32 s{sBn}, s{sCur}")
        a(f"s_branch L_go_{tag}")
    def bodyX(bi):
        bb = buf(bi)
        qk(bb)
        a("s_nop 2")
        softmax()
        pv(bb)

    tags = ["A", "B", "C"][:NB]
    a.label("L_loop")
    for k, tg in enumerate(tags):
        body(NX + k, k, tg)
        a(f"s_cmp_lt_u32 s{sXc}, {NXT}")
        a(f"s_cbranch_scc1 L_x{tg}")
        a.label(f"L_x{tg}_ret")
    a("s_branch L_loop")
    for k, tg in enumerate(tags):
        a.label(f"L_x{tg}")
        a(f"s_add_u32 s{sXc}, s{sXc}, 1")
        a(f"s_call_b64 {P2(sRet)}, L_xbody")
        a(f"s_branch L_x{tg}_ret")
    for k, tg in enumerate(tags):
        body_dyn_part(tg, k)
    a.label("L_xbody")
    if NL:
        a(f"s_cmp_le_u32 s{sXc}, {NX}")
        a("s_cbranch_scc1 L_xreg")
        a(f"s_sub_u32 s{sT1}, s{sXc}, {NX+1}")
        a(f"s_mul_i32 s{sT0}, s{sWave}, {L_LPW}")
        a(f"s_lshl_b32 s{sT2}, s{sT1}, 13")
        a(f"s_add_u32 s{sT0}, s{sT0}, s{sT2}")
        a(f"s_add_u32 s{sT0}, s{sT0}, {L_OST}")
        a(f"v_add_u32 v{vTmp}, s{sT0}, v{vOff}")
        for j in range(NL):
            if j < NL - 1:
                a(f"s_cmp_eq_u32 s{sT1}, {j}")
                a(f"s_cbranch_scc0 L_xl{j}")
            for i in range(8):
                a(f"ds_read_b128 {V(buf(j)+4*i,4)}, v{vTmp} offset:{i*1024}")
            a("s_waitcnt lgkmcnt(0)")
            if j == NL - 1:
                ost_init()
            a(f"s_branch L_xb{j}")
            if j < NL - 1:
                a.label(f"L_xl{j}")
        a.label("L_xreg")
    for x in range(NX):
        if x < NX - 1:
            a(f"s_cmp_eq_u32 s{sXc}, {x+1}")
            a(f"s_cbranch_scc0 L_xn{x}")
        a.label(f"L_xb{x}")
        bodyX(x)
        a(f"s_setpc_b64 {P2(sRet)}")
        if x < NX - 1:
            a.label(f"L_xn{x}")
    def save_state():
        a(f"s_lshl_b32 s{sT0}, s{sCur}, 11")
        a(f"v_add_u32 v{vTmp}, s{sT0}, v{vOst}")
        a(f"ds_write_b128 v{vTmp}, {V(vO,4)}")
        a(f"ds_write_b128 v{vTmp}, {V(vO+4,4)} offset:16")
        a(f"s_lshl_b32 s{sT0}, s{sCur}, 7")
        a(f"v_add_u32 v{vTmp+1}, s{sT0}, v{vMl}")
        a(f"ds_write_b64 v{vTmp+1}, {V(vM,2)}")
    a.label("L_switch")
    save_state()
    a(f"s_mov_b32 s{sCur}, s{sBn}")
    a(f"s_lshl_b32 s{sT0}, s{sCur}, 11")
    a(f"v_add_u32 v{vTmp}, s{sT0}, v{vOst}")
    a(f"ds_read_b128 {V(vO,4)}, v{vTmp}")
    a(f"ds_read_b128 {V(vO+4,4)}, v{vTmp} offset:16")
    a(f"s_lshl_b32 s{sT0}, s{sCur}, 7")
    a(f"v_add_u32 v{vTmp+1}, s{sT0}, v{vMl}")
    a(f"ds_read_b64 {V(vM,2)}, v{vTmp+1}")
    a(f"s_lshl_b32 s{sT0}, s{sCur}, 8")
    a(f"v_add_u32 v{vTk}, s{sT0}, v{vQa}")
    a(f"ds_read_b128 {V(vQ,4)}, v{vTk}")
    a("s_waitcnt lgkmcnt(0)")
    a(f"s_setpc_b64 {P2(sRet)}")

    a.label("L_sfin")
    if stamps and sprof == 3:
        a(f"s_lshl_b32 s{sT0}, s2, 2")
        a(f"s_add_u32 s{sT0}, s{sT0}, s{sWave}")
        a(f"s_lshl_b32 s{sT0}, s{sT0}, 8")
        a(f"s_add_u32 s{sT0}, s{sT0}, {WS_STAMP+0x40000}")
        a(f"v_lshlrev_b32 v53, 2, v{vLane}")
        a(f"v_add_u32 v53, s{sT0}, v53")
        a(f"global_store_dword v53, v52, {P2(sWS)}")
    stamp(3)
    sstamp(7)
    if cut:
        stamp(6); stamp(7)
        a("s_branch L_fin_stamp")
    save_state()
    a("s_waitcnt lgkmcnt(0)")
    a("s_barrier")
    a("s_branch L_tail")

    a.label("L_h_post")
    if skippost:
        a("s_branch L_h_b6")
    vTo = 8
    vTd = 64
    a(f"v_mul_u32_u24 v{vTo}, 205, v{vLane}")
    a(f"v_lshrrev_b32 v{vTo}, 11, v{vTo}")
    a(f"v_mul_u32_u24 v{vTo+1}, 10, v{vTo}")
    a(f"v_sub_u32 v{vTo+1}, v{vLane}, v{vTo+1}")
    a(f"v_mul_u32_u24 v{vTo}, 1280, v{vTo}")
    a(f"v_lshlrev_b32 v{vTo+1}, 4, v{vTo+1}")
    a(f"v_add_u32 v{vTo}, v{vTo}, v{vTo+1}")
    srd(SRD_A, sWO, 4096 * 1280)
    a(f"s_lshl_b32 s{sT0}, s{sH}, 7")
    a(f"s_lshl_b32 s{sT1}, s{sHW}, 5")
    a(f"s_add_u32 s{sT0}, s{sT0}, s{sT1}")
    a(f"s_mul_i32 s{sT0}, s{sT0}, 1280")
    a(f"s_mul_i32 s{sT1}, s{sG}, 160")
    a(f"s_add_u32 s{sT0}, s{sT0}, s{sT1}")
    def set_exec(n):
        if n >= 64:
            a("s_mov_b64 exec, -1")
        elif n > 32:
            a("s_mov_b32 exec_lo, -1")
            a(f"s_mov_b32 exec_hi, 0x{(1 << (n-32)) - 1:x}")
        else:
            a(f"s_mov_b32 exec_lo, 0x{((1 << n) - 1) & 0xffffffff:x}")
            a("s_mov_b32 exec_hi, 0")
    def stage_tile(srd_, sbase, nrows, ldsbase_v, ldsoff):
        n = (nrows + 5) // 6
        set_exec(60)
        for i in range(n):
            rows = min(6, nrows - 6 * i)
            if rows < 6:
                set_exec(rows * 10)
            a(f"buffer_load_dwordx4 {V(vTd+4*i,4)}, v{vTo}, {P4(srd_)}, s{sbase} offen {pol}")
            if i < n - 1:
                a(f"s_add_u32 s{sbase}, s{sbase}, {6*1280}")
        set_exec(60)
        a("s_waitcnt vmcnt(0)")
        for i in range(n):
            rows = min(6, nrows - 6 * i)
            if rows < 6:
                set_exec(rows * 10)
            a(f"ds_write_b128 v{ldsbase_v}, {V(vTd+4*i,4)} offset:{ldsoff + i*960}")
        a("s_mov_b64 exec, -1")
    a(f"s_mul_i32 s{sT1}, s{sHW}, {32*160}")
    a(f"v_add_u32 v{vTo+1}, s{sT1}, v{vL16}")
    stage_tile(SRD_A, sT0, 32, vTo + 1, L_WT)
    lds_arrive(6, vSy, vOne)
    a(f"v_lshrrev_b32 v{vU}, 4, v{vLane}")
    a(f"v_mul_u32_u24 v{vBo}, {8*160}, v{vU}")
    a(f"v_and_b32 v{vU+1}, 15, v{vLane}")
    a(f"v_lshlrev_b32 v{vU+1}, 1, v{vU+1}")
    a(f"v_add_u32 v{vBo}, v{vBo}, v{vU+1}")
    def build_btile(dst, vaddr, ldsoff, nsteps, tmp):
        for s in range(nsteps):
            for j in range(8):
                a(f"ds_read_u16 v{tmp+8*s+j}, v{vaddr} offset:{ldsoff + (32*s+j)*160}")
            a("s_waitcnt lgkmcnt(0)")
            for j2 in range(4):
                a(f"v_lshl_or_b32 v{dst+4*s+j2}, v{tmp+8*s+2*j2+1}, 16, v{tmp+8*s+2*j2}")
    lds_wait(6, 4, vSy, vU + 4, sT0, sleep=1)
    a(f"s_lshl_b32 s{sT1}, s{sHW}, 5")
    a(f"v_add_u32 v{vU+2}, s{sT1}, v{vBo}")
    build_btile(vWO, vU + 2, L_WT, 4, 64)
    a(f"s_cmp_eq_u32 s{sHW}, 1")
    a("s_cbranch_scc0 L_h_no2")
    build_btile(vWO2, vBo, L_WT + 4 * 32, 4, 64)
    a.label("L_h_no2")
    a(f"s_cmp_eq_u32 s{sHW}, 0")
    a("s_cbranch_scc1 L_h0")
    a(f"s_cmp_eq_u32 s{sHW}, 3")
    a("s_cbranch_scc1 L_h3")
    a("s_branch L_h_b6")

    a.label("L_h0")
    a(f"s_cmp_lt_u32 s{sH}, 4")
    a("s_cbranch_scc0 L_h0_tk")
    a.label("L_fflag")
    a(f"global_load_dword v{vU+1}, v{vL4}, {P2(sDBG)} sc1")
    a(f"v_and_b32 v{vU+2}, 16, v{vLane}")
    a(f"v_lshrrev_b32 v{vU+2}, 1, v{vU+2}")
    a("s_waitcnt vmcnt(0)")
    a(f"v_add_u32 v{vU+1}, v{vU+1}, v{vU+2}")
    a(f"v_cmp_gt_u32 vcc, 8, v{vU+1}")
    a("s_nop 4")
    a("s_cbranch_vccz L_h0_tk")
    a("s_sleep 8")
    spin_timeout("L_fflag")
    a.label("L_h0_tk")
    a("s_branch L_h_b6")

    a.label("L_h3")
    if skipffn:
        a("s_branch L_h_b6")
    vW1 = 32
    vXq = 112
    vHA = 128
    vHG = 32
    vYB = 112
    vHAo = 132
    a(f"v_lshlrev_b32 v{vL2}, 1, v{vLane}")
    srd(SRD_B, sW1, 640 * 3456)
    a(f"s_mul_i32 s{sOff}, s{sG}, {80*3456}")
    a(f"s_lshl_b32 s{sT0}, s{sH}, 7")
    a(f"s_add_u32 s{sOff}, s{sOff}, s{sT0}")
    a(f"s_cmp_lt_u32 s{sH}, 27")
    a(f"s_cselect_b32 s{sOff}, s{sOff}, 0x7f000000")
    for q4 in range(80 // w1b):
        for i in range(w1b):
            a(f"buffer_load_ushort v{vW1+w1b*q4+i}, v{vL2}, {P4(SRD_B)}, s{sOff} offen {pol}")
            a(f"s_add_u32 s{sOff}, s{sOff}, 3456")
        a("s_waitcnt vmcnt(0)")
    for b in range(4):
        a(f"v_mov_b32 v{vHA+b}, 0")
    a(f"s_mul_i32 s{sT0}, s{sG}, 320")
    a(f"v_mov_b32 v{vU}, s{sT0}")
    for q4 in range(20):
        for b in range(4):
            a(f"ds_read_b128 {V(vXq+4*b,4)}, v{vU} offset:{L_XN+b*2560+16*q4}")
        for r in range(4):
            a(f"v_lshlrev_b32 v{vW1+4*q4+r}, 16, v{vW1+4*q4+r}")
        a("s_waitcnt lgkmcnt(0)")
        for r in range(4):
            for b in range(4):
                a(f"v_fmac_f32 v{vHA+b}, v{vXq+4*b+r}, v{vW1+4*q4+r}")
    a(f"s_add_u32 s{sT0}, s{sIdx}, {OB_HP}")
    a(f"v_add_u32 v{vU+1}, s{sT0}, v{vL4}")
    for b in range(4):
        a(f"global_store_dword v{vU+1}, v{vHA+b}, {P2(sWS)} offset:{b*256} sc1")
    srd(SRD_B, sW2, 1728 * 1280)
    a(f"s_mul_i32 s{sT0}, s{sH}, {64*1280}")
    a(f"s_mul_i32 s{sT1}, s{sG}, 160")
    a(f"s_add_u32 s{sT0}, s{sT0}, s{sT1}")
    stage_tile(SRD_B, sT0, 64, vL16, L_W2T)
    srd(SRD_B, sB1, 1728 * 2)
    a(f"s_lshl_b32 s{sT0}, s{sH}, 7")
    a(f"buffer_load_ushort v{vU+3}, v{vL2}, {P4(SRD_B)}, s{sT0} offen")
    vHa = 112
    for g_ in range(8):
        a(f"s_add_u32 s{sT0}, s{sHeadW}, {OB_HP+g_*8192}")
        a(f"v_add_u32 v{vHa+g_}, s{sT0}, v{vL4}")
    a(f"v_and_b32 v{vU+5}, 7, v{vLane}")
    a(f"v_lshlrev_b32 v{vU+5}, 13, v{vU+5}")
    a(f"s_add_u32 s{sT0}, s{sHeadW}, {OB_HP+3*256}")
    a(f"v_add_u32 v{vU+5}, s{sT0}, v{vU+5}")
    a("s_mov_b64 exec, 0xff")
    a.label("L_hlp")
    a(f"global_load_dword v{vU+6}, v{vU+5}, {P2(sWS)} sc1")
    a("s_waitcnt vmcnt(0)")
    a(f"v_cmp_eq_u32 vcc, -1, v{vU+6}")
    a("s_nop 4")
    a("s_cbranch_vccz L_hlpok")
    a("s_sleep 64")
    spin_timeout("L_hlp")
    a.label("L_hlpok")
    a("s_mov_b64 exec, -1")
    a.label("L_hg")
    for b in range(4):
        for g_ in range(8):
            a(f"global_load_dword v{vHG+8*b+g_}, v{vHa+g_}, {P2(sWS)} offset:{b*256} sc1")
    a("s_waitcnt vmcnt(0)")
    a(f"v_max3_u32 v{vU+4}, v{vHG}, v{vHG+1}, v{vHG+2}")
    for k in range(3, 31, 2):
        a(f"v_max3_u32 v{vU+4}, v{vU+4}, v{vHG+k}, v{vHG+k+1}")
    a(f"v_max_u32 v{vU+4}, v{vU+4}, v{vHG+31}")
    a(f"v_cmp_eq_u32 vcc, -1, v{vU+4}")
    a("s_nop 4")
    a("s_cbranch_vccz L_hgok")
    a("s_sleep 16")
    spin_timeout("L_hg")
    a.label("L_hgok")
    a(f"v_lshlrev_b32 v{vU+3}, 16, v{vU+3}")
    for b in range(4):
        r = vHG + 8 * b
        for g_ in range(1, 8):
            a(f"v_add_f32 v{r}, v{r}, v{r+g_}")
        rnd_bf16(r, r)
        a(f"v_add_f32 v{r}, v{r}, v{vU+3}")
        rnd_bf16(r, r)
        a(f"v_max_f32 v{r}, 0, v{r}")
        a(f"v_mul_f32 v{r}, v{r}, v{r}")
        a(f"v_cvt_pk_bf16_f32 v{r}, v{r}, v{r}")
        a(f"ds_write_b16 v{vL2}, v{r} offset:{L_HB+b*128}")
    for t in range(5):
        build_btile(vW2 + 8 * t, vBo, L_W2T + t * 32, 2, 64)
    a(f"v_and_b32 v{vU}, 3, v{vLane}")
    a(f"v_lshlrev_b32 v{vU}, 7, v{vU}")
    a(f"v_lshrrev_b32 v{vU+1}, 4, v{vLane}")
    a(f"v_lshlrev_b32 v{vU+1}, 4, v{vU+1}")
    a(f"v_add_u32 v{vU}, v{vU}, v{vU+1}")
    a(f"ds_read_b128 {V(vHAo,4)}, v{vU} offset:{L_HB}")
    a(f"ds_read_b128 {V(vHAo+4,4)}, v{vU} offset:{L_HB+64}")
    for i in range(20):
        a(f"v_mov_b32 v{vYB+i}, 0")
    a("s_waitcnt lgkmcnt(0)")
    for s in range(2):
        for t in range(5):
            a(f"v_mfma_f32_16x16x32_bf16 {V(vYB+4*t,4)}, {V(vHAo+4*s,4)}, {V(vW2+8*t+4*s,4)}, {V(vYB+4*t,4)}")
    a("s_nop 7")
    a("s_nop 1")
    a("s_mov_b64 exec, 0xffff")
    for t in range(5):
        for b in range(4):
            a(f"ds_write_b32 v{vL4}, v{vYB+4*t+b} offset:{L_YB+b*320+t*64}")
    a("s_mov_b64 exec, -1")

    a.label("L_h_b6")
    stamp(1)
    a("s_waitcnt vmcnt(0) lgkmcnt(0)")
    a("s_barrier")

    a.label("L_tail")
    stamp(6)
    tstamp(1)
    vD4, vA, vMl2, vC, vLs, vOo = 2, 3, 4, 6, 7, 8
    vOv = 12
    vGg = 12
    vMx = 28
    vZ = 30
    a(f"s_lshr_b32 s{sB}, s{sWave}, 1")
    a(f"s_and_b32 s{sT0}, s{sWave}, 1")
    a(f"s_lshl_b32 s{sT0}, s{sT0}, 6")
    a(f"v_add_u32 v{vD4}, s{sT0}, v{vLane}")
    a(f"v_lshlrev_b32 v{vD4}, 2, v{vD4}")
    a(f"s_lshl_b32 s{sT0}, s{sB}, 11")
    a(f"s_add_u32 s{sT0}, s{sT0}, {L_OST}")
    a(f"v_add_u32 v{vA}, s{sT0}, v{vD4}")
    a(f"v_and_b32 v{vZ}, 15, v{vLane}")
    a(f"v_lshlrev_b32 v{vZ}, 3, v{vZ}")
    a(f"s_lshl_b32 s{sT0}, s{sB}, 7")
    a(f"v_add_u32 v{vZ}, s{sT0}, v{vZ}")
    a(f"ds_read_b64 {V(vMl2,2)}, v{vZ} offset:{L_ML}")
    a(f"v_add_u32 v{vZ+1}, {2*L_LPW}, v{vA}")
    for i in range(16):
        w_ = i >> 2
        a(f"ds_read_b32 v{vOv+i}, v{vA if w_ < 2 else vZ+1} offset:{(w_&1)*L_LPW+(i&3)*512}")
    a("s_waitcnt lgkmcnt(0)")
    def merge_coef(dup):
        a(f"v_mov_b32 v{vMx}, v{vMl2}")
        row_allreduce("v_max_f32", [vMx])
        a(f"v_sub_f32 v{vC}, v{vMl2}, v{vMx}")
        a(f"v_exp_f32 v{vC}, v{vC}")
        a("s_nop 0")
        a(f"v_mul_f32 v{vLs}, v{vC}, v{vMl2+1}")
        row_allreduce("v_add_f32", [vLs])
        if dup:
            a(f"v_mul_f32 v{vLs}, 0.5, v{vLs}")
    def merge_o(n, regs):
        a(f"v_mov_b32 v{vOo}, 0")
        a(f"v_mov_b32 v{vOo+1}, 0")
        for i in range(n):
            a(f"v_fmac_f32_dpp v{vOo+(i&1)}, v{vC}, v{regs[i]} row_newbcast:{i} {DPPM}")
        a(f"v_add_f32 v{vOo}, v{vOo}, v{vOo+1}")
    merge_coef(False)
    merge_o(16, [vOv + i for i in range(16)])
    a(f"s_lshl_b32 s{sT0}, s{sB}, 9")
    a(f"s_lshl_b32 s{sT1}, s2, 13")
    a(f"s_add_u32 s{sT1}, s{sT1}, {WS_OB+OB_OP}")
    a(f"s_add_u32 s{sT1}, s{sT1}, s{sT0}")
    a(f"v_add_u32 v{vZ}, s{sT1}, v{vD4}")
    a(f"global_store_dword v{vZ}, v{vOo}, {P2(sWS)} sc1")
    a(f"s_lshl_b32 s{sT1}, s{sH}, 16")
    a(f"s_add_u32 s{sT1}, s{sT1}, {WS_OB+OB_OP}")
    a(f"s_add_u32 s{sT1}, s{sT1}, s{sT0}")
    vGa2 = 40
    for g_ in range(8):
        a(f"s_add_u32 s{sT2}, s{sT1}, {g_*8192}")
        a(f"v_add_u32 v{vGa2+g_}, s{sT2}, v{vD4}")
    a(f"s_lshl_b32 s{sT0}, s{sH}, 2")
    a(f"s_add_u32 s{sT0}, s{sT0}, s{sB}")
    a(f"s_lshl_b32 s{sT1}, s{sT0}, 6")
    a(f"s_add_u32 s{sT1}, s{sT1}, {WS_OPML}")
    a(f"s_lshl_b32 s{sT2}, s{sG}, 3")
    a(f"s_add_u32 s{sT2}, s{sT2}, s{sT1}")
    a(f"v_mov_b32 v{vZ+1}, s{sT2}")
    a(f"v_mov_b32 v{vZ+2}, v{vMx}")
    a(f"v_mov_b32 v{vZ+3}, v{vLs}")
    assert (vZ + 2) % 2 == 0
    a(f"s_and_b32 s{sT3}, s{sWave}, 1")
    a(f"s_cmp_eq_u32 s{sT3}, 0")
    a("s_cbranch_scc0 L_t_noml")
    a("s_mov_b64 exec, 1")
    a(f"global_store_dwordx2 v{vZ+1}, {V(vZ+2,2)}, {P2(sWS)} sc1")
    a("s_mov_b64 exec, -1")
    a.label("L_t_noml")
    tstamp(2)
    a(f"v_and_b32 v{vZ+1}, 7, v{vLane}")
    a(f"v_lshlrev_b32 v{vZ+4}, 13, v{vZ+1}")
    a(f"v_lshlrev_b32 v{vZ+1}, 3, v{vZ+1}")
    a(f"v_add_u32 v{vZ+1}, s{sT1}, v{vZ+1}")
    a(f"s_mov_b32 s{sSpin}, {spin_cap}")
    a(f"v_mov_b32 v{vZ+2}, {L_SYNC}")
    a(f"v_mov_b32 v{vZ+3}, 1")
    a("s_mov_b64 exec, 1")
    a(f"ds_add_rtn_u32 v{vZ+5}, v{vZ+2}, v{vZ+3} offset:28")
    a(f"s_lshl_b32 s{sT2}, s2, 13")
    a(f"s_add_u32 s{sT2}, s{sT2}, {WS_OB+OB_DB}")
    a(f"v_mov_b32 v{vZ+6}, s{sT2}")
    a("s_waitcnt lgkmcnt(0)")
    a(f"v_readfirstlane_b32 s{sT3}, v{vZ+5}")
    a("s_nop 1")
    a(f"s_cmp_eq_u32 s{sT3}, 7")
    a("s_cbranch_scc0 L_t_nodb")
    a(f"global_store_dword v{vZ+6}, v{vZ+3}, {P2(sWS)} sc1")
    a.label("L_t_nodb")
    a("s_mov_b64 exec, -1")
    a(f"s_cmp_eq_u32 s{sWave}, {dbwave}")
    a("s_cbranch_scc0 L_dbok")
    a(f"s_lshl_b32 s{sT2}, s{sH}, 16")
    a(f"s_add_u32 s{sT2}, s{sT2}, {WS_OB+OB_DB}")
    a(f"v_add_u32 v{vZ+4}, s{sT2}, v{vZ+4}")
    a("s_mov_b64 exec, 0xff")
    a.label("L_dbpoll")
    a(f"global_load_dword v{vZ+5}, v{vZ+4}, {P2(sWS)} sc1")
    a("s_waitcnt vmcnt(0)")
    a(f"v_cmp_eq_u32 vcc, 1, v{vZ+5}")
    a("s_nop 4")
    a(f"s_bcnt1_i32_b64 s{sT3}, vcc")
    a(f"s_cmp_ge_u32 s{sT3}, {dbneed}")
    a("s_cbranch_scc1 L_dbok2")
    if opoll_sleep:
        a(f"s_sleep {opoll_sleep}")
    spin_timeout("L_dbpoll")
    a.label("L_dbok2")
    a("s_mov_b64 exec, -1")
    a.label("L_dbok")
    a("s_barrier")
    a.label("L_opoll")
    tstamp(3)
    a(f"global_load_dwordx2 {V(vMl2,2)}, v{vZ+1}, {P2(sWS)} sc1")
    for g_ in range(8):
        a(f"global_load_dword v{vGg+g_}, v{vGa2+g_}, {P2(sWS)} sc1")
    a("s_waitcnt vmcnt(0)")
    a(f"v_max3_u32 v{vZ+2}, v{vGg}, v{vGg+1}, v{vGg+2}")
    a(f"v_max3_u32 v{vZ+3}, v{vGg+3}, v{vGg+4}, v{vGg+5}")
    a(f"v_max3_u32 v{vZ+2}, v{vZ+2}, v{vGg+6}, v{vGg+7}")
    a(f"v_max3_u32 v{vZ+3}, v{vZ+3}, v{vMl2}, v{vMl2+1}")
    a(f"v_max_u32 v{vZ+2}, v{vZ+2}, v{vZ+3}")
    a(f"v_cmp_eq_u32 vcc, -1, v{vZ+2}")
    a("s_nop 4")
    a("s_cbranch_vccz L_ook")
    spin_timeout("L_opoll")
    a.label("L_ook")
    stamp(7)
    tstamp(4)
    merge_coef(True)
    a(f"v_rcp_f32 v{vLs}, v{vLs}")
    merge_o(8, [vGg + i for i in range(8)])
    a(f"v_mul_f32 v{vOo}, v{vOo}, v{vLs}")
    a(f"v_cvt_pk_bf16_f32 v{vOo}, v{vOo}, v{vOo}")
    a(f"v_lshrrev_b32 v{vZ}, 1, v{vD4}")
    a(f"s_lshl_b32 s{sT0}, s{sB}, 8")
    a(f"v_add_u32 v{vZ}, s{sT0}, v{vZ}")
    a(f"ds_write_b16 v{vZ}, v{vOo} offset:{L_OA}")
    a("s_waitcnt lgkmcnt(0)")
    a("s_barrier")
    tstamp(5)
    a(f"s_cmp_lt_u32 s{sWave}, 4")
    a("s_cbranch_scc1 L_final_chk")
    vAo = 64
    vY = 80
    a(f"v_and_b32 v{vZ}, 3, v{vLane}")
    a(f"v_lshlrev_b32 v{vZ}, 8, v{vZ}")
    a(f"v_lshrrev_b32 v{vZ+1}, 4, v{vLane}")
    a(f"v_lshlrev_b32 v{vZ+1}, 4, v{vZ+1}")
    a(f"v_add_u32 v{vZ}, v{vZ}, v{vZ+1}")
    for s in range(4):
        a(f"ds_read_b128 {V(vAo+4*s,4)}, v{vZ} offset:{L_OA+64*s}")
    a(f"v_and_b32 v{vZ+1}, 15, v{vLane}")
    a(f"v_lshlrev_b32 v{vZ+1}, 2, v{vZ+1}")
    a(f"s_lshl_b32 s{sT0}, s{sHW}, 6")
    a(f"v_add_u32 v{vZ+2}, s{sT0}, v{vZ+1}")
    for b in range(4):
        a(f"ds_read_b32 v{vY+b}, v{vZ+2} offset:{L_YB+b*320}")
    for b in range(4):
        a(f"ds_read_b32 v{vY+4+b}, v{vZ+1} offset:{L_YB+b*320+256}")
    a(f"s_lshl_b32 s{sT1}, s2, 13")
    a(f"s_add_u32 s{sT1}, s{sT1}, {WS_OB+OB_YP}")
    a(f"v_add_u32 v{vZ+3}, s{sT1}, v{vZ+2}")
    a(f"v_add_u32 v{vZ+4}, s{sT1}, v{vZ+1}")
    a("s_waitcnt lgkmcnt(0)")
    for s in range(4):
        a(f"v_mfma_f32_16x16x32_bf16 {V(vY,4)}, {V(vAo+4*s,4)}, {V(vWO+4*s,4)}, {V(vY,4)}")
    a(f"s_cmp_eq_u32 s{sHW}, 1")
    a("s_cbranch_scc0 L_t_one")
    for s in range(4):
        a(f"v_mfma_f32_16x16x32_bf16 {V(vY+4,4)}, {V(vAo+4*s,4)}, {V(vWO2+4*s,4)}, {V(vY+4,4)}")
    a("s_nop 7")
    a("s_nop 1")
    a("s_mov_b64 exec, 0xffff")
    for b in range(4):
        a(f"global_store_dword v{vZ+4}, v{vY+4+b}, {P2(sWS)} offset:{b*320+256} sc1")
    a("s_mov_b64 exec, -1")
    a.label("L_t_one")
    a("s_nop 7")
    a("s_nop 1")
    a("s_mov_b64 exec, 0xffff")
    for b in range(4):
        a(f"global_store_dword v{vZ+3}, v{vY+b}, {P2(sWS)} offset:{b*320} sc1")
    a("s_mov_b64 exec, -1")
    tstamp(6)
    a(f"s_cmp_eq_u32 s{sWave}, 4")
    a("s_cbranch_scc0 L_fin_stamp")
    a.label("L_final_chk")
    a(f"s_cmp_lt_u32 s{sH}, 4")
    a("s_cbranch_scc0 L_fin_stamp")
    vFa, vFx, vF0 = 2, 4, 8
    a(f"v_lshrrev_b32 v{vZ}, 4, v{vLane}")
    a(f"v_lshlrev_b32 v{vZ}, 2, v{vZ}")
    a(f"s_lshl_b32 s{sT0}, s{sWave}, 4")
    a(f"v_add_u32 v{vZ}, s{sT0}, v{vZ}")
    a(f"v_and_b32 v{vZ+1}, 15, v{vLane}")
    a(f"v_lshlrev_b32 v{vFa}, 16, v{vZ+1}")
    a(f"v_lshlrev_b32 v{vZ+2}, 2, v{vZ}")
    a(f"v_add_u32 v{vFa}, v{vFa}, v{vZ+2}")
    a(f"s_lshl_b32 s{sT1}, s{sG}, 13")
    a(f"s_mul_i32 s{sT0}, s{sH}, 320")
    a(f"s_add_u32 s{sT1}, s{sT1}, s{sT0}")
    a(f"s_add_u32 s{sT1}, s{sT1}, {WS_OB+OB_YP}")
    a(f"v_add_u32 v{vFa}, s{sT1}, v{vFa}")
    a(f"v_add_u32 v{vFa+1}, {16*65536}, v{vFa}")
    a(f"s_mul_i32 s{sT2}, s{sG}, 80")
    a(f"v_add_u32 v{vZ}, s{sT2}, v{vZ}")
    a(f"v_lshlrev_b32 v{vZ}, 1, v{vZ}")
    a(f"s_mul_i32 s{sT3}, s{sH}, 1280")
    a(f"v_add_u32 v{vZ+3}, s{sT3}, v{vZ}")
    a(f"global_load_dwordx2 {V(vFx,2)}, v{vZ+3}, {P2(sX)}")
    a(f"global_load_dwordx2 {V(vFx+2,2)}, v{vZ}, {P2(sB2)}")
    a(f"s_mov_b32 s{sSpin}, {spin_cap}")
    a.label("L_ypoll")
    a(f"global_load_dwordx4 {V(vF0,4)}, v{vFa}, {P2(sWS)} sc1")
    a(f"global_load_dwordx4 {V(vF0+4,4)}, v{vFa+1}, {P2(sWS)} sc1")
    a("s_waitcnt vmcnt(0)")
    a(f"v_max3_u32 v{vZ+4}, v{vF0}, v{vF0+1}, v{vF0+2}")
    a(f"v_max3_u32 v{vZ+5}, v{vF0+3}, v{vF0+4}, v{vF0+5}")
    a(f"v_max3_u32 v{vZ+4}, v{vZ+4}, v{vF0+6}, v{vF0+7}")
    a(f"v_max_u32 v{vZ+4}, v{vZ+4}, v{vZ+5}")
    a(f"v_cmp_eq_u32 vcc, -1, v{vZ+4}")
    a("s_nop 4")
    a("s_cbranch_vccz L_yok")
    spin_timeout("L_ypoll")
    a.label("L_yok")
    tstamp(7)
    for i in range(4):
        a(f"v_add_f32 v{vF0+i}, v{vF0+i}, v{vF0+4+i}")
    row_allreduce("v_add_f32", [vF0, vF0+1, vF0+2, vF0+3])
    for j in range(2):
        a(f"v_lshlrev_b32 v{vZ+4}, 16, v{vFx+j}")
        a(f"v_and_b32 v{vZ+5}, s{sMask}, v{vFx+j}")
        a(f"v_add_f32 v{vF0+2*j}, v{vF0+2*j}, v{vZ+4}")
        a(f"v_add_f32 v{vF0+2*j+1}, v{vF0+2*j+1}, v{vZ+5}")
        a(f"v_lshlrev_b32 v{vZ+4}, 16, v{vFx+2+j}")
        a(f"v_and_b32 v{vZ+5}, s{sMask}, v{vFx+2+j}")
        a(f"v_add_f32 v{vF0+2*j}, v{vF0+2*j}, v{vZ+4}")
        a(f"v_add_f32 v{vF0+2*j+1}, v{vF0+2*j+1}, v{vZ+5}")
    a(f"v_cvt_pk_bf16_f32 v{vF0+4}, v{vF0}, v{vF0+1}")
    a(f"v_cvt_pk_bf16_f32 v{vF0+5}, v{vF0+2}, v{vF0+3}")
    a("s_mov_b32 exec_lo, 0x00010001")
    a("s_mov_b32 exec_hi, 0x00010001")
    a(f"global_store_dwordx2 v{vZ+3}, {V(vF0+4,2)}, {P2(sOUT)}")
    a("s_mov_b64 exec, -1")
    a.label("L_fin_stamp")
    if stamps:
        a("s_memrealtime s[4:5]")
        a("s_waitcnt lgkmcnt(0)")
        a(f"s_lshl_b32 s{sT0}, s2, 3")
        a(f"s_add_u32 s{sT0}, s{sT0}, s{sWave}")
        a(f"s_lshl_b32 s{sT0}, s{sT0}, 6")
        a(f"s_add_u32 s{sT0}, s{sT0}, {WS_STAMP}")
        a(f"v_mov_b32 v2, s{sT0}")
        for i in range(8):
            a(f"v_mov_b32 v{8+i}, s{STAMP0+2*i}")
        a("v_mov_b32 v16, s4")
        a("s_getreg_b32 s6, hwreg(HW_REG_XCC_ID)")
        a("v_mov_b32 v17, s6")
        a(f"v_mov_b32 v18, s{sN}")
        a("v_mov_b32 v19, 0")
        a("s_mov_b64 exec, 1")
        a(f"global_store_dwordx4 v2, v[8:11], {P2(sWS)}")
        a(f"global_store_dwordx4 v2, v[12:15], {P2(sWS)} offset:16")
        a(f"global_store_dwordx4 v2, v[16:19], {P2(sWS)} offset:32")
    a.label("L_end")
    a("s_endpgm")
    a.raw('.section .rodata,"a"')
    a.raw(".p2align 6")
    a.raw(f".amdhsa_kernel {KNAME}")
    a.raw("  .amdhsa_next_free_vgpr 256")
    a.raw("  .amdhsa_next_free_sgpr 102")
    a.raw("  .amdhsa_accum_offset 256")
    a.raw("  .amdhsa_group_segment_fixed_size 0")
    a.raw("  .amdhsa_kernarg_size 104")
    a.raw("  .amdhsa_user_sgpr_count 2")
    a.raw("  .amdhsa_user_sgpr_kernarg_segment_ptr 1")
    a.raw("  .amdhsa_system_sgpr_workgroup_id_x 1")
    a.raw(".end_amdhsa_kernel")
    return "\n".join(x for x in a.L if x is not None) + "\n"

if __name__ == "__main__":
    import argparse, ast
    ap = argparse.ArgumentParser()
    ap.add_argument("-o", default="k.s")
    ap.add_argument("kv", nargs="*")
    args = ap.parse_args()
    kw = {}
    for x in args.kv:
        k, v = x.split("=")
        try: v = ast.literal_eval(v)
        except Exception: pass
        kw[k] = v
    open(args.o, "w").write(gen(**kw))
```

```python
import struct, math

KNAME = "parallel_sum__gqa_block_cached__dense_activation_squared_relu__decode_kernel"

WS_CTR = 0x20000
WS_OPML = 0x10000
WS_OB = 0x100000
OB_QP, OB_OP, OB_HP, OB_YP, OB_DB, OB_GO = 0, 2048, 4096, 5120, 7168, 7296
OB_FILL = 8
WS_STAMP = 0x300000
L_XN = 0
L_QPART = 10240
L_QB = 18432
L_HB = 19456
L_OA = 19968
L_SYNC = 20992
L_ML = 21248
L_WT = 22528
L_W2T = 55296
L_OST = 71680

NEG_MAX = 0xFF7FFFFF
def f2u(x): return struct.unpack("<I", struct.pack("<f", x))[0]
C_SCALE = f2u((128 ** -0.5) * math.log2(math.e))
INV640 = f2u(1.0 / 640.0)
EPS = f2u(1e-5)

class Asm:
    def __init__(self):
        self.L = []
        self.uid = 0
    def __call__(self, s):
        self.L.append("  " + s)
    def label(self, s):
        self.L.append(s + ":")
    def u(self, base):
        self.uid += 1
        return f"{base}_{self.uid}"
    def raw(self, s):
        self.L.append(s)

def gen(dyn=True, S=48, stamps=False, pol="nt", NB=2, spin_cap=1 << 16, th=12, nocomp=0, sprof=0, hprio=3,
        qpoll_sleep=2, opoll_sleep=2, dbneed=7, NL=2, w1b=40, skipffn=0, skippost=0, mimic=0, cstride=256, prot=0):
    KL = 4
    NX = 6 - NB
    assert NL <= NX
    NXT = NX + NL
    NPRE = 6 + NL
    L_LPW = max(NL, 1) * 8192
    L_TOTAL = L_OST + 4 * L_LPW
    CH = KL * 4096
    NCH = (1 << 20) // CH
    if not dyn:
        S = NCH
    P = NCH - S
    logP = P.bit_length() - 1 if P else 0
    assert (P & (P - 1)) == 0
    D = 8 * P * 4
    logPW = logP + 2
    a = Asm()
    a.raw("; @launch grid=(256,1,1) block=(512,1,1) lds=%d" % L_TOTAL)
    a.raw('.amdgcn_target "amdgcn-amd-amdhsa--gfx950"')
    a.raw(".text")
    a.raw(f".globl {KNAME}")
    a.raw(".p2align 8")
    a.raw(f".type {KNAME},@function")
    a.label(KNAME)

    sX, sK, sV, sWQ, sWO, sW1, sB1, sW2, sB2, sOUT, sDBG, sWS = 16, 18, 20, 22, 24, 28, 30, 32, 34, 36, 38, 40
    sWave, sH, sG, sHW = 42, 43, 44, 45
    sMask, sC = 46, 47
    SRD_K, SRD_V, SRD_A, SRD_B = 48, 52, 56, 60
    sStatic, sHeadW, sIdx, sN, sNT, sOff, sCur, sBn, sXc = 64, 65, 66, 67, 68, 69, 70, 71, 72
    sBq = [73, 74, 75]
    sT0, sT1, sT2, sT3, sT4 = 76, 77, 78, 79, 6
    sRet = 80
    sSpin = 83
    STAMP0 = 84
    def P2(s): return f"s[{s}:{s+1}]"
    def P4(s): return f"s[{s}:{s+3}]"
    def _st(i): a(f"s_memrealtime s[{STAMP0+2*i}:{STAMP0+2*i+1}]")
    def stamp(i):
        if stamps and (not sprof or i == 0): _st(i)
    def sstamp(i):
        if stamps and sprof == 1: _st(i)
    def tstamp(i):
        if stamps and sprof == 2: _st(i)
    def V(n, cnt=1):
        return f"v{n}" if cnt == 1 else f"v[{n}:{n+cnt-1}]"
    DPPM = "row_mask:0xf bank_mask:0xf"
    def row_allreduce(op, regs, nop_first=True):
        steps = ["quad_perm:[1,0,3,2]", "quad_perm:[2,3,0,1]", "row_half_mirror", "row_mirror"]
        need = max(0, 2 - (len(regs) - 1))
        if nop_first:
            a("s_nop 1")
        for si, st in enumerate(steps):
            for r in regs:
                a(f"{op}_dpp v{r}, v{r}, v{r} {st} {DPPM}")
            if need and si < 3:
                a(f"s_nop {need-1}")
    def wave_sum_to_sgpr(r, sdst):
        row_allreduce("v_add_f32", [r])
        a("s_nop 1")
        a(f"v_add_f32_dpp v{r}, v{r}, v{r} row_bcast:15 row_mask:0xa bank_mask:0xf")
        a("s_nop 1")
        a(f"v_add_f32_dpp v{r}, v{r}, v{r} row_bcast:31 row_mask:0xc bank_mask:0xf")
        a("s_nop 1")
        a(f"v_readlane_b32 s{sdst}, v{r}, 63")
    def rnd_bf16(dst, src):
        a(f"v_cvt_pk_bf16_f32 v{dst}, v{src}, v{src}")
        a(f"v_and_b32 v{dst}, s{sMask}, v{dst}")
    def spin_timeout(lbl_retry):
        d = a.u("L_to")
        a(f"s_cmp_eq_u32 s{sSpin}, 0")
        a(f"s_cbranch_scc1 {d}")
        a(f"s_sub_u32 s{sSpin}, s{sSpin}, 1")
        a(f"s_branch {lbl_retry}")
        a.label(d)
    def lds_arrive(k, vaddr, vone):
        a("s_mov_b64 exec, 1")
        a(f"ds_add_u32 v{vaddr}, v{vone} offset:{4*k}")
        a("s_mov_b64 exec, -1")
    def lds_wait(k, target, vaddr, vtmp, stmp, sleep=1):
        l = a.u("L_lw")
        ok = a.u("L_lwok")
        a.label(l)
        a(f"ds_read_b32 v{vtmp}, v{vaddr} offset:{4*k}")
        a("s_waitcnt lgkmcnt(0)")
        a(f"v_readfirstlane_b32 s{stmp}, v{vtmp}")
        a("s_nop 1")
        a(f"s_cmp_ge_u32 s{stmp}, {target}")
        a(f"s_cbranch_scc1 {ok}")
        if sleep:
            a(f"s_sleep {sleep}")
        spin_timeout(l)
        a.label(ok)
    def srd(base, sptr, nrec):
        a(f"s_mov_b32 s{base}, s{sptr}")
        a(f"s_mov_b32 s{base+1}, s{sptr+1}")
        a(f"s_mov_b32 s{base+2}, {nrec}")
        a(f"s_mov_b32 s{base+3}, 0x20000")
    def sentinel_check(regs, vtmp):
        regs = list(regs)
        a(f"v_max3_u32 v{vtmp}, v{regs[0]}, v{regs[1]}, v{regs[2]}")
        i = 3
        while i + 1 < len(regs):
            a(f"v_max3_u32 v{vtmp}, v{vtmp}, v{regs[i]}, v{regs[i+1]}")
            i += 2
        if i < len(regs):
            a(f"v_max_u32 v{vtmp}, v{vtmp}, v{regs[i]}")
        a(f"v_cmp_eq_u32 vcc, -1, v{vtmp}")
        a("s_nop 4")

    vLane = 1
    a("s_cmp_ge_u32 s2, 256")
    a("s_cbranch_scc1 L_end")
    a("s_load_dwordx16 s[16:31], s[0:1], 0")
    a("s_load_dwordx8 s[32:39], s[0:1], 64")
    a("s_load_dwordx2 s[40:41], s[0:1], 96")
    stamp(0)
    a("v_lshrrev_b32 v2, 6, v0")
    a(f"v_and_b32 v{vLane}, 63, v0")
    a(f"v_readfirstlane_b32 s{sWave}, v2")
    a(f"s_lshr_b32 s{sH}, s2, 3")
    a(f"s_and_b32 s{sG}, s2, 7")
    a(f"s_mov_b32 s{sMask}, 0xffff0000")
    a(f"s_mov_b32 s{sC}, 0x{C_SCALE:08x}")
    a(f"s_mov_b32 s{sSpin}, {spin_cap}")
    a(f"v_lshlrev_b32 v3, 2, v{vLane}")
    a("v_mov_b32 v4, 0")
    a(f"s_cmp_eq_u32 s{sWave}, 4")
    a("s_cbranch_scc0 L_nosyinit")
    a(f"ds_write_b32 v3, v4 offset:{L_SYNC}")
    a.label("L_nosyinit")
    a("s_waitcnt lgkmcnt(0)")
    a("s_barrier")
    sstamp(1)
    a(f"s_cmp_lt_u32 s{sWave}, 4")
    a("s_cbranch_scc1 L_swave")

    vL16, vL4, vXo, vXo2, vSy, vOne = 2, 3, 4, 5, 6, 7
    vXr = 8
    vE = 16
    vW = 32
    vXN = 64
    vAcc = 144
    vU = 152
    vWO = 172
    vBo = 204
    vL2 = 205
    vW2 = 208
    vY = 224
    if hprio:
        a(f"s_setprio {hprio}")
    a(f"s_sub_u32 s{sHW}, s{sWave}, 4")
    a(f"v_lshlrev_b32 v{vL16}, 4, v{vLane}")
    a(f"s_mul_i32 s{sT0}, s{sHW}, 1280")
    a(f"v_add_u32 v{vXo}, s{sT0}, v{vL16}")
    a(f"v_add_u32 v{vXo2}, s{sT0}, v{vL4}")
    a(f"global_load_dwordx4 {V(vXr,4)}, v{vXo}, {P2(sX)}")
    a(f"global_load_dword v{vXr+4}, v{vXo2}, {P2(sX)} offset:1024")
    a(f"s_mul_i32 s{sT1}, s{sG}, 80")
    a(f"s_mul_i32 s{sT2}, s{sHW}, 20")
    a(f"s_add_u32 s{sStatic}, s{sT1}, s{sT2}")
    a(f"s_lshl_b32 s{sOff}, s{sStatic}, 13")
    a(f"s_lshl_b32 s{sT2}, s{sH}, 8")
    a(f"s_add_u32 s{sOff}, s{sOff}, s{sT2}")
    srd(SRD_A, sWQ, 640 * 8192)
    for i in range(20):
        a(f"buffer_load_dword v{vW+i}, v{vL4}, {P4(SRD_A)}, s{sOff} offen {pol}")
        if i < 19:
            a(f"s_add_u32 s{sOff}, s{sOff}, 8192")
    sstamp(2)
    a(f"v_lshlrev_b32 v{vU}, 3, v{vLane}")
    a(f"s_lshl_b32 s{sIdx}, s2, 13")
    a(f"s_add_u32 s{sIdx}, s{sIdx}, {WS_OB}")
    a(f"s_lshl_b32 s{sHeadW}, s{sH}, 16")
    a(f"s_add_u32 s{sHeadW}, s{sHeadW}, {WS_OB}")
    a(f"s_lshl_b32 s{sT2}, s{sHW}, 9")
    a(f"s_add_u32 s{sT2}, s{sT2}, s{sIdx}")
    a(f"v_add_u32 v{vU+2}, s{sT2}, v{vU}")
    a(f"v_mov_b32 v{vSy}, {L_SYNC}")
    a(f"v_mov_b32 v{vOne}, 1")
    a("s_waitcnt vmcnt(20)")
    sstamp(3)
    for j in range(5):
        a(f"v_lshlrev_b32 v{vE+2*j}, 16, v{vXr+j}")
        a(f"v_and_b32 v{vE+2*j+1}, s{sMask}, v{vXr+j}")
    vt, vs, vMean, vR = vU + 10, vU + 12, vU + 13, vU + 14
    a(f"v_add_f32 v{vs}, v{vE}, v{vE+1}")
    for j in range(2, 10):
        a(f"v_add_f32 v{vs}, v{vs}, v{vE+j}")
    wave_sum_to_sgpr(vs, sT0)
    a("s_nop 1")
    a(f"v_mov_b32 v{vMean}, s{sT0}")
    a(f"v_mul_f32 v{vMean}, 0x{INV640:08x}, v{vMean}")
    a(f"v_sub_f32 v{vt}, v{vE}, v{vMean}")
    a(f"v_mul_f32 v{vs}, v{vt}, v{vt}")
    for j in range(1, 10):
        a(f"v_sub_f32 v{vt}, v{vE+j}, v{vMean}")
        a(f"v_fmac_f32 v{vs}, v{vt}, v{vt}")
    wave_sum_to_sgpr(vs, sT0)
    a("s_nop 1")
    a(f"v_mov_b32 v{vR}, s{sT0}")
    a(f"v_mul_f32 v{vR}, 0x{INV640:08x}, v{vR}")
    rnd_bf16(vR, vR)
    a(f"v_add_f32 v{vR}, 0x{EPS:08x}, v{vR}")
    rnd_bf16(vR, vR)
    a(f"v_sqrt_f32 v{vR}, v{vR}")
    a("s_nop 0")
    rnd_bf16(vR, vR)
    a(f"v_rcp_f32 v{vR}, v{vR}")
    rnd_bf16(vMean, vMean)
    for j in range(10):
        a(f"v_sub_f32 v{vE+j}, v{vE+j}, v{vMean}")
    for j in range(0, 10, 2):
        a(f"v_cvt_pk_bf16_f32 v{vt}, v{vE+j}, v{vE+j+1}")
        a(f"v_lshlrev_b32 v{vE+j}, 16, v{vt}")
        a(f"v_and_b32 v{vE+j+1}, s{sMask}, v{vt}")
    for j in range(10):
        a(f"v_mul_f32 v{vE+j}, v{vE+j}, v{vR}")
    for j in range(0, 10, 2):
        a(f"v_cvt_pk_bf16_f32 v{vt}, v{vE+j}, v{vE+j+1}")
        a(f"v_lshlrev_b32 v{vE+j}, 16, v{vt}")
        a(f"v_and_b32 v{vE+j+1}, s{sMask}, v{vt}")
    a(f"s_mul_i32 s{sT0}, s{sHW}, 2560")
    a(f"v_lshlrev_b32 v{vt}, 5, v{vLane}")
    a(f"v_add_u32 v{vt}, s{sT0}, v{vt}")
    a(f"v_add_u32 v{vt+1}, s{sT0}, v{vU}")
    a(f"ds_write_b128 v{vt}, {V(vE,4)} offset:{L_XN}")
    a(f"ds_write_b128 v{vt}, {V(vE+4,4)} offset:{L_XN+16}")
    a(f"ds_write_b64 v{vt+1}, {V(vE+8,2)} offset:{L_XN+2048}")
    lds_arrive(1, vSy, vOne)
    sstamp(4)
    a(f"s_lshl_b32 s{sT1}, s{sStatic}, 2")
    a(f"v_mov_b32 v{vt}, s{sT1}")
    for i in range(8):
        a(f"v_mov_b32 v{vAcc+i}, 0")
    lds_wait(1, 4, vSy, vt + 1, sT0)
    stamp(2)
    for b in range(4):
        for k in range(5):
            a(f"ds_read_b128 {V(vXN+b*20+4*k,4)}, v{vt} offset:{L_XN+b*2560+16*k}")
    a("s_waitcnt vmcnt(0) lgkmcnt(0)")
    sstamp(5)
    for i in range(20):
        t = vU + 10 + 2 * (i % 3)
        a(f"v_lshlrev_b32 v{t}, 16, v{vW+i}")
        a(f"v_and_b32 v{t+1}, s{sMask}, v{vW+i}")
        for b in range(4):
            x = vXN + b * 20 + i
            xb = x & ~1
            sel = "op_sel:[0,1,0] op_sel_hi:[1,1,1]" if (x & 1) else "op_sel_hi:[1,0,1]"
            a(f"v_pk_fma_f32 {V(vAcc+2*b,2)}, {V(t,2)}, {V(xb,2)}, {V(vAcc+2*b,2)} {sel}")
    a(f"s_lshl_b32 s{sT0}, s{sHW}, 11")
    a(f"v_add_u32 v{vU+1}, s{sT0}, v{vU}")
    for b in range(4):
        a(f"ds_write_b64 v{vU+1}, {V(vAcc+2*b,2)} offset:{L_QPART+b*512}")
    lds_arrive(2, vSy, vOne)
    a(f"s_lshl_b32 s{sT0}, s{sHW}, 9")
    a(f"v_add_u32 v{vU+1}, s{sT0}, v{vU}")
    lds_wait(2, 4, vSy, vU + 4, sT0)
    for w in range(4):
        a(f"ds_read_b64 {V(vAcc+2*w,2)}, v{vU+1} offset:{L_QPART+w*2048}")
    a("s_waitcnt lgkmcnt(0)")
    a(f"v_pk_add_f32 {V(vAcc,2)}, {V(vAcc,2)}, {V(vAcc+2,2)}")
    a(f"v_pk_add_f32 {V(vAcc+4,2)}, {V(vAcc+4,2)}, {V(vAcc+6,2)}")
    a(f"v_pk_add_f32 {V(vAcc,2)}, {V(vAcc,2)}, {V(vAcc+4,2)}")
    sstamp(6)
    lds_wait(0, 1, vSy, vU + 4, sT0)
    a(f"global_store_dwordx2 v{vU+2}, {V(vAcc,2)}, {P2(sWS)} sc1")
    stamp(3)
    sstamp(7)
    a(f"s_lshl_b32 s{sT2}, s{sHW}, 9")
    a(f"s_add_u32 s{sT2}, s{sT2}, s{sHeadW}")
    vGa = 80
    for g_ in range(8):
        a(f"s_add_u32 s{sT3}, s{sT2}, {g_*8192}")
        a(f"v_add_u32 v{vGa+g_}, s{sT3}, v{vU}")
    a(f"s_cmp_eq_u32 s{sHW}, 0")
    a("s_cbranch_scc0 L_h_b4")
    a(f"s_add_u32 s{sT0}, s{sIdx}, {OB_GO}")
    a(f"v_mov_b32 v{vU+4}, s{sT0}")
    a.label("L_qpoll")
    a(f"global_load_dword v{vU+6}, v{vU+4}, {P2(sWS)} sc1")
    a("s_waitcnt vmcnt(0)")
    a(f"v_readfirstlane_b32 s{sT1}, v{vU+6}")
    a("s_nop 1")
    a(f"s_cmp_eq_u32 s{sT1}, 1")
    a("s_cbranch_scc1 L_qok")
    a(f"s_sleep {qpoll_sleep}")
    spin_timeout("L_qpoll")
    a.label("L_qok")
    lds_arrive(4, vSy, vOne)
    a.label("L_h_b4")
    lds_wait(4, 1, vSy, vU + 4, sT0)
    stamp(4)
    vG = vXN
    a.label("L_qg")
    for g_ in range(8):
        a(f"global_load_dwordx2 {V(vG+2*g_,2)}, v{vGa+g_}, {P2(sWS)} sc1")
    a("s_waitcnt vmcnt(0)")
    sentinel_check(range(vG, vG + 16), vU + 4)
    a("s_cbranch_vccz L_qgok")
    spin_timeout("L_qg")
    a.label("L_qgok")
    for g_ in range(1, 8):
        a(f"v_pk_add_f32 {V(vG,2)}, {V(vG,2)}, {V(vG+2*g_,2)}")
    a(f"v_cvt_pk_bf16_f32 v{vU+4}, v{vG}, v{vG+1}")
    a(f"s_lshl_b32 s{sT0}, s{sHW}, 8")
    a(f"v_add_u32 v{vU+5}, s{sT0}, v{vL4}")
    a(f"ds_write_b32 v{vU+5}, v{vU+4} offset:{L_QB}")
    lds_arrive(5, vSy, vOne)
    stamp(5)
    a("s_branch L_h_post")

    a.label("L_swave")
    vOff, vOst, vMl, vQa = 2, 4, 5, 6
    vQ = 8
    vO = 12
    vM, vL = 20, 21
    vAl, vMn = 22, 23
    vS = 24
    vT = 28
    vTmp, vTk = 36, 38
    vSn = 40
    vTkt = [48, 49, 50]
    vCo = 51
    SRD_C = SRD_A
    RING = 64
    def buf(i): return RING + 32 * i
    def kslot(bb, i): return bb + 4 * i
    def vslot(bb, i): return bb + 16 + 4 * i
    def ldK(bb, soff):
        for i in range(KL):
            a(f"buffer_load_dwordx4 {V(kslot(bb,i),4)}, v{vOff}, {P4(SRD_K)}, s{soff} offen offset:{i*1024} {pol}")
    def ldV(bb, soff):
        for i in range(KL):
            a(f"buffer_load_dwordx4 {V(vslot(bb,i),4)}, v{vOff}, {P4(SRD_V)}, s{soff} offen offset:{i*1024} {pol}")
    a(f"v_lshlrev_b32 v{vOff}, 4, v{vLane}")
    a(f"s_cmp_eq_u32 s{sWave}, 0")
    a("s_cbranch_scc0 L_s_nop0")
    a("s_setprio 3")
    for i in range(4):
        a(f"v_mov_b32 v{vSn+i}, -1")
    a(f"s_lshl_b32 s{sT0}, s2, 13")
    a(f"s_add_u32 s{sT0}, s{sT0}, {WS_OB}")
    a(f"v_add_u32 v{vSn+4}, s{sT0}, v{vOff}")
    a(f"v_add_u32 v{vSn+5}, 4096, v{vSn+4}")
    for k in range(OB_FILL):
        a(f"global_store_dwordx4 v{vSn+4+(k>>2)}, {V(vSn,4)}, {P2(sWS)} offset:{(k&3)*1024} sc1")
    a(f"s_lshl_b32 s{sT0}, s{sH}, 8")
    a(f"s_lshl_b32 s{sT1}, s{sG}, 3")
    a(f"s_add_u32 s{sT1}, s{sT1}, s{sT0}")
    a(f"s_add_u32 s{sT1}, s{sT1}, {WS_OPML}")
    a(f"v_lshlrev_b32 v{vSn+6}, 6, v{vLane}")
    a(f"v_add_u32 v{vSn+6}, s{sT1}, v{vSn+6}")
    a(f"s_mul_i32 s{sT2}, s{sH}, {cstride}")
    a(f"s_add_u32 s{sT2}, s{sT2}, {WS_CTR}")
    a(f"v_mov_b32 v{vSn+7}, s{sT2}")
    a(f"v_mov_b32 v{vTmp}, 0")
    a("s_mov_b64 exec, 0xf")
    a(f"global_store_dwordx2 v{vSn+6}, {V(vSn,2)}, {P2(sWS)} sc1")
    a("s_mov_b64 exec, 1")
    a(f"s_cmp_eq_u32 s{sG}, 0")
    a("s_cbranch_scc0 L_noctr")
    a(f"global_store_dword v{vSn+7}, v{vTmp}, {P2(sWS)} sc1")
    a.label("L_noctr")
    a(f"s_lshr_b32 s{sT1}, s{sH}, 4")
    a(f"s_lshl_b32 s{sT1}, s{sT1}, 5")
    a(f"s_and_b32 s{sT2}, s{sH}, 15")
    a(f"s_add_u32 s{sT1}, s{sT1}, s{sT2}")
    a(f"s_lshl_b32 s{sT1}, s{sT1}, 2")
    a(f"v_mov_b32 v{vSn+6}, s{sT1}")
    a(f"v_mov_b32 v{vTmp}, 1")
    a(f"v_mov_b32 v{vTk}, {L_SYNC}")
    a("s_waitcnt vmcnt(0)")
    sstamp(3)
    a(f"global_atomic_add v{vSn+7}, v{vSn+6}, v{vTmp}, {P2(sDBG)} sc0")
    a(f"ds_write_b32 v{vTk}, v{vTmp}")
    a("s_waitcnt vmcnt(0)")
    a(f"v_readfirstlane_b32 s{sT0}, v{vSn+7}")
    a("s_mov_b64 exec, -1")
    a("s_nop 0")
    a(f"s_cmp_eq_u32 s{sT0}, 7")
    a("s_cbranch_scc0 L_s_nogo")
    a(f"s_lshl_b32 s{sT1}, s{sH}, 16")
    a(f"s_add_u32 s{sT1}, s{sT1}, {WS_OB+OB_GO}")
    a(f"v_lshlrev_b32 v{vSn+4}, 13, v{vLane}")
    a(f"v_add_u32 v{vSn+4}, s{sT1}, v{vSn+4}")
    a(f"v_mov_b32 v{vTmp}, 1")
    a("s_mov_b64 exec, 0xff")
    a(f"global_store_dword v{vSn+4}, v{vTmp}, {P2(sWS)} sc1")
    a("s_mov_b64 exec, -1")
    a.label("L_s_nogo")
    sstamp(4)
    a("s_setprio 0")
    a.label("L_s_nop0")
    a(f"s_lshl_b32 s{sHeadW}, s{sH}, 21")
    a(f"s_lshr_b32 s{sCur}, s{sG}, 1")
    a(f"s_lshl_b32 s{sT0}, s{sCur}, 26")
    a(f"s_and_b32 s{sT1}, s{sG}, 1")
    a(f"s_lshl_b32 s{sT1}, s{sT1}, 20")
    a(f"s_add_u32 s{sStatic}, s{sHeadW}, s{sT0}")
    a(f"s_add_u32 s{sStatic}, s{sStatic}, s{sT1}")
    a(f"s_lshl_b32 s{sT0}, s{sWave}, 12")
    a(f"s_add_u32 s{sStatic}, s{sStatic}, s{sT0}")
    a(f"s_mov_b32 s{sOff}, s{sStatic}")
    if stamps and sprof == 3:
        a("v_mov_b32 v52, 0")
        a("v_writelane_b32 v52, s84, 0")
    srd(SRD_K, sK, 0x10000000)
    srd(SRD_V, sV, 0x10000000)
    srd(SRD_C, sWS, 0x100000)
    a(f"v_mov_b32 v{vTk}, {L_SYNC}")
    a(f"s_mul_i32 s{sT0}, s{sH}, {cstride}")
    a(f"s_add_u32 s{sT0}, s{sT0}, {WS_CTR}")
    a(f"v_mov_b32 v{vCo}, s{sT0}")
    def ost_init():
        for i in range(4):
            a(f"v_mov_b32 v{vT+i}, 0")
        for b in range(4):
            a(f"ds_write_b128 v{vOst}, {V(vT,4)} offset:{b*2048}")
            a(f"ds_write_b128 v{vOst}, {V(vT,4)} offset:{b*2048+16}")
    def s_lds_init():
        a(f"s_mul_i32 s{sT0}, s{sWave}, {L_LPW}")
        a(f"v_lshlrev_b32 v{vOst}, 5, v{vLane}")
        a(f"v_add_u32 v{vOst}, s{sT0}, v{vOst}")
        a(f"v_add_u32 v{vOst}, {L_OST}, v{vOst}")
        a(f"v_lshrrev_b32 v{vMl}, 4, v{vLane}")
        a(f"s_lshl_b32 s{sT0}, s{sWave}, 2")
        a(f"v_add_u32 v{vMl}, s{sT0}, v{vMl}")
        a(f"v_lshlrev_b32 v{vMl}, 3, v{vMl}")
        a(f"v_add_u32 v{vMl}, {L_ML}, v{vMl}")
        a(f"v_and_b32 v{vQa}, 15, v{vLane}")
        a(f"v_lshlrev_b32 v{vQa}, 4, v{vQa}")
        a(f"v_add_u32 v{vQa}, {L_QB}, v{vQa}")
        for i in range(8):
            a(f"v_mov_b32 v{vO+i}, 0")
        a(f"v_mov_b32 v{vM}, 0x{NEG_MAX:08x}")
        a(f"v_mov_b32 v{vL}, 0")
        for b in range(4):
            a(f"ds_write_b64 v{vMl}, {V(vM,2)} offset:{b*128}")
        if NL == 0:
            ost_init()
    nld = 0
    th_ = min(th, 48)
    seq = [("r", i) for i in range(NX)] + [("l", j) for j in range(NL)] + [("r", NX + k) for k in range(NB)]
    a(f"s_mul_i32 s{sT4}, s{sWave}, {L_LPW}")
    a(f"s_add_u32 s{sT4}, s{sT4}, {L_OST}")
    for kind, bi in seq:
        for half, (srd_, slotf) in enumerate(((SRD_K, kslot), (SRD_V, vslot))):
            if kind == "l":
                a(f"s_add_u32 m0, s{sT4}, {bi*8192 + half*4096}")
            for i in range(KL):
                if nld >= th_:
                    a(f"s_waitcnt vmcnt({th_-1})")
                elif kind == "l" and i == 0:
                    a("s_nop 0")
                if kind == "r":
                    a(f"buffer_load_dwordx4 {V(slotf(buf(bi), i),4)}, v{vOff}, {P4(srd_)}, s{sOff} offen offset:{i*1024} {pol}")
                else:
                    a(f"buffer_load_dwordx4 v{vOff}, {P4(srd_)}, s{sOff} offen offset:{i*1024} {pol} lds")
                nld += 1
                if nld == th_:
                    sstamp(2)
        a(f"s_add_u32 s{sOff}, s{sOff}, {CH}")
    stamp(1)
    sstamp(5)
    s_lds_init()
    lds_wait(5, 4, vTk, vTmp, sT0)
    stamp(2)
    sstamp(6)
    a(f"s_lshl_b32 s{sT0}, s{sCur}, 8")
    a(f"v_add_u32 v{vTmp}, s{sT0}, v{vQa}")
    a(f"ds_read_b128 {V(vQ,4)}, v{vTmp}")
    a(f"s_mov_b32 s{sIdx}, {NPRE}")
    a(f"s_mov_b32 s{sN}, {NXT}")
    a(f"s_mov_b32 s{sNT}, {NCH if not dyn else 0x7fffffff}")
    for k in range(NB):
        a(f"s_mov_b32 s{sBq[k]}, s{sCur}")
    a(f"s_mov_b32 s{sXc}, 0")
    a("s_waitcnt lgkmcnt(0)")

    def qk(bb):
        if nocomp & 1:
            for i in range(KL):
                a(f"v_xor_b32 v{vS+i}, v{kslot(bb,i)}, v{kslot(bb,i)+3}")
            return
        for j in range(4):
            for i in range(KL):
                k = kslot(bb, i) + j
                if j == 0:
                    a(f"v_dot2_f32_bf16 v{vS+i}, v{k}, v{vQ+j}, 0")
                else:
                    a(f"v_dot2_f32_bf16 v{vS+i}, v{k}, v{vQ+j}, v{vS+i}")
    def softmax():
        if nocomp & 2:
            return
        row_allreduce("v_add_f32", [vS, vS+1, vS+2, vS+3], nop_first=False)
        a(f"v_max3_f32 v{vMn}, v{vS}, v{vS+1}, v{vS+2}")
        a(f"v_max_f32 v{vMn}, v{vMn}, v{vS+3}")
        a(f"v_mul_f32 v{vMn}, s{sC}, v{vMn}")
        a(f"v_max_f32 v{vMn}, v{vMn}, v{vM}")
        a(f"v_sub_f32 v{vAl}, v{vM}, v{vMn}")
        for i in range(4):
            a(f"v_fma_f32 v{vS+i}, v{vS+i}, s{sC}, -v{vMn}")
        a(f"v_exp_f32 v{vAl}, v{vAl}")
        for i in range(4):
            a(f"v_exp_f32 v{vS+i}, v{vS+i}")
        a(f"v_mov_b32 v{vM}, v{vMn}")
        a(f"v_fma_f32 v{vL}, v{vL}, v{vAl}, v{vS}")
        a(f"v_add_f32 v{vT}, v{vS+1}, v{vS+2}")
        a(f"v_add_f32 v{vL}, v{vL}, v{vS+3}")
        a(f"v_add_f32 v{vL}, v{vL}, v{vT}")
        for j in range(4):
            a(f"v_pk_mul_f32 {V(vO+2*j,2)}, {V(vO+2*j,2)}, {V(vAl,2)} op_sel_hi:[1,0]")
    def pv(bb):
        if nocomp & 4:
            for i in range(KL):
                a(f"v_xor_b32 v{vO+i}, v{vslot(bb,i)}, v{vslot(bb,i)+3}")
            return
        for i in range(KL):
            p = vS + i
            pb = p & ~1
            sel = "op_sel:[0,1,0] op_sel_hi:[1,1,1]" if (p & 1) else "op_sel_hi:[1,0,1]"
            for j in range(4):
                v = vslot(bb, i) + j
                t = vT + 2 * j
                a(f"v_lshlrev_b32 v{t}, 16, v{v}")
                a(f"v_and_b32 v{t+1}, s{sMask}, v{v}")
            for j in range(4):
                t = vT + 2 * j
                a(f"v_pk_fma_f32 {V(vO+2*j,2)}, {V(t,2)}, {V(pb,2)}, {V(vO+2*j,2)} {sel}")
    WAITN = (2 * NB - 1) * KL
    def body(bi, k, tag):
        bb = buf(bi)
        sBr = sBq[k]
        if dyn:
            a(f"s_cmp_eq_u32 s{sBr}, s{sCur}")
            a(f"s_cbranch_scc1 L_nosw_{tag}")
            a(f"s_mov_b32 s{sBn}, s{sBr}")
            a(f"s_call_b64 {P2(sRet)}, L_switch")
            a.label(f"L_nosw_{tag}")
        a(f"s_waitcnt vmcnt({WAITN})")
        qk(bb)
        a(f"s_cmp_lt_u32 s{sIdx}, {S}")
        a(f"s_cbranch_scc0 L_dy_{tag}")
        a(f"s_mul_i32 s{sOff}, s{sIdx}, {CH}")
        a(f"s_add_u32 s{sOff}, s{sOff}, s{sStatic}")
        a(f"s_mov_b32 s{sBn}, s{sBr}")
        a.label(f"L_go_{tag}")
        if dyn:
            a(f"s_cmp_lt_u32 s{sIdx}, {S-NB}")
            a(f"s_cbranch_scc1 L_notk_{tag}")
            a(f"s_cmp_lg_u32 s{sNT}, 0x7fffffff")
            a(f"s_cbranch_scc1 L_notk_{tag}")
            a(f"v_mov_b32 v{vTkt[k]}, 1")
            a("s_mov_b64 exec, 1")
            a(f"buffer_atomic_add v{vTkt[k]}, v{vCo}, {P4(SRD_C)}, 0 offen sc0")
            a("s_mov_b64 exec, -1")
            a.label(f"L_notk_{tag}")
        a(f"s_add_u32 s{sIdx}, s{sIdx}, 1")
        ldK(bb, sOff)
        softmax()
        a(f"s_waitcnt vmcnt({WAITN})")
        pv(bb)
        ldV(bb, sOff)
        a(f"s_mov_b32 s{sBr}, s{sBn}")
        a(f"s_add_u32 s{sN}, s{sN}, 1")
        if stamps and sprof == 3:
            a(f"s_and_b32 s{sT0}, s{sN}, 3")
            a(f"s_cbranch_scc1 L_nops_{tag}")
            a(f"s_memrealtime s[84:85]")
            a(f"s_lshr_b32 m0, s{sN}, 2")
            a("s_waitcnt lgkmcnt(0)")
            a(f"v_writelane_b32 v52, s84, m0")
            a.label(f"L_nops_{tag}")
        a(f"s_cmp_ge_u32 s{sN}, s{sNT}")
        a("s_cbranch_scc1 L_sfin")
    def body_dyn_part(tag, k):
        a.label(f"L_dy_{tag}")
        if dyn:
            a(f"s_cmp_ge_u32 s{sIdx}, s{sNT}")
            a(f"s_cbranch_scc1 L_ex_{tag}")
            a(f"v_readfirstlane_b32 s{sT1}, v{vTkt[k]}")
            a("s_nop 1")
            a(f"s_cmp_lt_u32 s{sT1}, {D}")
            a(f"s_cbranch_scc1 L_tk_{tag}")
            a(f"s_mov_b32 s{sNT}, s{sIdx}")
            a(f"s_branch L_ex_{tag}")
            a.label(f"L_tk_{tag}")
            a(f"s_lshr_b32 s{sT2}, s{sT1}, {logPW}")
            if prot:
                a(f"s_mul_i32 s{sT3}, s{sH}, {prot}")
                a(f"s_add_u32 s{sT3}, s{sT3}, s{sT1}")
                a(f"s_and_b32 s{sT3}, s{sT3}, {4*P-1}")
            else:
                a(f"s_and_b32 s{sT3}, s{sT1}, {4*P-1}")
            a(f"s_lshl_b32 s{sT3}, s{sT3}, 12")
            a(f"s_add_u32 s{sT3}, s{sT3}, {S*CH}")
            a(f"s_lshr_b32 s{sBn}, s{sT2}, 1")
            a(f"s_lshl_b32 s{sT0}, s{sBn}, 26")
            a(f"s_and_b32 s{sT2}, s{sT2}, 1")
            a(f"s_lshl_b32 s{sT2}, s{sT2}, 20")
            a(f"s_add_u32 s{sOff}, s{sHeadW}, s{sT3}")
            a(f"s_add_u32 s{sOff}, s{sOff}, s{sT0}")
            a(f"s_add_u32 s{sOff}, s{sOff}, s{sT2}")
            a(f"s_branch L_go_{tag}")
        a.label(f"L_ex_{tag}")
        a(f"s_mov_b32 s{sOff}, 0x7ff00000")
        a(f"s_mov_b32 s{sBn}, s{sCur}")
        a(f"s_branch L_go_{tag}")
    def bodyX(bi):
        bb = buf(bi)
        qk(bb)
        a("s_nop 2")
        softmax()
        pv(bb)
    tags = ["A", "B", "C"][:NB]
    a.label("L_loop")
    for k, tg in enumerate(tags):
        body(NX + k, k, tg)
        a(f"s_cmp_lt_u32 s{sXc}, {NXT}")
        a(f"s_cbranch_scc1 L_x{tg}")
        a.label(f"L_x{tg}_ret")
    a("s_branch L_loop")
    for k, tg in enumerate(tags):
        a.label(f"L_x{tg}")
        a(f"s_add_u32 s{sXc}, s{sXc}, 1")
        a(f"s_call_b64 {P2(sRet)}, L_xbody")
        a(f"s_branch L_x{tg}_ret")
    for k, tg in enumerate(tags):
        body_dyn_part(tg, k)
    a.label("L_xbody")
    if NL:
        a(f"s_cmp_le_u32 s{sXc}, {NX}")
        a("s_cbranch_scc1 L_xreg")
        a(f"s_sub_u32 s{sT1}, s{sXc}, {NX+1}")
        a(f"s_mul_i32 s{sT0}, s{sWave}, {L_LPW}")
        a(f"s_lshl_b32 s{sT2}, s{sT1}, 13")
        a(f"s_add_u32 s{sT0}, s{sT0}, s{sT2}")
        a(f"s_add_u32 s{sT0}, s{sT0}, {L_OST}")
        a(f"v_add_u32 v{vTmp}, s{sT0}, v{vOff}")
        for j in range(NL):
            if j < NL - 1:
                a(f"s_cmp_eq_u32 s{sT1}, {j}")
                a(f"s_cbranch_scc0 L_xl{j}")
            for i in range(8):
                a(f"ds_read_b128 {V(buf(j)+4*i,4)}, v{vTmp} offset:{i*1024}")
            a("s_waitcnt lgkmcnt(0)")
            if j == NL - 1:
                ost_init()
            a(f"s_branch L_xb{j}")
            if j < NL - 1:
                a.label(f"L_xl{j}")
        a.label("L_xreg")
    for x in range(NX):
        if x < NX - 1:
            a(f"s_cmp_eq_u32 s{sXc}, {x+1}")
            a(f"s_cbranch_scc0 L_xn{x}")
        a.label(f"L_xb{x}")
        bodyX(x)
        a(f"s_setpc_b64 {P2(sRet)}")
        if x < NX - 1:
            a.label(f"L_xn{x}")
    def save_state():
        a(f"s_lshl_b32 s{sT0}, s{sCur}, 11")
        a(f"v_add_u32 v{vTmp}, s{sT0}, v{vOst}")
        a(f"ds_write_b128 v{vTmp}, {V(vO,4)}")
        a(f"ds_write_b128 v{vTmp}, {V(vO+4,4)} offset:16")
        a(f"s_lshl_b32 s{sT0}, s{sCur}, 7")
        a(f"v_add_u32 v{vTmp+1}, s{sT0}, v{vMl}")
        a(f"ds_write_b64 v{vTmp+1}, {V(vM,2)}")
    a.label("L_switch")
    save_state()
    a(f"s_mov_b32 s{sCur}, s{sBn}")
    a(f"s_lshl_b32 s{sT0}, s{sCur}, 11")
    a(f"v_add_u32 v{vTmp}, s{sT0}, v{vOst}")
    a(f"ds_read_b128 {V(vO,4)}, v{vTmp}")
    a(f"ds_read_b128 {V(vO+4,4)}, v{vTmp} offset:16")
    a(f"s_lshl_b32 s{sT0}, s{sCur}, 7")
    a(f"v_add_u32 v{vTmp+1}, s{sT0}, v{vMl}")
    a(f"ds_read_b64 {V(vM,2)}, v{vTmp+1}")
    a(f"s_lshl_b32 s{sT0}, s{sCur}, 8")
    a(f"v_add_u32 v{vTk}, s{sT0}, v{vQa}")
    a(f"ds_read_b128 {V(vQ,4)}, v{vTk}")
    a("s_waitcnt lgkmcnt(0)")
    a(f"s_setpc_b64 {P2(sRet)}")

    a.label("L_sfin")
    if stamps and sprof == 3:
        a(f"s_lshl_b32 s{sT0}, s2, 2")
        a(f"s_add_u32 s{sT0}, s{sT0}, s{sWave}")
        a(f"s_lshl_b32 s{sT0}, s{sT0}, 8")
        a(f"s_add_u32 s{sT0}, s{sT0}, {WS_STAMP+0x40000}")
        a(f"v_lshlrev_b32 v53, 2, v{vLane}")
        a(f"v_add_u32 v53, s{sT0}, v53")
        a(f"global_store_dword v53, v52, {P2(sWS)}")
    stamp(3)
    save_state()
    a("s_waitcnt lgkmcnt(0)")
    a("s_barrier")
    stamp(6)
    tstamp(1)
    a(f"s_cmp_lt_u32 s{sH}, 4")
    a("s_cbranch_scc0 L_fin_stamp")
    a(f"s_cmp_lt_u32 s{sG}, 5")
    a("s_cbranch_scc0 L_fin_stamp")
    a("s_branch L_final_pre")

    a.label("L_h_post")
    a(f"v_lshlrev_b32 v{vL2}, 1, v{vLane}")
    if skippost:
        a("s_branch L_h_tailprep")
    a(f"s_cmp_lt_u32 s{sG}, 5")
    a("s_cbranch_scc0 L_h_notile")
    vTo = 8
    a(f"v_lshrrev_b32 v{vTo}, 4, v{vLane}")
    a(f"v_mul_u32_u24 v{vTo}, 1280, v{vTo}")
    a(f"v_and_b32 v{vTo+1}, 15, v{vLane}")
    a(f"v_lshlrev_b32 v{vTo+1}, 4, v{vTo+1}")
    a(f"v_add_u32 v{vTo}, v{vTo}, v{vTo+1}")
    srd(SRD_A, sWO, 4096 * 1280)
    srd(SRD_B, sW2, 1728 * 1280)
    a(f"s_lshl_b32 s{sT0}, s{sH}, 7")
    a(f"s_lshl_b32 s{sT1}, s{sHW}, 5")
    a(f"s_add_u32 s{sT0}, s{sT0}, s{sT1}")
    a(f"s_mul_i32 s{sT0}, s{sT0}, 1280")
    a(f"s_lshl_b32 s{sT1}, s{sG}, 8")
    a(f"s_add_u32 s{sT0}, s{sT0}, s{sT1}")
    a(f"s_lshl_b32 s{sT2}, s{sHW}, 13")
    a(f"s_add_u32 s{sT2}, s{sT2}, {L_WT}")
    for i in range(8):
        a(f"s_add_u32 m0, s{sT2}, {i*1024}")
        a(f"s_nop 0")
        a(f"buffer_load_dwordx4 v{vTo}, {P4(SRD_A)}, s{sT0} offen {pol} lds")
        a(f"s_add_u32 s{sT0}, s{sT0}, {4*1280}")
    a(f"s_lshl_b32 s{sT0}, s{sH}, 6")
    a(f"s_lshl_b32 s{sT3}, s{sHW}, 4")
    a(f"s_add_u32 s{sT0}, s{sT0}, s{sT3}")
    a(f"s_mul_i32 s{sT0}, s{sT0}, 1280")
    a(f"s_add_u32 s{sT0}, s{sT0}, s{sT1}")
    a(f"s_lshl_b32 s{sT2}, s{sHW}, 12")
    a(f"s_add_u32 s{sT2}, s{sT2}, {L_W2T}")
    for i in range(4):
        a(f"s_add_u32 m0, s{sT2}, {i*1024}")
        a(f"s_nop 0")
        a(f"buffer_load_dwordx4 v{vTo}, {P4(SRD_B)}, s{sT0} offen {pol} lds")
        a(f"s_add_u32 s{sT0}, s{sT0}, {4*1280}")
    a("s_waitcnt vmcnt(0)")
    lds_arrive(6, vSy, vOne)
    a(f"v_lshrrev_b32 v{vU}, 4, v{vLane}")
    a(f"v_lshlrev_b32 v{vBo}, 11, v{vU}")
    a(f"v_and_b32 v{vU+1}, 15, v{vLane}")
    a(f"v_lshlrev_b32 v{vU+1}, 1, v{vU+1}")
    a(f"v_add_u32 v{vBo}, v{vBo}, v{vU+1}")
    a(f"s_lshl_b32 s{sT1}, s{sHW}, 6")
    a(f"v_add_u32 v{vBo}, s{sT1}, v{vBo}")
    def build_btile(dst, ldsoff, nsteps, tmp):
        for s in range(nsteps):
            for j in range(8):
                a(f"ds_read_u16 v{tmp+8*s+j}, v{vBo} offset:{ldsoff + (32*s+j)*256}")
            a("s_waitcnt lgkmcnt(0)")
            for j2 in range(4):
                a(f"v_lshl_or_b32 v{dst+4*s+j2}, v{tmp+8*s+2*j2+1}, 16, v{tmp+8*s+2*j2}")
    lds_wait(6, 4, vSy, vU + 4, sT0)
    for tt in range(2):
        build_btile(vWO + 16 * tt, L_WT + tt * 32, 4, 64)
    for tt in range(2):
        build_btile(vW2 + 8 * tt, L_W2T + tt * 32, 2, 64)
    a.label("L_h_notile")
    a(f"s_cmp_eq_u32 s{sHW}, 3")
    a("s_cbranch_scc1 L_h3")
    a(f"s_cmp_eq_u32 s{sHW}, 0")
    a("s_cbranch_scc0 L_h_ffn2")
    a(f"s_cmp_lt_u32 s{sH}, 4")
    a("s_cbranch_scc0 L_h_ffn2")
    a.label("L_fflag")
    a(f"global_load_dword v{vU+1}, v{vL4}, {P2(sDBG)} sc1")
    a(f"v_and_b32 v{vU+2}, 16, v{vLane}")
    a(f"v_lshrrev_b32 v{vU+2}, 1, v{vU+2}")
    a("s_waitcnt vmcnt(0)")
    a(f"v_add_u32 v{vU+1}, v{vU+1}, v{vU+2}")
    a(f"v_cmp_gt_u32 vcc, 8, v{vU+1}")
    a("s_nop 4")
    a("s_cbranch_vccz L_h_ffn2")
    a("s_sleep 8")
    spin_timeout("L_fflag")
    a("s_branch L_h_ffn2")

    a.label("L_h3")
    vW1 = 32
    vXq = 112
    vHA = 128
    vHG = 32
    vHa = 112
    if skipffn:
        a("s_branch L_h_tailprep")
    srd(SRD_B, sW1, 640 * 3456)
    a(f"s_mul_i32 s{sOff}, s{sG}, {80*3456}")
    a(f"s_lshl_b32 s{sT0}, s{sH}, 7")
    a(f"s_add_u32 s{sOff}, s{sOff}, s{sT0}")
    a(f"s_cmp_lt_u32 s{sH}, 27")
    a(f"s_cselect_b32 s{sOff}, s{sOff}, 0x7f000000")
    for q4 in range(80 // w1b):
        for i in range(w1b):
            a(f"buffer_load_ushort v{vW1+w1b*q4+i}, v{vL2}, {P4(SRD_B)}, s{sOff} offen {pol}")
            a(f"s_add_u32 s{sOff}, s{sOff}, 3456")
        a("s_waitcnt vmcnt(0)")
    for b in range(4):
        a(f"v_mov_b32 v{vHA+b}, 0")
    a(f"s_mul_i32 s{sT0}, s{sG}, 320")
    a(f"v_mov_b32 v{vU}, s{sT0}")
    for q4 in range(20):
        for b in range(4):
            a(f"ds_read_b128 {V(vXq+4*b,4)}, v{vU} offset:{L_XN+b*2560+16*q4}")
        for r in range(4):
            a(f"v_lshlrev_b32 v{vW1+4*q4+r}, 16, v{vW1+4*q4+r}")
        a("s_waitcnt lgkmcnt(0)")
        for r in range(4):
            for b in range(4):
                a(f"v_fmac_f32 v{vHA+b}, v{vXq+4*b+r}, v{vW1+4*q4+r}")
    a(f"s_add_u32 s{sT0}, s{sIdx}, {OB_HP}")
    a(f"v_add_u32 v{vU+1}, s{sT0}, v{vL4}")
    for b in range(4):
        a(f"global_store_dword v{vU+1}, v{vHA+b}, {P2(sWS)} offset:{b*256} sc1")
    a(f"s_cmp_lt_u32 s{sG}, 5")
    a("s_cbranch_scc0 L_h_tailprep")
    srd(SRD_B, sB1, 1728 * 2)
    a(f"s_lshl_b32 s{sT0}, s{sH}, 7")
    a(f"buffer_load_ushort v{vU+3}, v{vL2}, {P4(SRD_B)}, s{sT0} offen")
    for g_ in range(8):
        a(f"s_add_u32 s{sT0}, s{sHeadW}, {OB_HP+g_*8192}")
        a(f"v_add_u32 v{vHa+g_}, s{sT0}, v{vL4}")
    a(f"v_and_b32 v{vU+5}, 7, v{vLane}")
    a(f"v_lshlrev_b32 v{vU+5}, 13, v{vU+5}")
    a(f"s_add_u32 s{sT0}, s{sHeadW}, {OB_HP+3*256}")
    a(f"v_add_u32 v{vU+5}, s{sT0}, v{vU+5}")
    a("s_mov_b64 exec, 0xff")
    a.label("L_hlp")
    a(f"global_load_dword v{vU+6}, v{vU+5}, {P2(sWS)} sc1")
    a("s_waitcnt vmcnt(0)")
    a(f"v_cmp_eq_u32 vcc, -1, v{vU+6}")
    a("s_nop 4")
    a("s_cbranch_vccz L_hlpok")
    a("s_sleep 32")
    spin_timeout("L_hlp")
    a.label("L_hlpok")
    a("s_mov_b64 exec, -1")
    a.label("L_hg")
    for b in range(4):
        for g_ in range(8):
            a(f"global_load_dword v{vHG+8*b+g_}, v{vHa+g_}, {P2(sWS)} offset:{b*256} sc1")
    a("s_waitcnt vmcnt(0)")
    sentinel_check(range(vHG, vHG + 32), vU + 4)
    a("s_cbranch_vccz L_hgok")
    a("s_sleep 16")
    spin_timeout("L_hg")
    a.label("L_hgok")
    a(f"v_lshlrev_b32 v{vU+3}, 16, v{vU+3}")
    for b in range(4):
        r = vHG + 8 * b
        for g_ in range(1, 8):
            a(f"v_add_f32 v{r}, v{r}, v{r+g_}")
        rnd_bf16(r, r)
        a(f"v_add_f32 v{r}, v{r}, v{vU+3}")
        rnd_bf16(r, r)
        a(f"v_max_f32 v{r}, 0, v{r}")
        a(f"v_mul_f32 v{r}, v{r}, v{r}")
        a(f"v_cvt_pk_bf16_f32 v{r}, v{r}, v{r}")
        a(f"ds_write_b16 v{vL2}, v{r} offset:{L_HB+b*128}")
    lds_arrive(7, vSy, vOne)
    a.label("L_h_ffn2")
    a(f"s_cmp_lt_u32 s{sG}, 5")
    a("s_cbranch_scc0 L_h_tailprep")
    vHAo = 132
    if not skipffn:
        lds_wait(7, 1, vSy, vU + 4, sT0, sleep=32)
    a(f"v_and_b32 v{vU}, 3, v{vLane}")
    a(f"v_lshlrev_b32 v{vU}, 7, v{vU}")
    a(f"v_lshrrev_b32 v{vU+1}, 4, v{vLane}")
    a(f"v_lshlrev_b32 v{vU+1}, 4, v{vU+1}")
    a(f"v_add_u32 v{vU}, v{vU}, v{vU+1}")
    a(f"ds_read_b128 {V(vHAo,4)}, v{vU} offset:{L_HB}")
    a(f"ds_read_b128 {V(vHAo+4,4)}, v{vU} offset:{L_HB+64}")
    for i in range(8):
        a(f"v_mov_b32 v{vY+i}, 0")
    a("s_waitcnt lgkmcnt(0)")
    for s in range(2):
        for tt in range(2):
            a(f"v_mfma_f32_16x16x32_bf16 {V(vY+4*tt,4)}, {V(vHAo+4*s,4)}, {V(vW2+8*tt+4*s,4)}, {V(vY+4*tt,4)}")

    a.label("L_h_tailprep")
    vA0, vA1, vMlA, vPub, vMlP, vMlG, vDbG, vDbO, vOaW, vOaR, vYp = 8, 9, 10, 11, 12, 13, 14, 15, 16, 17, 18
    vGa2 = 20
    vMl2, vC, vLs, vMx = 28, 30, 31, 32
    vOo = 34
    vZ = 38
    vOv = 64
    vGg = 64
    vAo = 96
    a(f"s_lshl_b32 s{sT0}, s{sHW}, 11")
    a(f"s_add_u32 s{sT0}, s{sT0}, {L_OST}")
    a(f"v_lshlrev_b32 v{vZ}, 3, v{vLane}")
    a(f"v_add_u32 v{vA0}, s{sT0}, v{vZ}")
    a(f"v_add_u32 v{vA1}, {2*L_LPW}, v{vA0}")
    a(f"v_and_b32 v{vZ+1}, 15, v{vLane}")
    a(f"v_lshlrev_b32 v{vMlA}, 3, v{vZ+1}")
    a(f"s_lshl_b32 s{sT0}, s{sHW}, 7")
    a(f"v_add_u32 v{vMlA}, s{sT0}, v{vMlA}")
    a(f"s_lshl_b32 s{sT0}, s{sHW}, 9")
    a(f"s_add_u32 s{sT1}, s{sIdx}, s{sT0}")
    a(f"s_add_u32 s{sT1}, s{sT1}, {OB_OP}")
    a(f"v_add_u32 v{vPub}, s{sT1}, v{vZ}")
    a(f"s_add_u32 s{sT1}, s{sHeadW}, s{sT0}")
    for g_ in range(8):
        a(f"s_add_u32 s{sT2}, s{sT1}, {OB_OP+g_*8192}")
        a(f"v_add_u32 v{vGa2+g_}, s{sT2}, v{vZ}")
    a(f"s_lshl_b32 s{sT0}, s{sH}, 2")
    a(f"s_add_u32 s{sT0}, s{sT0}, s{sHW}")
    a(f"s_lshl_b32 s{sT1}, s{sT0}, 6")
    a(f"s_add_u32 s{sT1}, s{sT1}, {WS_OPML}")
    a(f"s_lshl_b32 s{sT2}, s{sG}, 3")
    a(f"s_add_u32 s{sT2}, s{sT2}, s{sT1}")
    a(f"v_mov_b32 v{vMlP}, s{sT2}")
    a(f"v_and_b32 v{vZ+2}, 7, v{vLane}")
    a(f"v_lshlrev_b32 v{vMlG}, 3, v{vZ+2}")
    a(f"v_add_u32 v{vMlG}, s{sT1}, v{vMlG}")
    a(f"v_lshlrev_b32 v{vDbG}, 13, v{vZ+2}")
    a(f"s_add_u32 s{sT2}, s{sHeadW}, {OB_DB}")
    a(f"v_add_u32 v{vDbG}, s{sT2}, v{vDbG}")
    a(f"s_add_u32 s{sT2}, s{sIdx}, {OB_DB}")
    a(f"v_mov_b32 v{vDbO}, s{sT2}")
    a(f"s_lshl_b32 s{sT0}, s{sHW}, 8")
    a(f"v_add_u32 v{vOaW}, s{sT0}, v{vL4}")
    a(f"v_and_b32 v{vOaR}, 3, v{vLane}")
    a(f"v_lshlrev_b32 v{vOaR}, 8, v{vOaR}")
    a(f"v_lshrrev_b32 v{vZ+2}, 4, v{vLane}")
    a(f"v_lshlrev_b32 v{vZ+2}, 4, v{vZ+2}")
    a(f"v_add_u32 v{vOaR}, v{vOaR}, v{vZ+2}")
    a(f"v_lshlrev_b32 v{vYp}, 2, v{vZ+1}")
    a(f"s_lshl_b32 s{sT0}, s{sHW}, 7")
    a(f"s_add_u32 s{sT0}, s{sT0}, s{sIdx}")
    a(f"s_add_u32 s{sT0}, s{sT0}, {OB_YP}")
    a(f"v_add_u32 v{vYp}, s{sT0}, v{vYp}")
    a(f"s_mov_b32 s{sSpin}, {spin_cap}")
    stamp(1)
    a("s_waitcnt vmcnt(0) lgkmcnt(0)")
    a("s_barrier")
    stamp(6)
    tstamp(1)
    a(f"ds_read_b64 {V(vMl2,2)}, v{vMlA} offset:{L_ML}")
    for i in range(16):
        w_ = i >> 2
        if i == 14:
            a("s_waitcnt lgkmcnt(14)")
        a(f"ds_read_b64 {V(vOv+2*i,2)}, v{vA0 if w_ < 2 else vA1} offset:{(w_&1)*L_LPW+(i&3)*512}")
    def merge_coef(dup):
        a(f"v_mov_b32 v{vMx}, v{vMl2}")
        row_allreduce("v_max_f32", [vMx])
        a(f"v_sub_f32 v{vC}, v{vMl2}, v{vMx}")
        a(f"v_exp_f32 v{vC}, v{vC}")
        a("s_nop 0")
        a(f"v_mul_f32 v{vLs}, v{vC}, v{vMl2+1}")
        row_allreduce("v_add_f32", [vLs])
        if dup:
            a(f"v_mul_f32 v{vLs}, 0.5, v{vLs}")
    def merge_o(n, base):
        for i in range(4):
            a(f"v_mov_b32 v{vOo+i}, 0")
        for i in range(n):
            for e in range(2):
                a(f"v_fmac_f32_dpp v{vOo+2*(i&1)+e}, v{vC}, v{base+2*i+e} row_newbcast:{i} {DPPM}")
        a(f"v_pk_add_f32 {V(vOo,2)}, {V(vOo,2)}, {V(vOo+2,2)}")
    merge_coef(False)
    a("s_waitcnt lgkmcnt(0)")
    merge_o(16, vOv)
    a(f"global_store_dwordx2 v{vPub}, {V(vOo,2)}, {P2(sWS)} sc1")
    a(f"v_mov_b32 v{vZ+2}, v{vMx}")
    a(f"v_mov_b32 v{vZ+3}, v{vLs}")
    assert (vZ + 2) % 2 == 0
    a("s_mov_b64 exec, 1")
    a(f"global_store_dwordx2 v{vMlP}, {V(vZ+2,2)}, {P2(sWS)} sc1")
    a(f"ds_add_rtn_u32 v{vZ+4}, v{vSy}, v{vOne} offset:32")
    a("s_waitcnt lgkmcnt(0)")
    a(f"v_readfirstlane_b32 s{sT3}, v{vZ+4}")
    a("s_nop 1")
    a(f"s_cmp_eq_u32 s{sT3}, 3")
    a("s_cbranch_scc0 L_t_nodb")
    a(f"global_store_dword v{vDbO}, v{vOne}, {P2(sWS)} sc1")
    a.label("L_t_nodb")
    a("s_mov_b64 exec, -1")
    tstamp(2)
    a(f"s_cmp_lt_u32 s{sG}, 5")
    a("s_cbranch_scc0 L_fin_stamp")
    a(f"s_cmp_eq_u32 s{sHW}, 3")
    a("s_cbranch_scc0 L_dbok")
    a("s_mov_b64 exec, 0xff")
    a.label("L_dbpoll")
    a(f"global_load_dword v{vZ+5}, v{vDbG}, {P2(sWS)} sc1")
    a("s_waitcnt vmcnt(0)")
    a(f"v_cmp_eq_u32 vcc, 1, v{vZ+5}")
    a("s_nop 4")
    a(f"s_bcnt1_i32_b64 s{sT3}, vcc")
    a(f"s_cmp_ge_u32 s{sT3}, {dbneed}")
    a("s_cbranch_scc1 L_dbok2")
    if opoll_sleep:
        a(f"s_sleep {opoll_sleep}")
    spin_timeout("L_dbpoll")
    a.label("L_dbok2")
    a("s_mov_b64 exec, -1")
    a.label("L_dbok")
    a("s_barrier")
    a.label("L_opoll")
    tstamp(3)
    a(f"global_load_dwordx2 {V(vMl2,2)}, v{vMlG}, {P2(sWS)} sc1")
    for g_ in range(8):
        a(f"global_load_dwordx2 {V(vGg+2*g_,2)}, v{vGa2+g_}, {P2(sWS)} sc1")
    a("s_waitcnt vmcnt(0)")
    sentinel_check([vMl2, vMl2 + 1] + list(range(vGg, vGg + 16)), vZ + 2)
    a("s_cbranch_vccz L_ook")
    spin_timeout("L_opoll")
    a.label("L_ook")
    stamp(7)
    tstamp(4)
    merge_coef(True)
    a(f"v_rcp_f32 v{vLs}, v{vLs}")
    merge_o(8, vGg)
    a(f"v_pk_mul_f32 {V(vOo,2)}, {V(vOo,2)}, {V(vLs-1,2)} op_sel:[0,1] op_sel_hi:[1,1]")
    assert (vLs - 1) % 2 == 0
    a(f"v_cvt_pk_bf16_f32 v{vOo}, v{vOo}, v{vOo+1}")
    a(f"ds_write_b32 v{vOaW}, v{vOo} offset:{L_OA}")
    a("s_waitcnt lgkmcnt(0)")
    a("s_barrier")
    tstamp(5)
    for s in range(4):
        a(f"ds_read_b128 {V(vAo+4*s,4)}, v{vOaR} offset:{L_OA+64*s}")
    for s in range(4):
        a(f"s_waitcnt lgkmcnt({3-s})")
        for tt in range(2):
            a(f"v_mfma_f32_16x16x32_bf16 {V(vY+4*tt,4)}, {V(vAo+4*s,4)}, {V(vWO+16*tt+4*s,4)}, {V(vY+4*tt,4)}")
    a("s_mov_b64 exec, 0xffff")
    a("s_nop 7")
    for tt in range(2):
        for b in range(4):
            a(f"global_store_dword v{vYp}, v{vY+4*tt+b}, {P2(sWS)} offset:{b*512+tt*64} sc1")
    a("s_mov_b64 exec, -1")
    tstamp(6)
    a(f"s_cmp_lt_u32 s{sH}, 4")
    a("s_cbranch_scc0 L_fin_stamp")
    a("s_branch L_final")

    a.label("L_final_pre")
    a("s_barrier")
    a("s_barrier")
    a.label("L_final")
    vFa, vFx, vF0, vY_ = 2, 4, 8, 30
    vZ2 = 30
    a(f"v_lshrrev_b32 v{vZ2}, 4, v{vLane}")
    a(f"v_lshlrev_b32 v{vZ2}, 2, v{vZ2}")
    a(f"s_lshl_b32 s{sT0}, s{sWave}, 4")
    a(f"v_add_u32 v{vZ2}, s{sT0}, v{vZ2}")
    a(f"v_and_b32 v{vZ2+1}, 15, v{vLane}")
    a(f"v_lshlrev_b32 v{vFa}, 16, v{vZ2+1}")
    a(f"v_lshlrev_b32 v{vZ2+2}, 2, v{vZ2}")
    a(f"v_add_u32 v{vFa}, v{vFa}, v{vZ2+2}")
    a(f"s_lshl_b32 s{sT1}, s{sG}, 13")
    a(f"s_lshl_b32 s{sT0}, s{sH}, 9")
    a(f"s_add_u32 s{sT1}, s{sT1}, s{sT0}")
    a(f"s_add_u32 s{sT1}, s{sT1}, {WS_OB+OB_YP}")
    a(f"v_add_u32 v{vFa}, s{sT1}, v{vFa}")
    a(f"v_add_u32 v{vFa+1}, {16*65536}, v{vFa}")
    a(f"s_lshl_b32 s{sT2}, s{sG}, 7")
    a(f"v_add_u32 v{vZ2}, s{sT2}, v{vZ2}")
    a(f"v_lshlrev_b32 v{vZ2}, 1, v{vZ2}")
    a(f"s_mul_i32 s{sT3}, s{sH}, 1280")
    a(f"v_add_u32 v{vZ2+3}, s{sT3}, v{vZ2}")
    a(f"global_load_dwordx2 {V(vFx,2)}, v{vZ2+3}, {P2(sX)}")
    a(f"global_load_dwordx2 {V(vFx+2,2)}, v{vZ2}, {P2(sB2)}")
    a(f"s_mov_b32 s{sSpin}, {spin_cap}")
    a.label("L_ypoll")
    a(f"global_load_dwordx4 {V(vF0,4)}, v{vFa}, {P2(sWS)} sc1")
    a(f"global_load_dwordx4 {V(vF0+4,4)}, v{vFa+1}, {P2(sWS)} sc1")
    a("s_waitcnt vmcnt(0)")
    sentinel_check(range(vF0, vF0 + 8), vZ2 + 4)
    a("s_cbranch_vccz L_yok")
    spin_timeout("L_ypoll")
    a.label("L_yok")
    tstamp(7)
    for i in range(4):
        a(f"v_add_f32 v{vF0+i}, v{vF0+i}, v{vF0+4+i}")
    row_allreduce("v_add_f32", [vF0, vF0+1, vF0+2, vF0+3])
    for j in range(2):
        a(f"v_lshlrev_b32 v{vZ2+4}, 16, v{vFx+j}")
        a(f"v_and_b32 v{vZ2+5}, s{sMask}, v{vFx+j}")
        a(f"v_add_f32 v{vF0+2*j}, v{vF0+2*j}, v{vZ2+4}")
        a(f"v_add_f32 v{vF0+2*j+1}, v{vF0+2*j+1}, v{vZ2+5}")
        a(f"v_lshlrev_b32 v{vZ2+4}, 16, v{vFx+2+j}")
        a(f"v_and_b32 v{vZ2+5}, s{sMask}, v{vFx+2+j}")
        a(f"v_add_f32 v{vF0+2*j}, v{vF0+2*j}, v{vZ2+4}")
        a(f"v_add_f32 v{vF0+2*j+1}, v{vF0+2*j+1}, v{vZ2+5}")
    a(f"v_cvt_pk_bf16_f32 v{vF0+4}, v{vF0}, v{vF0+1}")
    a(f"v_cvt_pk_bf16_f32 v{vF0+5}, v{vF0+2}, v{vF0+3}")
    a("s_mov_b32 exec_lo, 0x00010001")
    a("s_mov_b32 exec_hi, 0x00010001")
    a(f"global_store_dwordx2 v{vZ2+3}, {V(vF0+4,2)}, {P2(sOUT)}")
    a("s_mov_b64 exec, -1")
    a.label("L_fin_stamp")
    if stamps:
        a("s_memrealtime s[4:5]")
        a("s_waitcnt lgkmcnt(0)")
        a(f"s_lshl_b32 s{sT0}, s2, 3")
        a(f"s_add_u32 s{sT0}, s{sT0}, s{sWave}")
        a(f"s_lshl_b32 s{sT0}, s{sT0}, 6")
        a(f"s_add_u32 s{sT0}, s{sT0}, {WS_STAMP}")
        a(f"v_mov_b32 v2, s{sT0}")
        for i in range(8):
            a(f"v_mov_b32 v{8+i}, s{STAMP0+2*i}")
        a("v_mov_b32 v16, s4")
        a("s_getreg_b32 s6, hwreg(HW_REG_XCC_ID)")
        a("v_mov_b32 v17, s6")
        a(f"v_mov_b32 v18, s{sN}")
        a("v_mov_b32 v19, 0")
        a("s_mov_b64 exec, 1")
        a(f"global_store_dwordx4 v2, v[8:11], {P2(sWS)}")
        a(f"global_store_dwordx4 v2, v[12:15], {P2(sWS)} offset:16")
        a(f"global_store_dwordx4 v2, v[16:19], {P2(sWS)} offset:32")
    a.label("L_end")
    a("s_endpgm")
    a.raw('.section .rodata,"a"')
    a.raw(".p2align 6")
    a.raw(f".amdhsa_kernel {KNAME}")
    a.raw("  .amdhsa_next_free_vgpr 256")
    a.raw("  .amdhsa_next_free_sgpr 102")
    a.raw("  .amdhsa_accum_offset 256")
    a.raw("  .amdhsa_group_segment_fixed_size 0")
    a.raw("  .amdhsa_kernarg_size 104")
    a.raw("  .amdhsa_user_sgpr_count 2")
    a.raw("  .amdhsa_user_sgpr_kernarg_segment_ptr 1")
    a.raw("  .amdhsa_system_sgpr_workgroup_id_x 1")
    a.raw(".end_amdhsa_kernel")
    return "\n".join(x for x in a.L if x is not None) + "\n"

if __name__ == "__main__":
    import argparse, ast
    ap = argparse.ArgumentParser()
    ap.add_argument("-o", default="k.s")
    ap.add_argument("kv", nargs="*")
    args = ap.parse_args()
    kw = {}
    for x in args.kv:
        k, v = x.split("=")
        try: v = ast.literal_eval(v)
        except Exception: pass
        kw[k] = v
    open(args.o, "w").write(gen(**kw))
```

```python
import struct, math

KNAME = "parallel_sum__gqa_block_cached__dense_activation_squared_relu__decode_kernel"

WS_CTR = 0x20000
WS_OPML = 0x10000
WS_OB = 0x100000
OB_QP, OB_OP, OB_HP, OB_YP, OB_DB, OB_GO = 0, 2048, 4096, 5120, 7168, 7296
OB_FILL = 8
WS_STAMP = 0x300000
L_XN = 0
L_QPART = 10240
L_QB = 18432
L_HB = 19456
L_OA = 19968
L_SYNC = 20992
L_ML = 21248
L_WT = 22528
L_W2T = 55296
L_OST = 71680

NEG_MAX = 0xFF7FFFFF
def f2u(x): return struct.unpack("<I", struct.pack("<f", x))[0]
C_SCALE = f2u((128 ** -0.5) * math.log2(math.e))
SCALE_ONLY = f2u(128 ** -0.5)
LOG2E = f2u(math.log2(math.e))
INV640 = f2u(1.0 / 640.0)
EPS = f2u(1e-5)

class Asm:
    def __init__(self):
        self.L = []
        self.uid = 0
    def __call__(self, s):
        self.L.append("  " + s)
    def label(self, s):
        self.L.append(s + ":")
    def u(self, base):
        self.uid += 1
        return f"{base}_{self.uid}"
    def raw(self, s):
        self.L.append(s)

def gen(dyn=True, S=48, stamps=False, pol="nt", NB=2, spin_cap=1 << 16, th=12, nocomp=0, sprof=0, hprio=3,
        qpoll_sleep=2, opoll_sleep=2, dbneed=7, NL=2, w1b=40, skipffn=0, skippost=0, mimic=1, cstride=256, prot=0, fastre=1):
    KL = 4
    NX = 6 - NB
    assert NL <= NX
    NXT = NX + NL
    NPRE = 6 + NL
    L_LPW = max(NL, 1) * 8192
    L_TOTAL = L_OST + 4 * L_LPW
    CH = KL * 4096
    NCH = (1 << 20) // CH
    if not dyn:
        S = NCH
    P = NCH - S
    logP = P.bit_length() - 1 if P else 0
    assert (P & (P - 1)) == 0
    D = 8 * P * 4
    logPW = logP + 2
    a = Asm()
    a.raw("; @launch grid=(256,1,1) block=(512,1,1) lds=%d" % L_TOTAL)
    a.raw('.amdgcn_target "amdgcn-amd-amdhsa--gfx950"')
    a.raw(".text")
    a.raw(f".globl {KNAME}")
    a.raw(".p2align 8")
    a.raw(f".type {KNAME},@function")
    a.label(KNAME)

    sX, sK, sV, sWQ, sWO, sW1, sB1, sW2, sB2, sOUT, sDBG, sWS = 16, 18, 20, 22, 24, 28, 30, 32, 34, 36, 38, 40
    sWave, sH, sG, sHW = 42, 43, 44, 45
    sMask, sC = 46, 47
    SRD_K, SRD_V, SRD_A, SRD_B = 48, 52, 56, 60
    sStatic, sHeadW, sIdx, sN, sNT, sOff, sCur, sBn, sXc = 64, 65, 66, 67, 68, 69, 70, 71, 72
    sBq = [73, 74, 75]
    sT0, sT1, sT2, sT3, sT4 = 76, 77, 78, 79, 6
    sRet = 80
    sSpin = 83
    STAMP0 = 84
    def P2(s): return f"s[{s}:{s+1}]"
    def P4(s): return f"s[{s}:{s+3}]"
    def _st(i): a(f"s_memrealtime s[{STAMP0+2*i}:{STAMP0+2*i+1}]")
    def stamp(i):
        if stamps and (not sprof or i == 0): _st(i)
    def sstamp(i):
        if stamps and sprof == 1: _st(i)
    def tstamp(i):
        if stamps and sprof == 2: _st(i)
    def V(n, cnt=1):
        return f"v{n}" if cnt == 1 else f"v[{n}:{n+cnt-1}]"
    DPPM = "row_mask:0xf bank_mask:0xf"
    def row_allreduce(op, regs, nop_first=True):
        steps = ["quad_perm:[1,0,3,2]", "quad_perm:[2,3,0,1]", "row_half_mirror", "row_mirror"]
        need = max(0, 2 - (len(regs) - 1))
        if nop_first:
            a("s_nop 1")
        for si, st in enumerate(steps):
            for r in regs:
                a(f"{op}_dpp v{r}, v{r}, v{r} {st} {DPPM}")
            if need and si < 3:
                a(f"s_nop {need-1}")
    def wave_sum_to_sgpr(r, sdst):
        row_allreduce("v_add_f32", [r])
        a("s_nop 1")
        a(f"v_add_f32_dpp v{r}, v{r}, v{r} row_bcast:15 row_mask:0xa bank_mask:0xf")
        a("s_nop 1")
        a(f"v_add_f32_dpp v{r}, v{r}, v{r} row_bcast:31 row_mask:0xc bank_mask:0xf")
        a("s_nop 1")
        a(f"v_readlane_b32 s{sdst}, v{r}, 63")
    def rnd_bf16(dst, src):
        a(f"v_cvt_pk_bf16_f32 v{dst}, v{src}, v{src}")
        a(f"v_and_b32 v{dst}, s{sMask}, v{dst}")
    def spin_timeout(lbl_retry):
        d = a.u("L_to")
        a(f"s_cmp_eq_u32 s{sSpin}, 0")
        a(f"s_cbranch_scc1 {d}")
        a(f"s_sub_u32 s{sSpin}, s{sSpin}, 1")
        a(f"s_branch {lbl_retry}")
        a.label(d)
    def lds_arrive(k, vaddr, vone):
        a("s_mov_b64 exec, 1")
        a(f"ds_add_u32 v{vaddr}, v{vone} offset:{4*k}")
        a("s_mov_b64 exec, -1")
    def lds_wait(k, target, vaddr, vtmp, stmp, sleep=1):
        l = a.u("L_lw")
        ok = a.u("L_lwok")
        a.label(l)
        a(f"ds_read_b32 v{vtmp}, v{vaddr} offset:{4*k}")
        a("s_waitcnt lgkmcnt(0)")
        a(f"v_readfirstlane_b32 s{stmp}, v{vtmp}")
        a("s_nop 1")
        a(f"s_cmp_ge_u32 s{stmp}, {target}")
        a(f"s_cbranch_scc1 {ok}")
        if sleep:
            a(f"s_sleep {sleep}")
        spin_timeout(l)
        a.label(ok)
    def srd(base, sptr, nrec):
        a(f"s_mov_b32 s{base}, s{sptr}")
        a(f"s_mov_b32 s{base+1}, s{sptr+1}")
        a(f"s_mov_b32 s{base+2}, {nrec}")
        a(f"s_mov_b32 s{base+3}, 0x20000")
    def sentinel_check(regs, vtmp):
        regs = list(regs)
        a(f"v_max3_u32 v{vtmp}, v{regs[0]}, v{regs[1]}, v{regs[2]}")
        i = 3
        while i + 1 < len(regs):
            a(f"v_max3_u32 v{vtmp}, v{vtmp}, v{regs[i]}, v{regs[i+1]}")
            i += 2
        if i < len(regs):
            a(f"v_max_u32 v{vtmp}, v{vtmp}, v{regs[i]}")
        a(f"v_cmp_eq_u32 vcc, -1, v{vtmp}")
        a("s_nop 4")

    vLane = 1
    a("s_cmp_ge_u32 s2, 256")
    a("s_cbranch_scc1 L_end")
    a("s_load_dwordx16 s[16:31], s[0:1], 0")
    a("s_load_dwordx8 s[32:39], s[0:1], 64")
    a("s_load_dwordx2 s[40:41], s[0:1], 96")
    stamp(0)
    a("v_lshrrev_b32 v2, 6, v0")
    a(f"v_and_b32 v{vLane}, 63, v0")
    a(f"v_readfirstlane_b32 s{sWave}, v2")
    a(f"s_lshr_b32 s{sH}, s2, 3")
    a(f"s_and_b32 s{sG}, s2, 7")
    a(f"s_mov_b32 s{sMask}, 0xffff0000")
    a(f"s_mov_b32 s{sC}, 0x{(LOG2E if mimic else C_SCALE):08x}")
    if mimic:
        a(f"s_mov_b32 s82, 0x{SCALE_ONLY:08x}")
    a(f"s_mov_b32 s{sSpin}, {spin_cap}")
    a(f"v_lshlrev_b32 v3, 2, v{vLane}")
    a("v_mov_b32 v4, 0")
    a(f"s_cmp_eq_u32 s{sWave}, 4")
    a("s_cbranch_scc0 L_nosyinit")
    a(f"ds_write_b32 v3, v4 offset:{L_SYNC}")
    a.label("L_nosyinit")
    a("s_waitcnt lgkmcnt(0)")
    a("s_barrier")
    sstamp(1)
    a(f"s_cmp_lt_u32 s{sWave}, 4")
    a("s_cbranch_scc1 L_swave")

    vL16, vL4, vXo, vXo2, vSy, vOne = 2, 3, 4, 5, 6, 7
    vXr = 8
    vE = 16
    vW = 32
    vXN = 64
    vAcc = 144
    vU = 152
    vWO = 172
    vBo = 204
    vL2 = 205
    vW2 = 208
    vY = 224
    if hprio:
        a(f"s_setprio {hprio}")
    a(f"s_sub_u32 s{sHW}, s{sWave}, 4")
    a(f"v_lshlrev_b32 v{vL16}, 4, v{vLane}")
    a(f"s_mul_i32 s{sT0}, s{sHW}, 1280")
    a(f"v_add_u32 v{vXo}, s{sT0}, v{vL16}")
    a(f"v_add_u32 v{vXo2}, s{sT0}, v{vL4}")
    a(f"global_load_dwordx4 {V(vXr,4)}, v{vXo}, {P2(sX)}")
    a(f"global_load_dword v{vXr+4}, v{vXo2}, {P2(sX)} offset:1024")
    a(f"s_mul_i32 s{sT1}, s{sG}, 80")
    a(f"s_mul_i32 s{sT2}, s{sHW}, 20")
    a(f"s_add_u32 s{sStatic}, s{sT1}, s{sT2}")
    a(f"s_lshl_b32 s{sOff}, s{sStatic}, 13")
    a(f"s_lshl_b32 s{sT2}, s{sH}, 8")
    a(f"s_add_u32 s{sOff}, s{sOff}, s{sT2}")
    srd(SRD_A, sWQ, 640 * 8192)
    for i in range(20):
        a(f"buffer_load_dword v{vW+i}, v{vL4}, {P4(SRD_A)}, s{sOff} offen {pol}")
        if i < 19:
            a(f"s_add_u32 s{sOff}, s{sOff}, 8192")
    sstamp(2)
    a(f"v_lshlrev_b32 v{vU}, 3, v{vLane}")
    a(f"s_lshl_b32 s{sIdx}, s2, 13")
    a(f"s_add_u32 s{sIdx}, s{sIdx}, {WS_OB}")
    a(f"s_lshl_b32 s{sHeadW}, s{sH}, 16")
    a(f"s_add_u32 s{sHeadW}, s{sHeadW}, {WS_OB}")
    a(f"s_lshl_b32 s{sT2}, s{sHW}, 9")
    a(f"s_add_u32 s{sT2}, s{sT2}, s{sIdx}")
    a(f"v_add_u32 v{vU+2}, s{sT2}, v{vU}")
    a(f"v_mov_b32 v{vSy}, {L_SYNC}")
    a(f"v_mov_b32 v{vOne}, 1")
    a("s_waitcnt vmcnt(20)")
    sstamp(3)
    for j in range(5):
        a(f"v_lshlrev_b32 v{vE+2*j}, 16, v{vXr+j}")
        a(f"v_and_b32 v{vE+2*j+1}, s{sMask}, v{vXr+j}")
    vt, vs, vMean, vR = vU + 10, vU + 12, vU + 13, vU + 14
    a(f"v_add_f32 v{vs}, v{vE}, v{vE+1}")
    for j in range(2, 10):
        a(f"v_add_f32 v{vs}, v{vs}, v{vE+j}")
    wave_sum_to_sgpr(vs, sT0)
    a("s_nop 1")
    a(f"v_mov_b32 v{vMean}, s{sT0}")
    a(f"v_mul_f32 v{vMean}, 0x{INV640:08x}, v{vMean}")
    a(f"v_sub_f32 v{vt}, v{vE}, v{vMean}")
    a(f"v_mul_f32 v{vs}, v{vt}, v{vt}")
    for j in range(1, 10):
        a(f"v_sub_f32 v{vt}, v{vE+j}, v{vMean}")
        a(f"v_fmac_f32 v{vs}, v{vt}, v{vt}")
    wave_sum_to_sgpr(vs, sT0)
    a("s_nop 1")
    a(f"v_mov_b32 v{vR}, s{sT0}")
    a(f"v_mul_f32 v{vR}, 0x{INV640:08x}, v{vR}")
    rnd_bf16(vR, vR)
    a(f"v_add_f32 v{vR}, 0x{EPS:08x}, v{vR}")
    rnd_bf16(vR, vR)
    a(f"v_sqrt_f32 v{vR}, v{vR}")
    a("s_nop 0")
    rnd_bf16(vR, vR)
    a(f"v_rcp_f32 v{vR}, v{vR}")
    rnd_bf16(vMean, vMean)
    for j in range(10):
        a(f"v_sub_f32 v{vE+j}, v{vE+j}, v{vMean}")
    for j in range(0, 10, 2):
        a(f"v_cvt_pk_bf16_f32 v{vt}, v{vE+j}, v{vE+j+1}")
        a(f"v_lshlrev_b32 v{vE+j}, 16, v{vt}")
        a(f"v_and_b32 v{vE+j+1}, s{sMask}, v{vt}")
    for j in range(10):
        a(f"v_mul_f32 v{vE+j}, v{vE+j}, v{vR}")
    for j in range(0, 10, 2):
        a(f"v_cvt_pk_bf16_f32 v{vt}, v{vE+j}, v{vE+j+1}")
        a(f"v_lshlrev_b32 v{vE+j}, 16, v{vt}")
        a(f"v_and_b32 v{vE+j+1}, s{sMask}, v{vt}")
    a(f"s_mul_i32 s{sT0}, s{sHW}, 2560")
    a(f"v_lshlrev_b32 v{vt}, 5, v{vLane}")
    a(f"v_add_u32 v{vt}, s{sT0}, v{vt}")
    a(f"v_add_u32 v{vt+1}, s{sT0}, v{vU}")
    a(f"ds_write_b128 v{vt}, {V(vE,4)} offset:{L_XN}")
    a(f"ds_write_b128 v{vt}, {V(vE+4,4)} offset:{L_XN+16}")
    a(f"ds_write_b64 v{vt+1}, {V(vE+8,2)} offset:{L_XN+2048}")
    lds_arrive(1, vSy, vOne)
    sstamp(4)
    a(f"s_lshl_b32 s{sT1}, s{sStatic}, 2")
    a(f"v_mov_b32 v{vt}, s{sT1}")
    for i in range(8):
        a(f"v_mov_b32 v{vAcc+i}, 0")
    lds_wait(1, 4, vSy, vt + 1, sT0)
    stamp(2)
    for b in range(4):
        for k in range(5):
            a(f"ds_read_b128 {V(vXN+b*20+4*k,4)}, v{vt} offset:{L_XN+b*2560+16*k}")
    a("s_waitcnt vmcnt(0) lgkmcnt(0)")
    sstamp(5)
    for i in range(20):
        t = vU + 10 + 2 * (i % 3)
        a(f"v_lshlrev_b32 v{t}, 16, v{vW+i}")
        a(f"v_and_b32 v{t+1}, s{sMask}, v{vW+i}")
        for b in range(4):
            x = vXN + b * 20 + i
            xb = x & ~1
            sel = "op_sel:[0,1,0] op_sel_hi:[1,1,1]" if (x & 1) else "op_sel_hi:[1,0,1]"
            a(f"v_pk_fma_f32 {V(vAcc+2*b,2)}, {V(t,2)}, {V(xb,2)}, {V(vAcc+2*b,2)} {sel}")
    a(f"s_lshl_b32 s{sT0}, s{sHW}, 11")
    a(f"v_add_u32 v{vU+1}, s{sT0}, v{vU}")
    for b in range(4):
        a(f"ds_write_b64 v{vU+1}, {V(vAcc+2*b,2)} offset:{L_QPART+b*512}")
    lds_arrive(2, vSy, vOne)
    a(f"s_lshl_b32 s{sT0}, s{sHW}, 9")
    a(f"v_add_u32 v{vU+1}, s{sT0}, v{vU}")
    lds_wait(2, 4, vSy, vU + 4, sT0)
    for w in range(4):
        a(f"ds_read_b64 {V(vAcc+2*w,2)}, v{vU+1} offset:{L_QPART+w*2048}")
    a("s_waitcnt lgkmcnt(0)")
    a(f"v_pk_add_f32 {V(vAcc,2)}, {V(vAcc,2)}, {V(vAcc+2,2)}")
    a(f"v_pk_add_f32 {V(vAcc+4,2)}, {V(vAcc+4,2)}, {V(vAcc+6,2)}")
    a(f"v_pk_add_f32 {V(vAcc,2)}, {V(vAcc,2)}, {V(vAcc+4,2)}")
    sstamp(6)
    lds_wait(0, 1, vSy, vU + 4, sT0)
    a(f"global_store_dwordx2 v{vU+2}, {V(vAcc,2)}, {P2(sWS)} sc1")
    stamp(3)
    sstamp(7)
    a(f"s_lshl_b32 s{sT2}, s{sHW}, 9")
    a(f"s_add_u32 s{sT2}, s{sT2}, s{sHeadW}")
    vGa = 80
    for g_ in range(8):
        a(f"s_add_u32 s{sT3}, s{sT2}, {g_*8192}")
        a(f"v_add_u32 v{vGa+g_}, s{sT3}, v{vU}")
    a(f"s_cmp_eq_u32 s{sHW}, 0")
    a("s_cbranch_scc0 L_h_b4")
    a(f"s_add_u32 s{sT0}, s{sIdx}, {OB_GO}")
    a(f"v_mov_b32 v{vU+4}, s{sT0}")
    a.label("L_qpoll")
    a(f"global_load_dword v{vU+6}, v{vU+4}, {P2(sWS)} sc1")
    a("s_waitcnt vmcnt(0)")
    a(f"v_readfirstlane_b32 s{sT1}, v{vU+6}")
    a("s_nop 1")
    a(f"s_cmp_eq_u32 s{sT1}, 1")
    a("s_cbranch_scc1 L_qok")
    a(f"s_sleep {qpoll_sleep}")
    spin_timeout("L_qpoll")
    a.label("L_qok")
    lds_arrive(4, vSy, vOne)
    a.label("L_h_b4")
    lds_wait(4, 1, vSy, vU + 4, sT0)
    stamp(4)
    vG = vXN
    a.label("L_qg")
    for g_ in range(8):
        a(f"global_load_dwordx2 {V(vG+2*g_,2)}, v{vGa+g_}, {P2(sWS)} sc1")
    a("s_waitcnt vmcnt(0)")
    sentinel_check(range(vG, vG + 16), vU + 4)
    a("s_cbranch_vccz L_qgok")
    spin_timeout("L_qg")
    a.label("L_qgok")
    for g_ in range(1, 8):
        a(f"v_pk_add_f32 {V(vG,2)}, {V(vG,2)}, {V(vG+2*g_,2)}")
    a(f"v_cvt_pk_bf16_f32 v{vU+4}, v{vG}, v{vG+1}")
    a(f"s_lshl_b32 s{sT0}, s{sHW}, 8")
    a(f"v_add_u32 v{vU+5}, s{sT0}, v{vL4}")
    a(f"ds_write_b32 v{vU+5}, v{vU+4} offset:{L_QB}")
    lds_arrive(5, vSy, vOne)
    stamp(5)
    a("s_branch L_h_post")

    a.label("L_swave")
    vOff, vOst, vMl, vQa = 2, 4, 5, 6
    vQ = 8
    vO = 12
    vM, vL = 20, 21
    vAl, vMn = 22, 23
    vS = 24
    vT = 28
    vTmp, vTk = 36, 38
    vSn = 40
    vTkt = [48, 49, 50]
    vCo = 51
    SRD_C = SRD_A
    RING = 64
    def buf(i): return RING + 32 * i
    def kslot(bb, i): return bb + 4 * i
    def vslot(bb, i): return bb + 16 + 4 * i
    def ldK(bb, soff):
        for i in range(KL):
            a(f"buffer_load_dwordx4 {V(kslot(bb,i),4)}, v{vOff}, {P4(SRD_K)}, s{soff} offen offset:{i*1024} {pol}")
    def ldV(bb, soff):
        for i in range(KL):
            a(f"buffer_load_dwordx4 {V(vslot(bb,i),4)}, v{vOff}, {P4(SRD_V)}, s{soff} offen offset:{i*1024} {pol}")
    a(f"v_lshlrev_b32 v{vOff}, 4, v{vLane}")
    a(f"s_cmp_eq_u32 s{sWave}, 0")
    a("s_cbranch_scc0 L_s_nop0")
    a("s_setprio 3")
    for i in range(4):
        a(f"v_mov_b32 v{vSn+i}, -1")
    a(f"s_lshl_b32 s{sT0}, s2, 13")
    a(f"s_add_u32 s{sT0}, s{sT0}, {WS_OB}")
    a(f"v_add_u32 v{vSn+4}, s{sT0}, v{vOff}")
    a(f"v_add_u32 v{vSn+5}, 4096, v{vSn+4}")
    for k in range(OB_FILL):
        a(f"global_store_dwordx4 v{vSn+4+(k>>2)}, {V(vSn,4)}, {P2(sWS)} offset:{(k&3)*1024} sc1")
    a(f"s_lshl_b32 s{sT0}, s{sH}, 8")
    a(f"s_lshl_b32 s{sT1}, s{sG}, 3")
    a(f"s_add_u32 s{sT1}, s{sT1}, s{sT0}")
    a(f"s_add_u32 s{sT1}, s{sT1}, {WS_OPML}")
    a(f"v_lshlrev_b32 v{vSn+6}, 6, v{vLane}")
    a(f"v_add_u32 v{vSn+6}, s{sT1}, v{vSn+6}")
    a(f"s_mul_i32 s{sT2}, s{sH}, {cstride}")
    a(f"s_add_u32 s{sT2}, s{sT2}, {WS_CTR}")
    a(f"v_mov_b32 v{vSn+7}, s{sT2}")
    a(f"v_mov_b32 v{vTmp}, 0")
    a("s_mov_b64 exec, 0xf")
    a(f"global_store_dwordx2 v{vSn+6}, {V(vSn,2)}, {P2(sWS)} sc1")
    a("s_mov_b64 exec, 1")
    a(f"s_cmp_eq_u32 s{sG}, 0")
    a("s_cbranch_scc0 L_noctr")
    a(f"global_store_dword v{vSn+7}, v{vTmp}, {P2(sWS)} sc1")
    a.label("L_noctr")
    a(f"s_lshr_b32 s{sT1}, s{sH}, 4")
    a(f"s_lshl_b32 s{sT1}, s{sT1}, 5")
    a(f"s_and_b32 s{sT2}, s{sH}, 15")
    a(f"s_add_u32 s{sT1}, s{sT1}, s{sT2}")
    a(f"s_lshl_b32 s{sT1}, s{sT1}, 2")
    a(f"v_mov_b32 v{vSn+6}, s{sT1}")
    a(f"v_mov_b32 v{vTmp}, 1")
    a(f"v_mov_b32 v{vTk}, {L_SYNC}")
    a("s_waitcnt vmcnt(0)")
    sstamp(3)
    a(f"global_atomic_add v{vSn+7}, v{vSn+6}, v{vTmp}, {P2(sDBG)} sc0")
    a(f"ds_write_b32 v{vTk}, v{vTmp}")
    a("s_waitcnt vmcnt(0)")
    a(f"v_readfirstlane_b32 s{sT0}, v{vSn+7}")
    a("s_mov_b64 exec, -1")
    a("s_nop 0")
    a(f"s_and_b32 s{sT0}, s{sT0}, 7")
    a(f"s_cmp_eq_u32 s{sT0}, 7")
    a("s_cbranch_scc0 L_s_nogo")
    a(f"s_lshl_b32 s{sT1}, s{sH}, 16")
    a(f"s_add_u32 s{sT1}, s{sT1}, {WS_OB+OB_GO}")
    a(f"v_lshlrev_b32 v{vSn+4}, 13, v{vLane}")
    a(f"v_add_u32 v{vSn+4}, s{sT1}, v{vSn+4}")
    a(f"v_mov_b32 v{vTmp}, 1")
    a("s_mov_b64 exec, 0xff")
    a(f"global_store_dword v{vSn+4}, v{vTmp}, {P2(sWS)} sc1")
    a("s_mov_b64 exec, -1")
    a.label("L_s_nogo")
    sstamp(4)
    a("s_setprio 0")
    a.label("L_s_nop0")
    a(f"s_lshl_b32 s{sHeadW}, s{sH}, 21")
    a(f"s_lshr_b32 s{sCur}, s{sG}, 1")
    a(f"s_lshl_b32 s{sT0}, s{sCur}, 26")
    a(f"s_and_b32 s{sT1}, s{sG}, 1")
    a(f"s_lshl_b32 s{sT1}, s{sT1}, 20")
    a(f"s_add_u32 s{sStatic}, s{sHeadW}, s{sT0}")
    a(f"s_add_u32 s{sStatic}, s{sStatic}, s{sT1}")
    a(f"s_lshl_b32 s{sT0}, s{sWave}, 12")
    a(f"s_add_u32 s{sStatic}, s{sStatic}, s{sT0}")
    a(f"s_mov_b32 s{sOff}, s{sStatic}")
    if stamps and sprof == 3:
        a("v_mov_b32 v52, 0")
        a("v_writelane_b32 v52, s84, 0")
    srd(SRD_K, sK, 0x10000000)
    srd(SRD_V, sV, 0x10000000)
    srd(SRD_C, sWS, 0x100000)
    a(f"v_mov_b32 v{vTk}, {L_SYNC}")
    a(f"s_mul_i32 s{sT0}, s{sH}, {cstride}")
    a(f"s_add_u32 s{sT0}, s{sT0}, {WS_CTR}")
    a(f"v_mov_b32 v{vCo}, s{sT0}")
    def ost_init():
        for i in range(4):
            a(f"v_mov_b32 v{vT+i}, 0")
        for b in range(4):
            a(f"ds_write_b128 v{vOst}, {V(vT,4)} offset:{b*2048}")
            a(f"ds_write_b128 v{vOst}, {V(vT,4)} offset:{b*2048+16}")
    def s_lds_init():
        a(f"s_mul_i32 s{sT0}, s{sWave}, {L_LPW}")
        a(f"v_lshlrev_b32 v{vOst}, 5, v{vLane}")
        a(f"v_add_u32 v{vOst}, s{sT0}, v{vOst}")
        a(f"v_add_u32 v{vOst}, {L_OST}, v{vOst}")
        a(f"v_lshrrev_b32 v{vMl}, 4, v{vLane}")
        a(f"s_lshl_b32 s{sT0}, s{sWave}, 2")
        a(f"v_add_u32 v{vMl}, s{sT0}, v{vMl}")
        a(f"v_lshlrev_b32 v{vMl}, 3, v{vMl}")
        a(f"v_add_u32 v{vMl}, {L_ML}, v{vMl}")
        a(f"v_and_b32 v{vQa}, 15, v{vLane}")
        a(f"v_lshlrev_b32 v{vQa}, 4, v{vQa}")
        a(f"v_add_u32 v{vQa}, {L_QB}, v{vQa}")
        for i in range(8):
            a(f"v_mov_b32 v{vO+i}, 0")
        a(f"v_mov_b32 v{vM}, 0x{NEG_MAX:08x}")
        a(f"v_mov_b32 v{vL}, 0")
        for b in range(4):
            a(f"ds_write_b64 v{vMl}, {V(vM,2)} offset:{b*128}")
        if NL == 0:
            ost_init()
    nld = 0
    th_ = min(th, 48)
    seq = [("r", i) for i in range(NX)] + [("l", j) for j in range(NL)] + [("r", NX + k) for k in range(NB)]
    a(f"s_mul_i32 s{sT4}, s{sWave}, {L_LPW}")
    a(f"s_add_u32 s{sT4}, s{sT4}, {L_OST}")
    for kind, bi in seq:
        for half, (srd_, slotf) in enumerate(((SRD_K, kslot), (SRD_V, vslot))):
            if kind == "l":
                a(f"s_add_u32 m0, s{sT4}, {bi*8192 + half*4096}")
            for i in range(KL):
                if nld >= th_:
                    a(f"s_waitcnt vmcnt({th_-1})")
                elif kind == "l" and i == 0:
                    a("s_nop 0")
                if kind == "r":
                    a(f"buffer_load_dwordx4 {V(slotf(buf(bi), i),4)}, v{vOff}, {P4(srd_)}, s{sOff} offen offset:{i*1024} {pol}")
                else:
                    a(f"buffer_load_dwordx4 v{vOff}, {P4(srd_)}, s{sOff} offen offset:{i*1024} {pol} lds")
                nld += 1
                if nld == th_:
                    sstamp(2)
        a(f"s_add_u32 s{sOff}, s{sOff}, {CH}")
    stamp(1)
    sstamp(5)
    s_lds_init()
    lds_wait(5, 4, vTk, vTmp, sT0)
    stamp(2)
    sstamp(6)
    a(f"s_lshl_b32 s{sT0}, s{sCur}, 8")
    a(f"v_add_u32 v{vTmp}, s{sT0}, v{vQa}")
    a(f"ds_read_b128 {V(vQ,4)}, v{vTmp}")
    a(f"s_mov_b32 s{sIdx}, {NPRE}")
    a(f"s_mov_b32 s{sN}, {NXT}")
    a(f"s_mov_b32 s{sNT}, {NCH if not dyn else 0x7fffffff}")
    for k in range(NB):
        a(f"s_mov_b32 s{sBq[k]}, s{sCur}")
    a(f"s_mov_b32 s{sXc}, 0")
    a("s_waitcnt lgkmcnt(0)")

    def qk(bb):
        if nocomp & 1:
            for i in range(KL):
                a(f"v_xor_b32 v{vS+i}, v{kslot(bb,i)}, v{kslot(bb,i)+3}")
            return
        for j in range(4):
            for i in range(KL):
                k = kslot(bb, i) + j
                if j == 0:
                    a(f"v_dot2_f32_bf16 v{vS+i}, v{k}, v{vQ+j}, 0")
                else:
                    a(f"v_dot2_f32_bf16 v{vS+i}, v{k}, v{vQ+j}, v{vS+i}")
    def softmax():
        if nocomp & 2:
            return
        row_allreduce("v_add_f32", [vS, vS+1, vS+2, vS+3], nop_first=False)
        if mimic:
            for rep in range(2):
                a(f"v_cvt_pk_bf16_f32 v{vT}, v{vS}, v{vS+1}")
                a(f"v_cvt_pk_bf16_f32 v{vT+1}, v{vS+2}, v{vS+3}")
                a(f"v_lshlrev_b32 v{vS}, 16, v{vT}")
                a(f"v_and_b32 v{vS+1}, s{sMask}, v{vT}")
                a(f"v_lshlrev_b32 v{vS+2}, 16, v{vT+1}")
                a(f"v_and_b32 v{vS+3}, s{sMask}, v{vT+1}")
                if rep == 0:
                    for i in range(4):
                        a(f"v_mul_f32 v{vS+i}, s82, v{vS+i}")
        a(f"v_max3_f32 v{vMn}, v{vS}, v{vS+1}, v{vS+2}")
        a(f"v_max_f32 v{vMn}, v{vMn}, v{vS+3}")
        a(f"v_mul_f32 v{vMn}, s{sC}, v{vMn}")
        a(f"v_max_f32 v{vMn}, v{vMn}, v{vM}")
        a(f"v_sub_f32 v{vAl}, v{vM}, v{vMn}")
        for i in range(4):
            a(f"v_fma_f32 v{vS+i}, v{vS+i}, s{sC}, -v{vMn}")
        a(f"v_exp_f32 v{vAl}, v{vAl}")
        for i in range(4):
            a(f"v_exp_f32 v{vS+i}, v{vS+i}")
        a(f"v_mov_b32 v{vM}, v{vMn}")
        a(f"v_fma_f32 v{vL}, v{vL}, v{vAl}, v{vS}")
        a(f"v_add_f32 v{vT}, v{vS+1}, v{vS+2}")
        a(f"v_add_f32 v{vL}, v{vL}, v{vS+3}")
        a(f"v_add_f32 v{vL}, v{vL}, v{vT}")
        for j in range(4):
            a(f"v_pk_mul_f32 {V(vO+2*j,2)}, {V(vO+2*j,2)}, {V(vAl,2)} op_sel_hi:[1,0]")
    def pv(bb):
        if nocomp & 4:
            for i in range(KL):
                a(f"v_xor_b32 v{vO+i}, v{vslot(bb,i)}, v{vslot(bb,i)+3}")
            return
        for i in range(KL):
            p = vS + i
            pb = p & ~1
            sel = "op_sel:[0,1,0] op_sel_hi:[1,1,1]" if (p & 1) else "op_sel_hi:[1,0,1]"
            for j in range(4):
                v = vslot(bb, i) + j
                t = vT + 2 * j
                a(f"v_lshlrev_b32 v{t}, 16, v{v}")
                a(f"v_and_b32 v{t+1}, s{sMask}, v{v}")
            for j in range(4):
                t = vT + 2 * j
                a(f"v_pk_fma_f32 {V(vO+2*j,2)}, {V(t,2)}, {V(pb,2)}, {V(vO+2*j,2)} {sel}")
    WAITN = (2 * NB - 1) * KL
    def body(bi, k, tag):
        bb = buf(bi)
        sBr = sBq[k]
        if dyn:
            a(f"s_cmp_eq_u32 s{sBr}, s{sCur}")
            a(f"s_cbranch_scc1 L_nosw_{tag}")
            a(f"s_mov_b32 s{sBn}, s{sBr}")
            a(f"s_call_b64 {P2(sRet)}, L_switch")
            a.label(f"L_nosw_{tag}")
        a(f"s_waitcnt vmcnt({WAITN})")
        qk(bb)
        a(f"s_cmp_lt_u32 s{sIdx}, {S}")
        a(f"s_cbranch_scc0 L_dy_{tag}")
        a(f"s_mul_i32 s{sOff}, s{sIdx}, {CH}")
        a(f"s_add_u32 s{sOff}, s{sOff}, s{sStatic}")
        a(f"s_mov_b32 s{sBn}, s{sBr}")
        a.label(f"L_go_{tag}")
        if dyn:
            a(f"s_cmp_lt_u32 s{sIdx}, {S-NB}")
            a(f"s_cbranch_scc1 L_notk_{tag}")
            a(f"s_cmp_lg_u32 s{sNT}, 0x7fffffff")
            a(f"s_cbranch_scc1 L_notk_{tag}")
            a(f"v_mov_b32 v{vTkt[k]}, 1")
            a("s_mov_b64 exec, 1")
            a(f"buffer_atomic_add v{vTkt[k]}, v{vCo}, {P4(SRD_C)}, 0 offen sc0")
            a("s_mov_b64 exec, -1")
            a.label(f"L_notk_{tag}")
        a(f"s_add_u32 s{sIdx}, s{sIdx}, 1")
        ldK(bb, sOff)
        softmax()
        a(f"s_waitcnt vmcnt({WAITN})")
        pv(bb)
        ldV(bb, sOff)
        a(f"s_mov_b32 s{sBr}, s{sBn}")
        a(f"s_add_u32 s{sN}, s{sN}, 1")
        if stamps and sprof == 3:
            a(f"s_and_b32 s{sT0}, s{sN}, 3")
            a(f"s_cbranch_scc1 L_nops_{tag}")
            a(f"s_memrealtime s[84:85]")
            a(f"s_lshr_b32 m0, s{sN}, 2")
            a("s_waitcnt lgkmcnt(0)")
            a(f"v_writelane_b32 v52, s84, m0")
            a.label(f"L_nops_{tag}")
        a(f"s_cmp_ge_u32 s{sN}, s{sNT}")
        a("s_cbranch_scc1 L_sfin")
    def body_dyn_part(tag, k):
        a.label(f"L_dy_{tag}")
        if dyn:
            a(f"s_cmp_ge_u32 s{sIdx}, s{sNT}")
            a(f"s_cbranch_scc1 L_ex_{tag}")
            a(f"v_readfirstlane_b32 s{sT1}, v{vTkt[k]}")
            a("s_nop 1")
            a(f"s_cmp_lt_u32 s{sT1}, {D}")
            a(f"s_cbranch_scc1 L_tk_{tag}")
            a(f"s_mov_b32 s{sNT}, s{sIdx}")
            a(f"s_branch L_ex_{tag}")
            a.label(f"L_tk_{tag}")
            a(f"s_lshr_b32 s{sT2}, s{sT1}, {logPW}")
            if prot:
                a(f"s_mul_i32 s{sT3}, s{sH}, {prot}")
                a(f"s_add_u32 s{sT3}, s{sT3}, s{sT1}")
                a(f"s_and_b32 s{sT3}, s{sT3}, {4*P-1}")
            else:
                a(f"s_and_b32 s{sT3}, s{sT1}, {4*P-1}")
            a(f"s_lshl_b32 s{sT3}, s{sT3}, 12")
            a(f"s_add_u32 s{sT3}, s{sT3}, {S*CH}")
            a(f"s_lshr_b32 s{sBn}, s{sT2}, 1")
            a(f"s_lshl_b32 s{sT0}, s{sBn}, 26")
            a(f"s_and_b32 s{sT2}, s{sT2}, 1")
            a(f"s_lshl_b32 s{sT2}, s{sT2}, 20")
            a(f"s_add_u32 s{sOff}, s{sHeadW}, s{sT3}")
            a(f"s_add_u32 s{sOff}, s{sOff}, s{sT0}")
            a(f"s_add_u32 s{sOff}, s{sOff}, s{sT2}")
            a(f"s_branch L_go_{tag}")
        a.label(f"L_ex_{tag}")
        a(f"s_mov_b32 s{sOff}, 0x7ff00000")
        a(f"s_mov_b32 s{sBn}, s{sCur}")
        a(f"s_branch L_go_{tag}")
    def bodyX(bi):
        bb = buf(bi)
        qk(bb)
        a("s_nop 2")
        softmax()
        pv(bb)
    tags = ["A", "B", "C"][:NB]
    a.label("L_loop")
    for k, tg in enumerate(tags):
        body(NX + k, k, tg)
        a(f"s_cmp_lt_u32 s{sXc}, {NXT}")
        a(f"s_cbranch_scc1 L_x{tg}")
        a.label(f"L_x{tg}_ret")
    a("s_branch L_loop")
    for k, tg in enumerate(tags):
        a.label(f"L_x{tg}")
        a(f"s_add_u32 s{sXc}, s{sXc}, 1")
        a(f"s_call_b64 {P2(sRet)}, L_xbody")
        a(f"s_branch L_x{tg}_ret")
    for k, tg in enumerate(tags):
        body_dyn_part(tg, k)
    a.label("L_xbody")
    if NL:
        a(f"s_cmp_le_u32 s{sXc}, {NX}")
        a("s_cbranch_scc1 L_xreg")
        a(f"s_sub_u32 s{sT1}, s{sXc}, {NX+1}")
        a(f"s_mul_i32 s{sT0}, s{sWave}, {L_LPW}")
        a(f"s_lshl_b32 s{sT2}, s{sT1}, 13")
        a(f"s_add_u32 s{sT0}, s{sT0}, s{sT2}")
        a(f"s_add_u32 s{sT0}, s{sT0}, {L_OST}")
        a(f"v_add_u32 v{vTmp}, s{sT0}, v{vOff}")
        for j in range(NL):
            if j < NL - 1:
                a(f"s_cmp_eq_u32 s{sT1}, {j}")
                a(f"s_cbranch_scc0 L_xl{j}")
            for i in range(8):
                a(f"ds_read_b128 {V(buf(j)+4*i,4)}, v{vTmp} offset:{i*1024}")
            a("s_waitcnt lgkmcnt(0)")
            if j == NL - 1:
                ost_init()
            a(f"s_branch L_xb{j}")
            if j < NL - 1:
                a.label(f"L_xl{j}")
        a.label("L_xreg")
    for x in range(NX):
        if x < NX - 1:
            a(f"s_cmp_eq_u32 s{sXc}, {x+1}")
            a(f"s_cbranch_scc0 L_xn{x}")
        a.label(f"L_xb{x}")
        bodyX(x)
        a(f"s_setpc_b64 {P2(sRet)}")
        if x < NX - 1:
            a.label(f"L_xn{x}")
    def save_state():
        a(f"s_lshl_b32 s{sT0}, s{sCur}, 11")
        a(f"v_add_u32 v{vTmp}, s{sT0}, v{vOst}")
        a(f"ds_write_b128 v{vTmp}, {V(vO,4)}")
        a(f"ds_write_b128 v{vTmp}, {V(vO+4,4)} offset:16")
        a(f"s_lshl_b32 s{sT0}, s{sCur}, 7")
        a(f"v_add_u32 v{vTmp+1}, s{sT0}, v{vMl}")
        a(f"ds_write_b64 v{vTmp+1}, {V(vM,2)}")
    a.label("L_switch")
    save_state()
    a(f"s_mov_b32 s{sCur}, s{sBn}")
    a(f"s_lshl_b32 s{sT0}, s{sCur}, 11")
    a(f"v_add_u32 v{vTmp}, s{sT0}, v{vOst}")
    a(f"ds_read_b128 {V(vO,4)}, v{vTmp}")
    a(f"ds_read_b128 {V(vO+4,4)}, v{vTmp} offset:16")
    a(f"s_lshl_b32 s{sT0}, s{sCur}, 7")
    a(f"v_add_u32 v{vTmp+1}, s{sT0}, v{vMl}")
    a(f"ds_read_b64 {V(vM,2)}, v{vTmp+1}")
    a(f"s_lshl_b32 s{sT0}, s{sCur}, 8")
    a(f"v_add_u32 v{vTk}, s{sT0}, v{vQa}")
    a(f"ds_read_b128 {V(vQ,4)}, v{vTk}")
    a("s_waitcnt lgkmcnt(0)")
    a(f"s_setpc_b64 {P2(sRet)}")

    a.label("L_sfin")
    if stamps and sprof == 3:
        a(f"s_lshl_b32 s{sT0}, s2, 2")
        a(f"s_add_u32 s{sT0}, s{sT0}, s{sWave}")
        a(f"s_lshl_b32 s{sT0}, s{sT0}, 8")
        a(f"s_add_u32 s{sT0}, s{sT0}, {WS_STAMP+0x40000}")
        a(f"v_lshlrev_b32 v53, 2, v{vLane}")
        a(f"v_add_u32 v53, s{sT0}, v53")
        a(f"global_store_dword v53, v52, {P2(sWS)}")
    stamp(3)
    save_state()
    a("s_waitcnt lgkmcnt(0)")
    a("s_barrier")
    stamp(6)
    tstamp(1)
    a(f"s_cmp_lt_u32 s{sH}, 4")
    a("s_cbranch_scc0 L_fin_stamp")
    a(f"s_cmp_lt_u32 s{sG}, 5")
    a("s_cbranch_scc0 L_fin_stamp")
    a("s_branch L_final_pre")

    a.label("L_h_post")
    a(f"v_lshlrev_b32 v{vL2}, 1, v{vLane}")
    if skippost:
        a("s_branch L_h_tailprep")
    a(f"s_cmp_lt_u32 s{sG}, 5")
    a("s_cbranch_scc0 L_h_notile")
    vTo = 8
    a(f"v_lshrrev_b32 v{vTo}, 4, v{vLane}")
    a(f"v_mul_u32_u24 v{vTo}, 1280, v{vTo}")
    a(f"v_and_b32 v{vTo+1}, 15, v{vLane}")
    a(f"v_lshlrev_b32 v{vTo+1}, 4, v{vTo+1}")
    a(f"v_add_u32 v{vTo}, v{vTo}, v{vTo+1}")
    srd(SRD_A, sWO, 4096 * 1280)
    srd(SRD_B, sW2, 1728 * 1280)
    a(f"s_lshl_b32 s{sT0}, s{sH}, 7")
    a(f"s_lshl_b32 s{sT1}, s{sHW}, 5")
    a(f"s_add_u32 s{sT0}, s{sT0}, s{sT1}")
    a(f"s_mul_i32 s{sT0}, s{sT0}, 1280")
    a(f"s_lshl_b32 s{sT1}, s{sG}, 8")
    a(f"s_add_u32 s{sT0}, s{sT0}, s{sT1}")
    a(f"s_lshl_b32 s{sT2}, s{sHW}, 13")
    a(f"s_add_u32 s{sT2}, s{sT2}, {L_WT}")
    for i in range(8):
        a(f"s_add_u32 m0, s{sT2}, {i*1024}")
        a(f"s_nop 0")
        a(f"buffer_load_dwordx4 v{vTo}, {P4(SRD_A)}, s{sT0} offen {pol} lds")
        a(f"s_add_u32 s{sT0}, s{sT0}, {4*1280}")
    a(f"s_lshl_b32 s{sT0}, s{sH}, 6")
    a(f"s_lshl_b32 s{sT3}, s{sHW}, 4")
    a(f"s_add_u32 s{sT0}, s{sT0}, s{sT3}")
    a(f"s_mul_i32 s{sT0}, s{sT0}, 1280")
    a(f"s_add_u32 s{sT0}, s{sT0}, s{sT1}")
    a(f"s_lshl_b32 s{sT2}, s{sHW}, 12")
    a(f"s_add_u32 s{sT2}, s{sT2}, {L_W2T}")
    for i in range(4):
        a(f"s_add_u32 m0, s{sT2}, {i*1024}")
        a(f"s_nop 0")
        a(f"buffer_load_dwordx4 v{vTo}, {P4(SRD_B)}, s{sT0} offen {pol} lds")
        a(f"s_add_u32 s{sT0}, s{sT0}, {4*1280}")
    a("s_waitcnt vmcnt(0)")
    lds_arrive(6, vSy, vOne)
    a(f"v_lshrrev_b32 v{vU}, 4, v{vLane}")
    a(f"v_lshlrev_b32 v{vBo}, 11, v{vU}")
    a(f"v_and_b32 v{vU+1}, 15, v{vLane}")
    a(f"v_lshlrev_b32 v{vU+1}, 1, v{vU+1}")
    a(f"v_add_u32 v{vBo}, v{vBo}, v{vU+1}")
    a(f"s_lshl_b32 s{sT1}, s{sHW}, 6")
    a(f"v_add_u32 v{vBo}, s{sT1}, v{vBo}")
    def build_btile(dst, ldsoff, nsteps, tmp):
        for s in range(nsteps):
            for j in range(8):
                a(f"ds_read_u16 v{tmp+8*s+j}, v{vBo} offset:{ldsoff + (32*s+j)*256}")
            a("s_waitcnt lgkmcnt(0)")
            for j2 in range(4):
                a(f"v_lshl_or_b32 v{dst+4*s+j2}, v{tmp+8*s+2*j2+1}, 16, v{tmp+8*s+2*j2}")
    lds_wait(6, 4, vSy, vU + 4, sT0)
    for tt in range(2):
        build_btile(vWO + 16 * tt, L_WT + tt * 32, 4, 64)
    for tt in range(2):
        build_btile(vW2 + 8 * tt, L_W2T + tt * 32, 2, 64)
    a.label("L_h_notile")
    a(f"s_cmp_eq_u32 s{sHW}, 3")
    a("s_cbranch_scc1 L_h3")
    a(f"s_cmp_eq_u32 s{sHW}, 0")
    a("s_cbranch_scc0 L_h_ffn2")
    a(f"s_cmp_lt_u32 s{sH}, 4")
    a("s_cbranch_scc0 L_h_ffn2")
    a.label("L_fflag")
    a(f"global_load_dword v{vU+1}, v{vL4}, {P2(sDBG)} sc1")
    a(f"v_and_b32 v{vU+2}, 16, v{vLane}")
    a(f"v_lshrrev_b32 v{vU+2}, 1, v{vU+2}")
    a("s_waitcnt vmcnt(0)")
    a(f"v_add_u32 v{vU+1}, v{vU+1}, v{vU+2}")
    a(f"v_cmp_gt_u32 vcc, 8, v{vU+1}")
    a("s_nop 4")
    a("s_cbranch_vccz L_h_ffn2")
    a("s_sleep 8")
    spin_timeout("L_fflag")
    a("s_branch L_h_ffn2")

    a.label("L_h3")
    vW1 = 32
    vXq = 112
    vHA = 128
    vHG = 32
    vHa = 112
    if skipffn:
        a("s_branch L_h_tailprep")
    srd(SRD_B, sW1, 640 * 3456)
    a(f"s_mul_i32 s{sOff}, s{sG}, {80*3456}")
    a(f"s_lshl_b32 s{sT0}, s{sH}, 7")
    a(f"s_add_u32 s{sOff}, s{sOff}, s{sT0}")
    a(f"s_cmp_lt_u32 s{sH}, 27")
    a(f"s_cselect_b32 s{sOff}, s{sOff}, 0x7f000000")
    for q4 in range(80 // w1b):
        for i in range(w1b):
            a(f"buffer_load_ushort v{vW1+w1b*q4+i}, v{vL2}, {P4(SRD_B)}, s{sOff} offen {pol}")
            a(f"s_add_u32 s{sOff}, s{sOff}, 3456")
        a("s_waitcnt vmcnt(0)")
    for b in range(4):
        a(f"v_mov_b32 v{vHA+b}, 0")
    a(f"s_mul_i32 s{sT0}, s{sG}, 320")
    a(f"v_mov_b32 v{vU}, s{sT0}")
    for q4 in range(20):
        for b in range(4):
            a(f"ds_read_b128 {V(vXq+4*b,4)}, v{vU} offset:{L_XN+b*2560+16*q4}")
        for r in range(4):
            a(f"v_lshlrev_b32 v{vW1+4*q4+r}, 16, v{vW1+4*q4+r}")
        a("s_waitcnt lgkmcnt(0)")
        for r in range(4):
            for b in range(4):
                a(f"v_fmac_f32 v{vHA+b}, v{vXq+4*b+r}, v{vW1+4*q4+r}")
    a(f"s_add_u32 s{sT0}, s{sIdx}, {OB_HP}")
    a(f"v_add_u32 v{vU+1}, s{sT0}, v{vL4}")
    for b in range(4):
        a(f"global_store_dword v{vU+1}, v{vHA+b}, {P2(sWS)} offset:{b*256} sc1")
    a(f"s_cmp_lt_u32 s{sG}, 5")
    a("s_cbranch_scc0 L_h_tailprep")
    srd(SRD_B, sB1, 1728 * 2)
    a(f"s_lshl_b32 s{sT0}, s{sH}, 7")
    a(f"buffer_load_ushort v{vU+3}, v{vL2}, {P4(SRD_B)}, s{sT0} offen")
    for g_ in range(8):
        a(f"s_add_u32 s{sT0}, s{sHeadW}, {OB_HP+g_*8192}")
        a(f"v_add_u32 v{vHa+g_}, s{sT0}, v{vL4}")
    a(f"v_and_b32 v{vU+5}, 7, v{vLane}")
    a(f"v_lshlrev_b32 v{vU+5}, 13, v{vU+5}")
    a(f"s_add_u32 s{sT0}, s{sHeadW}, {OB_HP+3*256}")
    a(f"v_add_u32 v{vU+5}, s{sT0}, v{vU+5}")
    a("s_mov_b64 exec, 0xff")
    a.label("L_hlp")
    a(f"global_load_dword v{vU+6}, v{vU+5}, {P2(sWS)} sc1")
    a("s_waitcnt vmcnt(0)")
    a(f"v_cmp_eq_u32 vcc, -1, v{vU+6}")
    a("s_nop 4")
    a("s_cbranch_vccz L_hlpok")
    a("s_sleep 32")
    spin_timeout("L_hlp")
    a.label("L_hlpok")
    a("s_mov_b64 exec, -1")
    a.label("L_hg")
    for b in range(4):
        for g_ in range(8):
            a(f"global_load_dword v{vHG+8*b+g_}, v{vHa+g_}, {P2(sWS)} offset:{b*256} sc1")
    a("s_waitcnt vmcnt(0)")
    sentinel_check(range(vHG, vHG + 32), vU + 4)
    a("s_cbranch_vccz L_hgok")
    a("s_sleep 16")
    spin_timeout("L_hg")
    a.label("L_hgok")
    a(f"v_lshlrev_b32 v{vU+3}, 16, v{vU+3}")
    for b in range(4):
        r = vHG + 8 * b
        for g_ in range(1, 8):
            a(f"v_add_f32 v{r}, v{r}, v{r+g_}")
        rnd_bf16(r, r)
        a(f"v_add_f32 v{r}, v{r}, v{vU+3}")
        rnd_bf16(r, r)
        a(f"v_max_f32 v{r}, 0, v{r}")
        a(f"v_mul_f32 v{r}, v{r}, v{r}")
        a(f"v_cvt_pk_bf16_f32 v{r}, v{r}, v{r}")
        a(f"ds_write_b16 v{vL2}, v{r} offset:{L_HB+b*128}")
    lds_arrive(7, vSy, vOne)
    a.label("L_h_ffn2")
    a(f"s_cmp_lt_u32 s{sG}, 5")
    a("s_cbranch_scc0 L_h_tailprep")
    vHAo = 132
    if not skipffn:
        lds_wait(7, 1, vSy, vU + 4, sT0, sleep=32)
    a(f"v_and_b32 v{vU}, 3, v{vLane}")
    a(f"v_lshlrev_b32 v{vU}, 7, v{vU}")
    a(f"v_lshrrev_b32 v{vU+1}, 4, v{vLane}")
    a(f"v_lshlrev_b32 v{vU+1}, 4, v{vU+1}")
    a(f"v_add_u32 v{vU}, v{vU}, v{vU+1}")
    a(f"ds_read_b128 {V(vHAo,4)}, v{vU} offset:{L_HB}")
    a(f"ds_read_b128 {V(vHAo+4,4)}, v{vU} offset:{L_HB+64}")
    for i in range(8):
        a(f"v_mov_b32 v{vY+i}, 0")
    a("s_waitcnt lgkmcnt(0)")
    for s in range(2):
        for tt in range(2):
            a(f"v_mfma_f32_16x16x32_bf16 {V(vY+4*tt,4)}, {V(vHAo+4*s,4)}, {V(vW2+8*tt+4*s,4)}, {V(vY+4*tt,4)}")

    a.label("L_h_tailprep")
    vA0, vA1, vMlA, vPub, vMlP, vMlG, vDbG, vDbO, vOaW, vOaR, vYp = 8, 9, 10, 11, 12, 13, 14, 15, 16, 17, 18
    vGa2 = 20
    vMl2, vC, vLs, vMx = 28, 30, 31, 32
    vOo = 34
    vZ = 38
    vOv = 64
    vGg = 64
    vAo = 96
    a(f"s_lshl_b32 s{sT0}, s{sHW}, 11")
    a(f"s_add_u32 s{sT0}, s{sT0}, {L_OST}")
    a(f"v_lshlrev_b32 v{vZ}, 3, v{vLane}")
    a(f"v_add_u32 v{vA0}, s{sT0}, v{vZ}")
    a(f"v_add_u32 v{vA1}, {2*L_LPW}, v{vA0}")
    a(f"v_and_b32 v{vZ+1}, 15, v{vLane}")
    a(f"v_lshlrev_b32 v{vMlA}, 3, v{vZ+1}")
    a(f"s_lshl_b32 s{sT0}, s{sHW}, 7")
    a(f"v_add_u32 v{vMlA}, s{sT0}, v{vMlA}")
    a(f"s_lshl_b32 s{sT0}, s{sHW}, 9")
    a(f"s_add_u32 s{sT1}, s{sIdx}, s{sT0}")
    a(f"s_add_u32 s{sT1}, s{sT1}, {OB_OP}")
    a(f"v_add_u32 v{vPub}, s{sT1}, v{vZ}")
    a(f"s_add_u32 s{sT1}, s{sHeadW}, s{sT0}")
    for g_ in range(8):
        a(f"s_add_u32 s{sT2}, s{sT1}, {OB_OP+g_*8192}")
        a(f"v_add_u32 v{vGa2+g_}, s{sT2}, v{vZ}")
    a(f"s_lshl_b32 s{sT0}, s{sH}, 2")
    a(f"s_add_u32 s{sT0}, s{sT0}, s{sHW}")
    a(f"s_lshl_b32 s{sT1}, s{sT0}, 6")
    a(f"s_add_u32 s{sT1}, s{sT1}, {WS_OPML}")
    a(f"s_lshl_b32 s{sT2}, s{sG}, 3")
    a(f"s_add_u32 s{sT2}, s{sT2}, s{sT1}")
    a(f"v_mov_b32 v{vMlP}, s{sT2}")
    a(f"v_and_b32 v{vZ+2}, 7, v{vLane}")
    a(f"v_lshlrev_b32 v{vMlG}, 3, v{vZ+2}")
    a(f"v_add_u32 v{vMlG}, s{sT1}, v{vMlG}")
    a(f"v_lshlrev_b32 v{vDbG}, 13, v{vZ+2}")
    a(f"s_add_u32 s{sT2}, s{sHeadW}, {OB_DB}")
    a(f"v_add_u32 v{vDbG}, s{sT2}, v{vDbG}")
    a(f"s_add_u32 s{sT2}, s{sIdx}, {OB_DB}")
    a(f"v_mov_b32 v{vDbO}, s{sT2}")
    a(f"s_lshl_b32 s{sT0}, s{sHW}, 8")
    a(f"v_add_u32 v{vOaW}, s{sT0}, v{vL4}")
    a(f"v_and_b32 v{vOaR}, 3, v{vLane}")
    a(f"v_lshlrev_b32 v{vOaR}, 8, v{vOaR}")
    a(f"v_lshrrev_b32 v{vZ+2}, 4, v{vLane}")
    a(f"v_lshlrev_b32 v{vZ+2}, 4, v{vZ+2}")
    a(f"v_add_u32 v{vOaR}, v{vOaR}, v{vZ+2}")
    a(f"v_lshlrev_b32 v{vYp}, 2, v{vZ+1}")
    a(f"s_lshl_b32 s{sT0}, s{sHW}, 7")
    a(f"s_add_u32 s{sT0}, s{sT0}, s{sIdx}")
    a(f"s_add_u32 s{sT0}, s{sT0}, {OB_YP}")
    a(f"v_add_u32 v{vYp}, s{sT0}, v{vYp}")
    a(f"s_mov_b32 s{sSpin}, {spin_cap}")
    stamp(1)
    a("s_waitcnt vmcnt(0) lgkmcnt(0)")
    a("s_barrier")
    stamp(6)
    tstamp(1)
    a(f"ds_read_b64 {V(vMl2,2)}, v{vMlA} offset:{L_ML}")
    for i in range(16):
        w_ = i >> 2
        if i == 14:
            a("s_waitcnt lgkmcnt(14)")
        a(f"ds_read_b64 {V(vOv+2*i,2)}, v{vA0 if w_ < 2 else vA1} offset:{(w_&1)*L_LPW+(i&3)*512}")
    def merge_coef(dup):
        a(f"v_mov_b32 v{vMx}, v{vMl2}")
        row_allreduce("v_max_f32", [vMx])
        a(f"v_sub_f32 v{vC}, v{vMl2}, v{vMx}")
        a(f"v_exp_f32 v{vC}, v{vC}")
        a("s_nop 0")
        a(f"v_mul_f32 v{vLs}, v{vC}, v{vMl2+1}")
        row_allreduce("v_add_f32", [vLs])
        if dup:
            a(f"v_mul_f32 v{vLs}, 0.5, v{vLs}")
    def merge_o(n, base):
        for i in range(4):
            a(f"v_mov_b32 v{vOo+i}, 0")
        for i in range(n):
            for e in range(2):
                a(f"v_fmac_f32_dpp v{vOo+2*(i&1)+e}, v{vC}, v{base+2*i+e} row_newbcast:{i} {DPPM}")
        a(f"v_pk_add_f32 {V(vOo,2)}, {V(vOo,2)}, {V(vOo+2,2)}")
    merge_coef(False)
    a("s_waitcnt lgkmcnt(0)")
    merge_o(16, vOv)
    a(f"global_store_dwordx2 v{vPub}, {V(vOo,2)}, {P2(sWS)} sc1")
    a(f"v_mov_b32 v{vZ+2}, v{vMx}")
    a(f"v_mov_b32 v{vZ+3}, v{vLs}")
    assert (vZ + 2) % 2 == 0
    a("s_mov_b64 exec, 1")
    a(f"global_store_dwordx2 v{vMlP}, {V(vZ+2,2)}, {P2(sWS)} sc1")
    a(f"ds_add_rtn_u32 v{vZ+4}, v{vSy}, v{vOne} offset:32")
    a("s_waitcnt lgkmcnt(0)")
    a(f"v_readfirstlane_b32 s{sT3}, v{vZ+4}")
    a("s_nop 1")
    a(f"s_cmp_eq_u32 s{sT3}, 3")
    a("s_cbranch_scc0 L_t_nodb")
    a(f"global_store_dword v{vDbO}, v{vOne}, {P2(sWS)} sc1")
    a.label("L_t_nodb")
    a("s_mov_b64 exec, -1")
    tstamp(2)
    a(f"s_cmp_lt_u32 s{sG}, 5")
    a("s_cbranch_scc0 L_fin_stamp")
    a(f"s_cmp_eq_u32 s{sHW}, 3")
    a("s_cbranch_scc0 L_dbok")
    a("s_mov_b64 exec, 0xff")
    a.label("L_dbpoll")
    a(f"global_load_dword v{vZ+5}, v{vDbG}, {P2(sWS)} sc1")
    a("s_waitcnt vmcnt(0)")
    a(f"v_cmp_eq_u32 vcc, 1, v{vZ+5}")
    a("s_nop 4")
    a(f"s_bcnt1_i32_b64 s{sT3}, vcc")
    a(f"s_cmp_ge_u32 s{sT3}, {dbneed}")
    a("s_cbranch_scc1 L_dbok2")
    if opoll_sleep:
        a(f"s_sleep {opoll_sleep}")
    spin_timeout("L_dbpoll")
    a.label("L_dbok2")
    a(f"s_not_b32 s{sT3}, vcc_lo")
    a(f"s_or_b32 s{sT3}, s{sT3}, 0x100")
    a(f"s_ff1_i32_b32 s{sT3}, s{sT3}")
    a(f"v_mov_b32 v{vZ+5}, s{sT3}")
    a(f"ds_write_b32 v{vSy}, v{vZ+5} offset:36")
    a("s_waitcnt lgkmcnt(0)")
    a("s_mov_b64 exec, -1")
    a.label("L_dbok")
    a("s_barrier")
    a.label("L_opoll")
    tstamp(3)
    a(f"global_load_dwordx2 {V(vMl2,2)}, v{vMlG}, {P2(sWS)} sc1")
    for g_ in range(8):
        a(f"global_load_dwordx2 {V(vGg+2*g_,2)}, v{vGa2+g_}, {P2(sWS)} sc1")
    a(f"ds_read_b32 v{vZ+5}, v{vSy} offset:36")
    a(f"s_mov_b32 s{sT4}, 0")
    a("s_waitcnt lgkmcnt(0)")
    a(f"v_readfirstlane_b32 s{sT2}, v{vZ+5}")
    a.label("L_ochk")
    a("s_waitcnt vmcnt(0)")
    sentinel_check([vMl2, vMl2 + 1] + list(range(vGg, vGg + 16)), vZ + 2)
    a("s_cbranch_vccz L_ook")
    a(f"s_cmp_eq_u32 s{sSpin}, 0")
    a("s_cbranch_scc1 L_ook")
    a(f"s_sub_u32 s{sSpin}, s{sSpin}, 1")
    if fastre:
        a(f"s_add_u32 s{sT4}, s{sT4}, 1")
        a(f"s_and_b32 s{sT3}, s{sT4}, 3")
        a("s_cbranch_scc0 L_opoll")
        a(f"s_cmp_ge_u32 s{sT2}, 8")
        a("s_cbranch_scc1 L_opoll")
        a(f"global_load_dwordx2 {V(vMl2,2)}, v{vMlG}, {P2(sWS)} sc1")
        for g_ in range(8):
            if g_ < 7:
                a(f"s_cmp_eq_u32 s{sT2}, {g_}")
                a(f"s_cbranch_scc0 L_re{g_}")
            a(f"global_load_dwordx2 {V(vGg+2*g_,2)}, v{vGa2+g_}, {P2(sWS)} sc1")
            a("s_branch L_ochk")
            if g_ < 7:
                a.label(f"L_re{g_}")
    else:
        a("s_branch L_opoll")
    a.label("L_ook")
    stamp(7)
    tstamp(4)
    merge_coef(True)
    a(f"v_rcp_f32 v{vLs}, v{vLs}")
    merge_o(8, vGg)
    a(f"v_pk_mul_f32 {V(vOo,2)}, {V(vOo,2)}, {V(vLs-1,2)} op_sel:[0,1] op_sel_hi:[1,1]")
    assert (vLs - 1) % 2 == 0
    a(f"v_cvt_pk_bf16_f32 v{vOo}, v{vOo}, v{vOo+1}")
    a(f"ds_write_b32 v{vOaW}, v{vOo} offset:{L_OA}")
    a("s_waitcnt lgkmcnt(0)")
    a("s_barrier")
    tstamp(5)
    for s in range(4):
        a(f"ds_read_b128 {V(vAo+4*s,4)}, v{vOaR} offset:{L_OA+64*s}")
    for s in range(4):
        a(f"s_waitcnt lgkmcnt({3-s})")
        for tt in range(2):
            a(f"v_mfma_f32_16x16x32_bf16 {V(vY+4*tt,4)}, {V(vAo+4*s,4)}, {V(vWO+16*tt+4*s,4)}, {V(vY+4*tt,4)}")
    a("s_mov_b64 exec, 0xffff")
    a("s_nop 7")
    for tt in range(2):
        for b in range(4):
            a(f"global_store_dword v{vYp}, v{vY+4*tt+b}, {P2(sWS)} offset:{b*512+tt*64} sc1")
    a("s_mov_b64 exec, -1")
    tstamp(6)
    a(f"s_cmp_lt_u32 s{sH}, 4")
    a("s_cbranch_scc0 L_fin_stamp")
    a("s_branch L_final")

    a.label("L_final_pre")
    a("s_barrier")
    a("s_barrier")
    a.label("L_final")
    vFa, vFx, vF0, vY_ = 2, 4, 8, 30
    vZ2 = 30
    a(f"v_lshrrev_b32 v{vZ2}, 4, v{vLane}")
    a(f"v_lshlrev_b32 v{vZ2}, 2, v{vZ2}")
    a(f"s_lshl_b32 s{sT0}, s{sWave}, 4")
    a(f"v_add_u32 v{vZ2}, s{sT0}, v{vZ2}")
    a(f"v_and_b32 v{vZ2+1}, 15, v{vLane}")
    a(f"v_lshlrev_b32 v{vFa}, 16, v{vZ2+1}")
    a(f"v_lshlrev_b32 v{vZ2+2}, 2, v{vZ2}")
    a(f"v_add_u32 v{vFa}, v{vFa}, v{vZ2+2}")
    a(f"s_lshl_b32 s{sT1}, s{sG}, 13")
    a(f"s_lshl_b32 s{sT0}, s{sH}, 9")
    a(f"s_add_u32 s{sT1}, s{sT1}, s{sT0}")
    a(f"s_add_u32 s{sT1}, s{sT1}, {WS_OB+OB_YP}")
    a(f"v_add_u32 v{vFa}, s{sT1}, v{vFa}")
    a(f"v_add_u32 v{vFa+1}, {16*65536}, v{vFa}")
    a(f"s_lshl_b32 s{sT2}, s{sG}, 7")
    a(f"v_add_u32 v{vZ2}, s{sT2}, v{vZ2}")
    a(f"v_lshlrev_b32 v{vZ2}, 1, v{vZ2}")
    a(f"s_mul_i32 s{sT3}, s{sH}, 1280")
    a(f"v_add_u32 v{vZ2+3}, s{sT3}, v{vZ2}")
    a(f"global_load_dwordx2 {V(vFx,2)}, v{vZ2+3}, {P2(sX)}")
    a(f"global_load_dwordx2 {V(vFx+2,2)}, v{vZ2}, {P2(sB2)}")
    a(f"s_mov_b32 s{sSpin}, {spin_cap}")
    a.label("L_ypoll")
    a(f"global_load_dwordx4 {V(vF0,4)}, v{vFa}, {P2(sWS)} sc1")
    a(f"global_load_dwordx4 {V(vF0+4,4)}, v{vFa+1}, {P2(sWS)} sc1")
    a("s_waitcnt vmcnt(0)")
    sentinel_check(range(vF0, vF0 + 8), vZ2 + 4)
    a("s_cbranch_vccz L_yok")
    spin_timeout("L_ypoll")
    a.label("L_yok")
    tstamp(7)
    for i in range(4):
        a(f"v_add_f32 v{vF0+i}, v{vF0+i}, v{vF0+4+i}")
    row_allreduce("v_add_f32", [vF0, vF0+1, vF0+2, vF0+3])
    for j in range(2):
        a(f"v_lshlrev_b32 v{vZ2+4}, 16, v{vFx+j}")
        a(f"v_and_b32 v{vZ2+5}, s{sMask}, v{vFx+j}")
        a(f"v_add_f32 v{vF0+2*j}, v{vF0+2*j}, v{vZ2+4}")
        a(f"v_add_f32 v{vF0+2*j+1}, v{vF0+2*j+1}, v{vZ2+5}")
        a(f"v_lshlrev_b32 v{vZ2+4}, 16, v{vFx+2+j}")
        a(f"v_and_b32 v{vZ2+5}, s{sMask}, v{vFx+2+j}")
        a(f"v_add_f32 v{vF0+2*j}, v{vF0+2*j}, v{vZ2+4}")
        a(f"v_add_f32 v{vF0+2*j+1}, v{vF0+2*j+1}, v{vZ2+5}")
    a(f"v_cvt_pk_bf16_f32 v{vF0+4}, v{vF0}, v{vF0+1}")
    a(f"v_cvt_pk_bf16_f32 v{vF0+5}, v{vF0+2}, v{vF0+3}")
    a("s_mov_b32 exec_lo, 0x00010001")
    a("s_mov_b32 exec_hi, 0x00010001")
    a(f"global_store_dwordx2 v{vZ2+3}, {V(vF0+4,2)}, {P2(sOUT)}")
    a("s_mov_b64 exec, -1")
    a.label("L_fin_stamp")
    if stamps:
        a("s_memrealtime s[4:5]")
        a("s_waitcnt lgkmcnt(0)")
        a(f"s_lshl_b32 s{sT0}, s2, 3")
        a(f"s_add_u32 s{sT0}, s{sT0}, s{sWave}")
        a(f"s_lshl_b32 s{sT0}, s{sT0}, 6")
        a(f"s_add_u32 s{sT0}, s{sT0}, {WS_STAMP}")
        a(f"v_mov_b32 v2, s{sT0}")
        for i in range(8):
            a(f"v_mov_b32 v{8+i}, s{STAMP0+2*i}")
        a("v_mov_b32 v16, s4")
        a("s_getreg_b32 s6, hwreg(HW_REG_XCC_ID)")
        a("v_mov_b32 v17, s6")
        a(f"v_mov_b32 v18, s{sN}")
        a("v_mov_b32 v19, 0")
        a("s_mov_b64 exec, 1")
        a(f"global_store_dwordx4 v2, v[8:11], {P2(sWS)}")
        a(f"global_store_dwordx4 v2, v[12:15], {P2(sWS)} offset:16")
        a(f"global_store_dwordx4 v2, v[16:19], {P2(sWS)} offset:32")
    a.label("L_end")
    a("s_endpgm")
    a.raw('.section .rodata,"a"')
    a.raw(".p2align 6")
    a.raw(f".amdhsa_kernel {KNAME}")
    a.raw("  .amdhsa_next_free_vgpr 256")
    a.raw("  .amdhsa_next_free_sgpr 102")
    a.raw("  .amdhsa_accum_offset 256")
    a.raw("  .amdhsa_group_segment_fixed_size 0")
    a.raw("  .amdhsa_kernarg_size 104")
    a.raw("  .amdhsa_user_sgpr_count 2")
    a.raw("  .amdhsa_user_sgpr_kernarg_segment_ptr 1")
    a.raw("  .amdhsa_system_sgpr_workgroup_id_x 1")
    a.raw(".end_amdhsa_kernel")
    return "\n".join(x for x in a.L if x is not None) + "\n"

if __name__ == "__main__":
    import argparse, ast
    ap = argparse.ArgumentParser()
    ap.add_argument("-o", default="k.s")
    ap.add_argument("kv", nargs="*")
    args = ap.parse_args()
    kw = {}
    for x in args.kv:
        k, v = x.split("=")
        try: v = ast.literal_eval(v)
        except Exception: pass
        kw[k] = v
    open(args.o, "w").write(gen(**kw))
```

```python
import struct, math

KNAME = "parallel_sum__gqa_block_cached__dense_activation_squared_relu__decode_kernel"

WS_CTR = 0x20000
WS_OPML = 0x10000
WS_OB = 0x100000
OB_QP, OB_OP, OB_HP, OB_YP, OB_DB, OB_GO, OB_ML = 0, 2048, 4096, 5120, 7168, 7296, 7424
OB_FILL = 8
WS_STAMP = 0x300000
WS_SC = 0x400000
L_XN = 0
L_QPART = 10240
L_QB = 18432
L_HB = 19456
L_OA = 19968
L_SYNC = 20992
L_ML = 21248
L_WT = 22528
L_W2T = 55296
L_SCL = 71680
L_OST = 71680 + 16384

NEG_MAX = 0xFF7FFFFF
def f2u(x): return struct.unpack("<I", struct.pack("<f", x))[0]
C_SCALE = f2u((128 ** -0.5) * math.log2(math.e))
SCALE_ONLY = f2u(128 ** -0.5)
LOG2E = f2u(math.log2(math.e))
INV640 = f2u(1.0 / 640.0)
EPS = f2u(1e-5)

class Asm:
    def __init__(self):
        self.L = []
        self.uid = 0
    def __call__(self, s):
        self.L.append("  " + s)
    def label(self, s):
        self.L.append(s + ":")
    def u(self, base):
        self.uid += 1
        return f"{base}_{self.uid}"
    def raw(self, s):
        self.L.append(s)

def gen(dyn=True, S=48, stamps=False, pol="nt", NB=2, spin_cap=1 << 16, th=12, nocomp=0, sprof=0, hprio=3,
        qpoll_sleep=2, opoll_sleep=2, dbneed=7, NL=2, w1b=40, skipffn=0, skippost=0, mimic=1, cstride=256, prot=0, fastre=1, mlmode=0, resleep=0, ackprof=0, stpol="sc1", ilv=0):
    KL = 4
    NX = 6 - NB
    assert NL <= NX
    NXT = NX + NL
    NPRE = 6 + NL
    L_LPW = max(NL, 1) * 8192
    L_TOTAL = L_OST + 4 * L_LPW
    CH = KL * 4096
    NCH = (1 << 20) // CH
    if not dyn:
        S = NCH
    P = NCH - S
    logP = P.bit_length() - 1 if P else 0
    assert (P & (P - 1)) == 0
    D = 8 * P * 4
    logPW = logP + 2
    a = Asm()
    a.raw("; @launch grid=(256,1,1) block=(512,1,1) lds=%d" % L_TOTAL)
    a.raw('.amdgcn_target "amdgcn-amd-amdhsa--gfx950"')
    a.raw(".text")
    a.raw(f".globl {KNAME}")
    a.raw(".p2align 8")
    a.raw(f".type {KNAME},@function")
    a.label(KNAME)

    sX, sK, sV, sWQ, sWO, sW1, sB1, sW2, sB2, sOUT, sDBG, sWS = 16, 18, 20, 22, 24, 28, 30, 32, 34, 36, 38, 40
    sWave, sH, sG, sHW = 42, 43, 44, 45
    sMask, sC = 46, 47
    SRD_K, SRD_V, SRD_A, SRD_B = 48, 52, 56, 60
    sStatic, sHeadW, sIdx, sN, sNT, sOff, sCur, sBn, sXc = 64, 65, 66, 67, 68, 69, 70, 71, 72
    sBq = [73, 74, 75]
    sT0, sT1, sT2, sT3, sT4 = 76, 77, 78, 79, 6
    sRet = 80
    sSpin = 83
    STAMP0 = 84
    def P2(s): return f"s[{s}:{s+1}]"
    def P4(s): return f"s[{s}:{s+3}]"
    def _st(i): a(f"s_memrealtime s[{STAMP0+2*i}:{STAMP0+2*i+1}]")
    def stamp(i):
        if stamps and (not sprof or i == 0): _st(i)
    def sstamp(i):
        if stamps and sprof == 1: _st(i)
    def tstamp(i):
        if stamps and sprof == 2: _st(i)
    def V(n, cnt=1):
        return f"v{n}" if cnt == 1 else f"v[{n}:{n+cnt-1}]"
    DPPM = "row_mask:0xf bank_mask:0xf"
    def row_allreduce(op, regs, nop_first=True):
        steps = ["quad_perm:[1,0,3,2]", "quad_perm:[2,3,0,1]", "row_half_mirror", "row_mirror"]
        need = max(0, 2 - (len(regs) - 1))
        if nop_first:
            a("s_nop 1")
        for si, st in enumerate(steps):
            for r in regs:
                a(f"{op}_dpp v{r}, v{r}, v{r} {st} {DPPM}")
            if need and si < 3:
                a(f"s_nop {need-1}")
    def wave_sum_to_sgpr(r, sdst):
        row_allreduce("v_add_f32", [r])
        a("s_nop 1")
        a(f"v_add_f32_dpp v{r}, v{r}, v{r} row_bcast:15 row_mask:0xa bank_mask:0xf")
        a("s_nop 1")
        a(f"v_add_f32_dpp v{r}, v{r}, v{r} row_bcast:31 row_mask:0xc bank_mask:0xf")
        a("s_nop 1")
        a(f"v_readlane_b32 s{sdst}, v{r}, 63")
    def rnd_bf16(dst, src):
        a(f"v_cvt_pk_bf16_f32 v{dst}, v{src}, v{src}")
        a(f"v_and_b32 v{dst}, s{sMask}, v{dst}")
    def spin_timeout(lbl_retry):
        d = a.u("L_to")
        a(f"s_cmp_eq_u32 s{sSpin}, 0")
        a(f"s_cbranch_scc1 {d}")
        a(f"s_sub_u32 s{sSpin}, s{sSpin}, 1")
        a(f"s_branch {lbl_retry}")
        a.label(d)
    def lds_arrive(k, vaddr, vone):
        a("s_mov_b64 exec, 1")
        a(f"ds_add_u32 v{vaddr}, v{vone} offset:{4*k}")
        a("s_mov_b64 exec, -1")
    def lds_wait(k, target, vaddr, vtmp, stmp, sleep=1):
        l = a.u("L_lw")
        ok = a.u("L_lwok")
        a.label(l)
        a(f"ds_read_b32 v{vtmp}, v{vaddr} offset:{4*k}")
        a("s_waitcnt lgkmcnt(0)")
        a(f"v_readfirstlane_b32 s{stmp}, v{vtmp}")
        a("s_nop 1")
        a(f"s_cmp_ge_u32 s{stmp}, {target}")
        a(f"s_cbranch_scc1 {ok}")
        if sleep:
            a(f"s_sleep {sleep}")
        spin_timeout(l)
        a.label(ok)
    def srd(base, sptr, nrec):
        a(f"s_mov_b32 s{base}, s{sptr}")
        a(f"s_mov_b32 s{base+1}, s{sptr+1}")
        a(f"s_mov_b32 s{base+2}, {nrec}")
        a(f"s_mov_b32 s{base+3}, 0x20000")
    def sentinel_check(regs, vtmp):
        regs = list(regs)
        a(f"v_max3_u32 v{vtmp}, v{regs[0]}, v{regs[1]}, v{regs[2]}")
        i = 3
        while i + 1 < len(regs):
            a(f"v_max3_u32 v{vtmp}, v{vtmp}, v{regs[i]}, v{regs[i+1]}")
            i += 2
        if i < len(regs):
            a(f"v_max_u32 v{vtmp}, v{vtmp}, v{regs[i]}")
        a(f"v_cmp_eq_u32 vcc, -1, v{vtmp}")
        a("s_nop 4")

    vLane = 1
    a("s_cmp_ge_u32 s2, 256")
    a("s_cbranch_scc1 L_end")
    a("s_load_dwordx16 s[16:31], s[0:1], 0")
    a("s_load_dwordx8 s[32:39], s[0:1], 64")
    a("s_load_dwordx2 s[40:41], s[0:1], 96")
    stamp(0)
    a("v_lshrrev_b32 v2, 6, v0")
    a(f"v_and_b32 v{vLane}, 63, v0")
    a(f"v_readfirstlane_b32 s{sWave}, v2")
    a(f"s_lshr_b32 s{sH}, s2, 3")
    a(f"s_and_b32 s{sG}, s2, 7")
    a(f"s_mov_b32 s{sMask}, 0xffff0000")
    a(f"s_mov_b32 s{sC}, 0x{(LOG2E if mimic else C_SCALE):08x}")
    if mimic:
        a(f"s_mov_b32 s82, 0x{SCALE_ONLY:08x}")
    a(f"s_mov_b32 s{sSpin}, {spin_cap}")
    a(f"v_lshlrev_b32 v3, 2, v{vLane}")
    a("v_mov_b32 v4, 0")
    a(f"s_cmp_eq_u32 s{sWave}, 4")
    a("s_cbranch_scc0 L_nosyinit")
    a(f"ds_write_b32 v3, v4 offset:{L_SYNC}")
    a.label("L_nosyinit")
    a("s_waitcnt lgkmcnt(0)")
    a("s_barrier")
    sstamp(1)
    a(f"s_cmp_lt_u32 s{sWave}, 4")
    a("s_cbranch_scc1 L_swave")

    vL16, vL4, vXo, vXo2, vSy, vOne = 2, 3, 4, 5, 6, 7
    vXr = 8
    vE = 16
    vW = 32
    vXN = 64
    vAcc = 144
    vU = 152
    vWO = 172
    vBo = 204
    vL2 = 205
    vW2 = 208
    vY = 224
    if hprio:
        a(f"s_setprio {hprio}")
    a(f"s_sub_u32 s{sHW}, s{sWave}, 4")
    a(f"v_lshlrev_b32 v{vL16}, 4, v{vLane}")
    a(f"s_mul_i32 s{sT0}, s{sHW}, 1280")
    a(f"v_add_u32 v{vXo}, s{sT0}, v{vL16}")
    a(f"v_add_u32 v{vXo2}, s{sT0}, v{vL4}")
    a(f"global_load_dwordx4 {V(vXr,4)}, v{vXo}, {P2(sX)}")
    a(f"global_load_dword v{vXr+4}, v{vXo2}, {P2(sX)} offset:1024")
    a(f"s_mul_i32 s{sT1}, s{sG}, 80")
    a(f"s_mul_i32 s{sT2}, s{sHW}, 20")
    a(f"s_add_u32 s{sStatic}, s{sT1}, s{sT2}")
    a(f"s_lshl_b32 s{sOff}, s{sStatic}, 13")
    a(f"s_lshl_b32 s{sT2}, s{sH}, 8")
    a(f"s_add_u32 s{sOff}, s{sOff}, s{sT2}")
    srd(SRD_A, sWQ, 640 * 8192)
    for i in range(20):
        a(f"buffer_load_dword v{vW+i}, v{vL4}, {P4(SRD_A)}, s{sOff} offen {pol}")
        if i < 19:
            a(f"s_add_u32 s{sOff}, s{sOff}, 8192")
    sstamp(2)
    a(f"v_lshlrev_b32 v{vU}, 3, v{vLane}")
    a(f"s_lshl_b32 s{sIdx}, s2, 13")
    a(f"s_add_u32 s{sIdx}, s{sIdx}, {WS_OB}")
    a(f"s_lshl_b32 s{sHeadW}, s{sH}, 16")
    a(f"s_add_u32 s{sHeadW}, s{sHeadW}, {WS_OB}")
    a(f"s_lshl_b32 s{sT2}, s{sHW}, 9")
    a(f"s_add_u32 s{sT2}, s{sT2}, s{sIdx}")
    a(f"v_add_u32 v{vU+2}, s{sT2}, v{vU}")
    a(f"v_mov_b32 v{vSy}, {L_SYNC}")
    a(f"v_mov_b32 v{vOne}, 1")
    a("s_waitcnt vmcnt(20)")
    sstamp(3)
    for j in range(5):
        a(f"v_lshlrev_b32 v{vE+2*j}, 16, v{vXr+j}")
        a(f"v_and_b32 v{vE+2*j+1}, s{sMask}, v{vXr+j}")
    vt, vs, vMean, vR = vU + 10, vU + 12, vU + 13, vU + 14
    a(f"v_add_f32 v{vs}, v{vE}, v{vE+1}")
    for j in range(2, 10):
        a(f"v_add_f32 v{vs}, v{vs}, v{vE+j}")
    wave_sum_to_sgpr(vs, sT0)
    a("s_nop 1")
    a(f"v_mov_b32 v{vMean}, s{sT0}")
    a(f"v_mul_f32 v{vMean}, 0x{INV640:08x}, v{vMean}")
    a(f"v_sub_f32 v{vt}, v{vE}, v{vMean}")
    a(f"v_mul_f32 v{vs}, v{vt}, v{vt}")
    for j in range(1, 10):
        a(f"v_sub_f32 v{vt}, v{vE+j}, v{vMean}")
        a(f"v_fmac_f32 v{vs}, v{vt}, v{vt}")
    wave_sum_to_sgpr(vs, sT0)
    a("s_nop 1")
    a(f"v_mov_b32 v{vR}, s{sT0}")
    a(f"v_mul_f32 v{vR}, 0x{INV640:08x}, v{vR}")
    rnd_bf16(vR, vR)
    a(f"v_add_f32 v{vR}, 0x{EPS:08x}, v{vR}")
    rnd_bf16(vR, vR)
    a(f"v_sqrt_f32 v{vR}, v{vR}")
    a("s_nop 0")
    rnd_bf16(vR, vR)
    a(f"v_rcp_f32 v{vR}, v{vR}")
    rnd_bf16(vMean, vMean)
    for j in range(10):
        a(f"v_sub_f32 v{vE+j}, v{vE+j}, v{vMean}")
    for j in range(0, 10, 2):
        a(f"v_cvt_pk_bf16_f32 v{vt}, v{vE+j}, v{vE+j+1}")
        a(f"v_lshlrev_b32 v{vE+j}, 16, v{vt}")
        a(f"v_and_b32 v{vE+j+1}, s{sMask}, v{vt}")
    for j in range(10):
        a(f"v_mul_f32 v{vE+j}, v{vE+j}, v{vR}")
    for j in range(0, 10, 2):
        a(f"v_cvt_pk_bf16_f32 v{vt}, v{vE+j}, v{vE+j+1}")
        a(f"v_lshlrev_b32 v{vE+j}, 16, v{vt}")
        a(f"v_and_b32 v{vE+j+1}, s{sMask}, v{vt}")
    a(f"s_mul_i32 s{sT0}, s{sHW}, 2560")
    a(f"v_lshlrev_b32 v{vt}, 5, v{vLane}")
    a(f"v_add_u32 v{vt}, s{sT0}, v{vt}")
    a(f"v_add_u32 v{vt+1}, s{sT0}, v{vU}")
    a(f"ds_write_b128 v{vt}, {V(vE,4)} offset:{L_XN}")
    a(f"ds_write_b128 v{vt}, {V(vE+4,4)} offset:{L_XN+16}")
    a(f"ds_write_b64 v{vt+1}, {V(vE+8,2)} offset:{L_XN+2048}")
    lds_arrive(1, vSy, vOne)
    sstamp(4)
    a(f"s_lshl_b32 s{sT1}, s{sStatic}, 2")
    a(f"v_mov_b32 v{vt}, s{sT1}")
    for i in range(8):
        a(f"v_mov_b32 v{vAcc+i}, 0")
    lds_wait(1, 4, vSy, vt + 1, sT0)
    stamp(2)
    for b in range(4):
        for k in range(5):
            a(f"ds_read_b128 {V(vXN+b*20+4*k,4)}, v{vt} offset:{L_XN+b*2560+16*k}")
    a("s_waitcnt vmcnt(0) lgkmcnt(0)")
    sstamp(5)
    for i in range(20):
        t = vU + 10 + 2 * (i % 3)
        a(f"v_lshlrev_b32 v{t}, 16, v{vW+i}")
        a(f"v_and_b32 v{t+1}, s{sMask}, v{vW+i}")
        for b in range(4):
            x = vXN + b * 20 + i
            xb = x & ~1
            sel = "op_sel:[0,1,0] op_sel_hi:[1,1,1]" if (x & 1) else "op_sel_hi:[1,0,1]"
            a(f"v_pk_fma_f32 {V(vAcc+2*b,2)}, {V(t,2)}, {V(xb,2)}, {V(vAcc+2*b,2)} {sel}")
    a(f"s_lshl_b32 s{sT0}, s{sHW}, 11")
    a(f"v_add_u32 v{vU+1}, s{sT0}, v{vU}")
    for b in range(4):
        a(f"ds_write_b64 v{vU+1}, {V(vAcc+2*b,2)} offset:{L_QPART+b*512}")
    lds_arrive(2, vSy, vOne)
    a(f"s_lshl_b32 s{sT0}, s{sHW}, 9")
    a(f"v_add_u32 v{vU+1}, s{sT0}, v{vU}")
    lds_wait(2, 4, vSy, vU + 4, sT0)
    for w in range(4):
        a(f"ds_read_b64 {V(vAcc+2*w,2)}, v{vU+1} offset:{L_QPART+w*2048}")
    a("s_waitcnt lgkmcnt(0)")
    a(f"v_pk_add_f32 {V(vAcc,2)}, {V(vAcc,2)}, {V(vAcc+2,2)}")
    a(f"v_pk_add_f32 {V(vAcc+4,2)}, {V(vAcc+4,2)}, {V(vAcc+6,2)}")
    a(f"v_pk_add_f32 {V(vAcc,2)}, {V(vAcc,2)}, {V(vAcc+4,2)}")
    sstamp(6)
    lds_wait(0, 1, vSy, vU + 4, sT0)
    a(f"global_store_dwordx2 v{vU+2}, {V(vAcc,2)}, {P2(sWS)} sc1")
    stamp(3)
    sstamp(7)
    a(f"s_lshl_b32 s{sT2}, s{sHW}, 9")
    a(f"s_add_u32 s{sT2}, s{sT2}, s{sHeadW}")
    vGa = 80
    for g_ in range(8):
        a(f"s_add_u32 s{sT3}, s{sT2}, {g_*8192}")
        a(f"v_add_u32 v{vGa+g_}, s{sT3}, v{vU}")
    a(f"s_cmp_eq_u32 s{sHW}, 0")
    a("s_cbranch_scc0 L_h_b4")
    a(f"s_add_u32 s{sT0}, s{sIdx}, {OB_GO}")
    a(f"v_mov_b32 v{vU+4}, s{sT0}")
    a.label("L_qpoll")
    a(f"global_load_dword v{vU+6}, v{vU+4}, {P2(sWS)} sc1")
    a("s_waitcnt vmcnt(0)")
    a(f"v_readfirstlane_b32 s{sT1}, v{vU+6}")
    a("s_nop 1")
    a(f"s_cmp_eq_u32 s{sT1}, 1")
    a("s_cbranch_scc1 L_qok")
    a(f"s_sleep {qpoll_sleep}")
    spin_timeout("L_qpoll")
    a.label("L_qok")
    lds_arrive(4, vSy, vOne)
    a.label("L_h_b4")
    lds_wait(4, 1, vSy, vU + 4, sT0)
    stamp(4)
    vG = vXN
    a.label("L_qg")
    for g_ in range(8):
        a(f"global_load_dwordx2 {V(vG+2*g_,2)}, v{vGa+g_}, {P2(sWS)} sc1")
    a("s_waitcnt vmcnt(0)")
    sentinel_check(range(vG, vG + 16), vU + 4)
    a("s_cbranch_vccz L_qgok")
    spin_timeout("L_qg")
    a.label("L_qgok")
    for g_ in range(1, 8):
        a(f"v_pk_add_f32 {V(vG,2)}, {V(vG,2)}, {V(vG+2*g_,2)}")
    a(f"v_cvt_pk_bf16_f32 v{vU+4}, v{vG}, v{vG+1}")
    a(f"s_lshl_b32 s{sT0}, s{sHW}, 8")
    a(f"v_add_u32 v{vU+5}, s{sT0}, v{vL4}")
    a(f"ds_write_b32 v{vU+5}, v{vU+4} offset:{L_QB}")
    lds_arrive(5, vSy, vOne)
    stamp(5)
    a("s_branch L_h_post")

    a.label("L_swave")
    NR = 4
    NXR = 8
    NLK = 2 * NL
    NXT = NXR + NLK
    NPRE = NXT + NR
    assert NLK <= NXR
    vOff, vOst, vMl, vQa, vScl = 2, 4, 5, 6, 7
    vQ = 8
    vO = 12
    vM, vL = 20, 21
    vAl, vMn = 22, 23
    vS = 24
    vT = 28
    vTmp, vTk = 36, 38
    vSn = 40
    vSc = [40, 44, 48, 52]
    vTkt = [56, 57, 58, 59]
    vCo, vCo2, vScg = 60, 61, 62
    SRD_C = SRD_A
    SRD_L = SRD_K
    sBq4 = [73, 74, 75, 52]
    sTk4 = [53, 54, 55, 7]
    sVIdx, sNV, sOld = 5, 4, 82 - 1
    sOld = 3
    sMim = 82
    RING = 64
    def rbuf(j): return RING + 16 * j
    def xbuf(x): return RING + 64 + 16 * x
    PH = 4096 * 4
    def ld4(bb):
        for i in range(KL):
            a(f"buffer_load_dwordx4 {V(bb+4*i,4)}, v{vOff}, {P4(SRD_L)}, s{sOff} offen offset:{i*1024} {pol}")
    a(f"v_lshlrev_b32 v{vOff}, 4, v{vLane}")
    a(f"s_cmp_eq_u32 s{sWave}, 0")
    a("s_cbranch_scc0 L_s_nop0")
    a("s_setprio 3")
    for i in range(4):
        a(f"v_mov_b32 v{vSn+i}, -1")
    a(f"s_lshl_b32 s{sT0}, s2, 13")
    a(f"s_add_u32 s{sT0}, s{sT0}, {WS_OB}")
    a(f"v_add_u32 v{vSn+4}, s{sT0}, v{vOff}")
    a(f"v_add_u32 v{vSn+5}, 4096, v{vSn+4}")
    for k in range(OB_FILL):
        a(f"global_store_dwordx4 v{vSn+4+(k>>2)}, {V(vSn,4)}, {P2(sWS)} offset:{(k&3)*1024} sc1")
    a(f"s_lshl_b32 s{sT0}, s{sH}, 8")
    a(f"s_lshl_b32 s{sT1}, s{sG}, 3")
    a(f"s_add_u32 s{sT1}, s{sT1}, s{sT0}")
    a(f"s_add_u32 s{sT1}, s{sT1}, {WS_OPML}")
    a(f"v_lshlrev_b32 v{vSn+6}, 6, v{vLane}")
    a(f"v_add_u32 v{vSn+6}, s{sT1}, v{vSn+6}")
    a(f"s_mul_i32 s{sT2}, s{sH}, {cstride}")
    a(f"s_add_u32 s{sT2}, s{sT2}, {WS_CTR}")
    a(f"v_lshlrev_b32 v{vSn+7}, 7, v{vLane}")
    a(f"v_add_u32 v{vSn+7}, s{sT2}, v{vSn+7}")
    a(f"v_mov_b32 v{vTmp}, 0")
    a("s_mov_b64 exec, 0xf")
    a(f"global_store_dwordx2 v{vSn+6}, {V(vSn,2)}, {P2(sWS)} sc1")
    a("s_mov_b64 exec, 3")
    a(f"s_cmp_eq_u32 s{sG}, 0")
    a("s_cbranch_scc0 L_noctr")
    a(f"global_store_dword v{vSn+7}, v{vTmp}, {P2(sWS)} sc1")
    a.label("L_noctr")
    a("s_mov_b64 exec, 1")
    a(f"s_lshr_b32 s{sT1}, s{sH}, 4")
    a(f"s_lshl_b32 s{sT1}, s{sT1}, 5")
    a(f"s_and_b32 s{sT2}, s{sH}, 15")
    a(f"s_add_u32 s{sT1}, s{sT1}, s{sT2}")
    a(f"s_lshl_b32 s{sT1}, s{sT1}, 2")
    a(f"v_mov_b32 v{vSn+6}, s{sT1}")
    a(f"v_mov_b32 v{vTmp}, 1")
    a(f"v_mov_b32 v{vTk}, {L_SYNC}")
    a("s_waitcnt vmcnt(0)")
    sstamp(3)
    a(f"global_atomic_add v{vSn+7}, v{vSn+6}, v{vTmp}, {P2(sDBG)} sc0")
    a(f"ds_write_b32 v{vTk}, v{vTmp}")
    a("s_waitcnt vmcnt(0)")
    a(f"v_readfirstlane_b32 s{sT0}, v{vSn+7}")
    a("s_mov_b64 exec, -1")
    a("s_nop 0")
    a(f"s_and_b32 s{sT0}, s{sT0}, 7")
    a(f"s_cmp_eq_u32 s{sT0}, 7")
    a("s_cbranch_scc0 L_s_nogo")
    a(f"s_lshl_b32 s{sT1}, s{sH}, 16")
    a(f"s_add_u32 s{sT1}, s{sT1}, {WS_OB+OB_GO}")
    a(f"v_lshlrev_b32 v{vSn+4}, 13, v{vLane}")
    a(f"v_add_u32 v{vSn+4}, s{sT1}, v{vSn+4}")
    a(f"v_mov_b32 v{vTmp}, 1")
    a("s_mov_b64 exec, 0xff")
    a(f"global_store_dword v{vSn+4}, v{vTmp}, {P2(sWS)} sc1")
    a("s_mov_b64 exec, -1")
    a.label("L_s_nogo")
    sstamp(4)
    a("s_setprio 0")
    a.label("L_s_nop0")
    a(f"s_lshl_b32 s{sHeadW}, s{sH}, 21")
    a(f"s_lshr_b32 s{sCur}, s{sG}, 1")
    a(f"s_lshl_b32 s{sT0}, s{sCur}, 26")
    a(f"s_and_b32 s{sT1}, s{sG}, 1")
    a(f"s_lshl_b32 s{sT1}, s{sT1}, 20")
    a(f"s_add_u32 s{sStatic}, s{sHeadW}, s{sT0}")
    a(f"s_add_u32 s{sStatic}, s{sStatic}, s{sT1}")
    a(f"s_lshl_b32 s{sT0}, s{sWave}, 12")
    a(f"s_add_u32 s{sStatic}, s{sStatic}, s{sT0}")
    if stamps and sprof == 3:
        a("v_mov_b32 v63, 0")
        a("v_writelane_b32 v63, s84, 0")
    srd(SRD_L, sK, 0x10000000)
    srd(SRD_C, sWS, 0x100000)
    a(f"v_mov_b32 v{vTk}, {L_SYNC}")
    a(f"s_mul_i32 s{sT0}, s{sH}, {cstride}")
    a(f"s_add_u32 s{sT0}, s{sT0}, {WS_CTR}")
    a(f"v_mov_b32 v{vCo}, s{sT0}")
    a(f"v_add_u32 v{vCo2}, 128, v{vCo}")
    def ost_init():
        for i in range(4):
            a(f"v_mov_b32 v{vT+i}, 0")
        for b in range(4):
            a(f"ds_write_b128 v{vOst}, {V(vT,4)} offset:{b*2048}")
            a(f"ds_write_b128 v{vOst}, {V(vT,4)} offset:{b*2048+16}")
    def s_lds_init():
        a(f"s_mul_i32 s{sT0}, s{sWave}, {L_LPW}")
        a(f"v_lshlrev_b32 v{vOst}, 5, v{vLane}")
        a(f"v_add_u32 v{vOst}, s{sT0}, v{vOst}")
        a(f"v_add_u32 v{vOst}, {L_OST}, v{vOst}")
        a(f"v_lshrrev_b32 v{vMl}, 4, v{vLane}")
        a(f"v_lshlrev_b32 v{vScl}, 4, v{vMl}")
        a(f"s_lshl_b32 s{sT0}, s{sWave}, 12")
        a(f"s_add_u32 s{sT0}, s{sT0}, {L_SCL}")
        a(f"v_add_u32 v{vScl}, s{sT0}, v{vScl}")
        a(f"s_lshl_b32 s{sT0}, s{sWave}, 2")
        a(f"v_add_u32 v{vMl}, s{sT0}, v{vMl}")
        a(f"v_lshlrev_b32 v{vMl}, 3, v{vMl}")
        a(f"v_add_u32 v{vMl}, {L_ML}, v{vMl}")
        a(f"v_and_b32 v{vQa}, 15, v{vLane}")
        a(f"v_lshlrev_b32 v{vQa}, 4, v{vQa}")
        a(f"v_add_u32 v{vQa}, {L_QB}, v{vQa}")
        for i in range(8):
            a(f"v_mov_b32 v{vO+i}, 0")
        a(f"v_mov_b32 v{vM}, 0x{NEG_MAX:08x}")
        a(f"v_mov_b32 v{vL}, 0")
        for b in range(4):
            a(f"ds_write_b64 v{vMl}, {V(vM,2)} offset:{b*128}")
        if NLK == 0:
            ost_init()
    nld = 0
    th_ = min(th, 48)
    a(f"s_mul_i32 s{sT4}, s{sWave}, {L_LPW}")
    a(f"s_add_u32 s{sT4}, s{sT4}, {L_OST}")
    seq = [("x", i) for i in range(NXR)] + [("l", j) for j in range(NLK)] + [("r", j) for j in range(NR)]
    for n_, (kind, bi) in enumerate(seq):
        a(f"s_add_u32 s{sOff}, s{sStatic}, {n_ * CH}")
        if kind == "l":
            a(f"s_add_u32 m0, s{sT4}, {bi*4096}")
        for i in range(KL):
            if nld >= th_:
                a(f"s_waitcnt vmcnt({th_-1})")
            elif kind == "l" and i == 0:
                a("s_nop 0")
            if kind == "l":
                a(f"buffer_load_dwordx4 v{vOff}, {P4(SRD_L)}, s{sOff} offen offset:{i*1024} {pol} lds")
            else:
                bb = xbuf(bi) if kind == "x" else rbuf(bi)
                a(f"buffer_load_dwordx4 {V(bb+4*i,4)}, v{vOff}, {P4(SRD_L)}, s{sOff} offen offset:{i*1024} {pol}")
            nld += 1
            if nld == th_:
                sstamp(2)
    stamp(1)
    sstamp(5)
    s_lds_init()
    lds_wait(5, 4, vTk, vTmp, sT0)
    stamp(2)
    sstamp(6)
    a(f"s_lshl_b32 s{sT0}, s{sCur}, 8")
    a(f"v_add_u32 v{vTmp}, s{sT0}, v{vQa}")
    a(f"ds_read_b128 {V(vQ,4)}, v{vTmp}")
    a(f"s_mov_b32 s{sIdx}, {NPRE}")
    a(f"s_mov_b32 s{sN}, {NXT}")
    a(f"s_mov_b32 s{sNT}, 0")
    a(f"s_mov_b32 s{sVIdx}, 0")
    a(f"s_mov_b32 s{sNV}, 0x7fffffff")
    for j in range(NR):
        a(f"s_mov_b32 s{sBq4[j]}, s{sCur}")
        a(f"s_mov_b32 s{sTk4[j]}, {NXT + j}")
    a(f"s_mov_b32 s{sXc}, 0")
    a(f"s_mov_b32 s{sBn}, s{sCur}")
    sQb = sBn
    sNb, sNtag = sT3, sT2
    a("s_waitcnt lgkmcnt(0)")

    LEAD = ("s_mov_b32 exec_lo, 0x00010001", "s_mov_b32 exec_hi, 0x00010001")
    def qk(bb):
        for j in range(4):
            for i in range(KL):
                k = bb + 4 * i + j
                if j == 0:
                    a(f"v_dot2_f32_bf16 v{vS+i}, v{k}, v{vQ+j}, 0")
                else:
                    a(f"v_dot2_f32_bf16 v{vS+i}, v{k}, v{vQ+j}, v{vS+i}")
    def reduce_scores():
        row_allreduce("v_add_f32", [vS, vS+1, vS+2, vS+3], nop_first=False)
        for rep in range(2):
            if mimic:
                a(f"v_cvt_pk_bf16_f32 v{vT}, v{vS}, v{vS+1}")
                a(f"v_cvt_pk_bf16_f32 v{vT+1}, v{vS+2}, v{vS+3}")
                a(f"v_lshlrev_b32 v{vS}, 16, v{vT}")
                a(f"v_and_b32 v{vS+1}, s{sMask}, v{vT}")
                a(f"v_lshlrev_b32 v{vS+2}, 16, v{vT+1}")
                a(f"v_and_b32 v{vS+3}, s{sMask}, v{vT+1}")
            if rep == 0 and mimic:
                for i in range(4):
                    a(f"v_mul_f32 v{vS+i}, s{sMim}, v{vS+i}")
    def store_scores_static(stag):
        a(f"s_lshl_b32 s{sT0}, s{stag}, 6")
        a(f"v_add_u32 v{vTmp}, s{sT0}, v{vScl}")
        a(LEAD[0]); a(LEAD[1])
        a(f"ds_write_b128 v{vTmp}, {V(vS,4)}")
        a("s_mov_b64 exec, -1")
    def softmax(sb):
        a(f"v_max3_f32 v{vMn}, v{sb}, v{sb+1}, v{sb+2}")
        a(f"v_max_f32 v{vMn}, v{vMn}, v{sb+3}")
        a(f"v_mul_f32 v{vMn}, s{sC}, v{vMn}")
        a(f"v_max_f32 v{vMn}, v{vMn}, v{vM}")
        a(f"v_sub_f32 v{vAl}, v{vM}, v{vMn}")
        for i in range(4):
            a(f"v_fma_f32 v{sb+i}, v{sb+i}, s{sC}, -v{vMn}")
        a(f"v_exp_f32 v{vAl}, v{vAl}")
        for i in range(4):
            a(f"v_exp_f32 v{sb+i}, v{sb+i}")
        a(f"v_mov_b32 v{vM}, v{vMn}")
        a(f"v_fma_f32 v{vL}, v{vL}, v{vAl}, v{sb}")
        a(f"v_add_f32 v{vT}, v{sb+1}, v{sb+2}")
        a(f"v_add_f32 v{vL}, v{vL}, v{sb+3}")
        a(f"v_add_f32 v{vL}, v{vL}, v{vT}")
        for j in range(4):
            a(f"v_pk_mul_f32 {V(vO+2*j,2)}, {V(vO+2*j,2)}, {V(vAl,2)} op_sel_hi:[1,0]")
    def pv(bb, sb):
        for i in range(KL):
            p = sb + i
            pb = p & ~1
            sel = "op_sel:[0,1,0] op_sel_hi:[1,1,1]" if (p & 1) else "op_sel_hi:[1,0,1]"
            for j in range(4):
                v = bb + 4 * i + j
                t = vT + 2 * j
                a(f"v_lshlrev_b32 v{t}, 16, v{v}")
                a(f"v_and_b32 v{t+1}, s{sMask}, v{v}")
            for j in range(4):
                t = vT + 2 * j
                a(f"v_pk_fma_f32 {V(vO+2*j,2)}, {V(t,2)}, {V(pb,2)}, {V(vO+2*j,2)} {sel}")
    WAITN = (NR - 1) * KL
    sTyp = 8
    def set_srd(ptr):
        a(f"s_mov_b32 s{SRD_L}, s{ptr}")
        a(f"s_mov_b32 s{SRD_L+1}, s{ptr+1}")
    def decode_ticket(st):
        a(f"s_lshr_b32 s{sT0}, s{st}, {logPW}")
        a(f"s_and_b32 s{sOff}, s{st}, {4*P-1}")
        a(f"s_lshl_b32 s{sOff}, s{sOff}, 12")
        a(f"s_add_u32 s{sOff}, s{sOff}, {S*CH}")
        a(f"s_add_u32 s{sOff}, s{sOff}, s{sHeadW}")
        a(f"s_lshr_b32 s{sNb}, s{sT0}, 1")
        a(f"s_and_b32 s{sT0}, s{sT0}, 1")
        a(f"s_lshl_b32 s{sT0}, s{sT0}, 20")
        a(f"s_add_u32 s{sOff}, s{sOff}, s{sT0}")
        a(f"s_lshl_b32 s{sT0}, s{sNb}, 26")
        a(f"s_add_u32 s{sOff}, s{sOff}, s{sT0}")
    def issue_v_static(j):
        a(f"s_mul_i32 s{sOff}, s{sVIdx}, {CH}")
        a(f"s_add_u32 s{sOff}, s{sOff}, s{sStatic}")
        a(f"s_lshl_b32 s{sT0}, s{sVIdx}, 6")
        a(f"v_add_u32 v{vTmp}, s{sT0}, v{vScl}")
        a(f"ds_read_b128 {V(vSc[j],4)}, v{vTmp}")
        a(f"s_lshr_b32 s{sNb}, s{sG}, 1")
        a(f"s_add_u32 s{sVIdx}, s{sVIdx}, 1")
    def progstamp(tag):
        if stamps and sprof == 3:
            a(f"s_and_b32 s{sT0}, s{sN}, 7")
            a(f"s_cbranch_scc1 L_nops_{tag}")
            a(f"s_memrealtime s[84:85]")
            a(f"s_lshr_b32 m0, s{sN}, 3")
            a("s_waitcnt lgkmcnt(0)")
            a(f"v_writelane_b32 v63, s84, m0")
            a.label(f"L_nops_{tag}")
    sDOff, sDB, sDVal = 9, 10, 11
    def request_ticket(j):
        a(f"v_mov_b32 v{vTkt[j]}, 1")
        a("s_mov_b64 exec, 1")
        a(f"buffer_atomic_add v{vTkt[j]}, v{vCo}, {P4(SRD_C)}, 0 offen sc0")
        a("s_mov_b64 exec, -1")
    def next_dyn(j, tag):
        if j % 2 == 0:
            set_srd(sK)
            a(f"s_mov_b32 s{sNtag}, 0")
            a(f"s_mov_b32 s{sDVal}, 0")
            a(f"s_cmp_lg_u32 s{sNT}, 0")
            a(f"s_cbranch_scc1 L_nx_{tag}")
            a(f"v_readfirstlane_b32 s{sT1}, v{vTkt[j]}")
            a("s_nop 1")
            a(f"s_cmp_lt_u32 s{sT1}, {D}")
            a(f"s_cbranch_scc0 L_ne_{tag}")
            decode_ticket(sT1)
            a(f"s_mov_b32 s{sDOff}, s{sOff}")
            a(f"s_mov_b32 s{sDB}, s{sNb}")
            a(f"s_mov_b32 s{sDVal}, 1")
            a(f"s_mov_b32 s{sNtag}, 1")
            request_ticket(j)
            a(f"s_branch L_nd_{tag}")
            a.label(f"L_ne_{tag}")
            a(f"s_mov_b32 s{sNT}, 1")
            a.label(f"L_nx_{tag}")
            a(f"s_mov_b32 s{sOff}, 0x7ff00000")
            a(f"s_mov_b32 s{sNb}, s{sCur}")
            a.label(f"L_nd_{tag}")
        else:
            set_srd(sV)
            a(f"s_mov_b32 s{sNtag}, s{sDVal}")
            a(f"s_mov_b32 s{sNb}, s{sDB}")
            a(f"s_cmp_eq_u32 s{sDVal}, 1")
            a(f"s_cselect_b32 s{sOff}, s{sDOff}, 0x7ff00000")

    def kbody(j):
        tag = f"K{j}"
        bb = rbuf(j)
        a(f"s_cmp_lt_u32 s{sXc}, {NXT}")
        a(f"s_cbranch_scc1 L_x{tag}")
        a.label(f"L_x{tag}_ret")
        a(f"s_waitcnt vmcnt({WAITN})")
        qk(bb)
        a(f"s_cmp_lt_u32 s{sIdx}, {S}")
        a(f"s_cbranch_scc0 L_kd_{tag}")
        a(f"s_mul_i32 s{sOff}, s{sIdx}, {CH}")
        a(f"s_add_u32 s{sOff}, s{sOff}, s{sStatic}")
        a(f"s_add_u32 s{sIdx}, s{sIdx}, 1")
        a.label(f"L_kld_{tag}")
        ld4(bb)
        reduce_scores()
        store_scores_static(sN)
        a(f"s_add_u32 s{sN}, s{sN}, 1")
        progstamp(tag)
        a(f"s_cmp_ge_u32 s{sN}, {S}")
        a(f"s_cbranch_scc1 L_V{(j+1)%NR}_entry")
    def kbody_ool(j):
        tag = f"K{j}"
        a.label(f"L_kd_{tag}")
        set_srd(sV)
        issue_v_static(j)
        a(f"s_branch L_kld_{tag}")
        a.label(f"L_x{tag}")
        a(f"s_add_u32 s{sXc}, s{sXc}, 1")
        a(f"s_call_b64 {P2(sRet)}, L_xbody")
        a(f"s_branch L_x{tag}_ret")
    def vbody(j):
        tag = f"V{j}"
        bb = rbuf(j)
        a.label(f"L_V{j}_entry")
        a(f"s_waitcnt vmcnt({WAITN}) lgkmcnt(0)")
        softmax(vSc[j])
        pv(bb, vSc[j])
        a(f"s_cmp_lt_u32 s{sVIdx}, {S}")
        a(f"s_cbranch_scc0 L_vd_{tag}")
        issue_v_static(j)
        if dyn and j % 2 == 0:
            a(f"s_cmp_le_u32 s{sVIdx}, {S-NR}")
            a(f"s_cbranch_scc1 L_vld_{tag}")
            request_ticket(j)
        a.label(f"L_vld_{tag}")
        ld4(bb)
        a(f"s_add_u32 s{sN}, s{sN}, 1")
        progstamp(tag)
        a(f"s_cmp_ge_u32 s{sN}, {2*S}")
        a(f"s_cbranch_scc1 {'L_D%d_entry' % ((j+1)%NR) if dyn else 'L_sfin'}")
    def vbody_ool(j):
        tag = f"V{j}"
        a.label(f"L_vd_{tag}")
        if dyn:
            next_dyn(j, tag)
            a(f"s_mov_b32 s{sBq4[j]}, s{sNb}")
            a(f"s_mov_b32 s{sTk4[j]}, s{sNtag}")
        else:
            a(f"s_mov_b32 s{sOff}, 0x7ff00000")
        a(f"s_branch L_vld_{tag}")
    def dbody(j):
        tag = f"D{j}"
        bb = rbuf(j)
        a.label(f"L_D{j}_entry")
        a(f"s_cmp_eq_u32 s{sTk4[j]}, 0")
        a(f"s_cbranch_scc1 L_dinv_{tag}")
        if j % 2 == 0:
            a(f"s_cmp_eq_u32 s{sBq4[j]}, s{sQb}")
            a(f"s_cbranch_scc1 L_nq_{tag}")
            a(f"s_mov_b32 s{sQb}, s{sBq4[j]}")
            a(f"s_lshl_b32 s{sT0}, s{sQb}, 8")
            a(f"v_add_u32 v{vTmp}, s{sT0}, v{vQa}")
            a(f"ds_read_b128 {V(vQ,4)}, v{vTmp}")
            a("s_waitcnt lgkmcnt(0)")
            a.label(f"L_nq_{tag}")
            a(f"s_waitcnt vmcnt({WAITN})")
            qk(bb)
            next_dyn(j, tag)
            ld4(bb)
            reduce_scores()
        else:
            a(f"s_cmp_eq_u32 s{sBq4[j]}, s{sCur}")
            a(f"s_cbranch_scc1 L_nosw_{tag}")
            a(f"s_mov_b32 s{sSw}, s{sBq4[j]}")
            a(f"s_call_b64 {P2(sRet)}, L_switch")
            a.label(f"L_nosw_{tag}")
            softmax(vS)
            a(f"s_waitcnt vmcnt({WAITN})")
            pv(bb, vS)
            next_dyn(j, tag)
            ld4(bb)
        a(f"s_mov_b32 s{sBq4[j]}, s{sNb}")
        a(f"s_mov_b32 s{sTk4[j]}, s{sNtag}")
        a(f"s_add_u32 s{sN}, s{sN}, 1")
        progstamp(tag)
        if j == NR - 1:
            a("s_branch L_D0_entry")
    def dbody_ool(j):
        tag = f"D{j}"
        a.label(f"L_dinv_{tag}")
        a("s_branch L_sfin")

    sSw = 12
    a.label("L_kloop")
    for j in range(NR):
        kbody(j)
    a("s_branch L_kloop")
    a.label("L_vloop")
    for j in range(NR):
        vbody(j)
    a("s_branch L_vloop")
    if dyn:
        for j in range(NR):
            dbody(j)
        for j in range(NR):
            dbody_ool(j)
    for j in range(NR):
        kbody_ool(j)
    for j in range(NR):
        vbody_ool(j)
    a.label("L_xbody")
    a(f"s_sub_u32 s{sOld}, s{sXc}, 1")
    if NLK:
        a(f"s_cmp_le_u32 s{sXc}, {NXR}")
        a("s_cbranch_scc1 L_xreg")
        a(f"s_sub_u32 s{sT1}, s{sXc}, {NXR+1}")
        a(f"s_mul_i32 s{sT0}, s{sWave}, {L_LPW}")
        a(f"s_lshl_b32 s{sT2}, s{sT1}, 12")
        a(f"s_add_u32 s{sT0}, s{sT0}, s{sT2}")
        a(f"s_add_u32 s{sT0}, s{sT0}, {L_OST}")
        a(f"v_add_u32 v{vTmp}, s{sT0}, v{vOff}")
        for i in range(4):
            a(f"ds_read_b128 {V(xbuf(0)+4*i,4)}, v{vTmp} offset:{i*1024}")
        a("s_waitcnt lgkmcnt(0)")
        a(f"s_cmp_eq_u32 s{sXc}, {NXT}")
        a("s_cbranch_scc0 L_xb0")
        ost_init()
        a("s_branch L_xb0")
        a.label("L_xreg")
    for x in range(NXR):
        if x < NXR - 1:
            a(f"s_cmp_eq_u32 s{sXc}, {x+1}")
            a(f"s_cbranch_scc0 L_xn{x}")
        a.label(f"L_xb{x}")
        qk(xbuf(x))
        a("s_nop 2")
        reduce_scores()
        store_scores_static(sOld)
        a(f"s_setpc_b64 {P2(sRet)}")
        if x < NXR - 1:
            a.label(f"L_xn{x}")
    def save_state():
        a(f"s_lshl_b32 s{sT0}, s{sCur}, 11")
        a(f"v_add_u32 v{vTmp}, s{sT0}, v{vOst}")
        a(f"ds_write_b128 v{vTmp}, {V(vO,4)}")
        a(f"ds_write_b128 v{vTmp}, {V(vO+4,4)} offset:16")
        a(f"s_lshl_b32 s{sT0}, s{sCur}, 7")
        a(f"v_add_u32 v{vTmp+1}, s{sT0}, v{vMl}")
        a(f"ds_write_b64 v{vTmp+1}, {V(vM,2)}")
    a.label("L_switch")
    save_state()
    a(f"s_mov_b32 s{sCur}, s{sSw}")
    a(f"s_lshl_b32 s{sT0}, s{sCur}, 11")
    a(f"v_add_u32 v{vTmp}, s{sT0}, v{vOst}")
    a(f"ds_read_b128 {V(vO,4)}, v{vTmp}")
    a(f"ds_read_b128 {V(vO+4,4)}, v{vTmp} offset:16")
    a(f"s_lshl_b32 s{sT0}, s{sCur}, 7")
    a(f"v_add_u32 v{vTmp+1}, s{sT0}, v{vMl}")
    a(f"ds_read_b64 {V(vM,2)}, v{vTmp+1}")
    a("s_waitcnt lgkmcnt(0)")
    a(f"s_setpc_b64 {P2(sRet)}")

    a.label("L_sfin")
    if stamps and sprof == 3:
        a(f"s_lshl_b32 s{sT0}, s2, 2")
        a(f"s_add_u32 s{sT0}, s{sT0}, s{sWave}")
        a(f"s_lshl_b32 s{sT0}, s{sT0}, 8")
        a(f"s_add_u32 s{sT0}, s{sT0}, {WS_STAMP+0x40000}")
        a(f"v_lshlrev_b32 v39, 2, v{vLane}")
        a(f"v_add_u32 v39, s{sT0}, v39")
        a(f"global_store_dword v39, v63, {P2(sWS)}")
    stamp(3)
    save_state()
    a("s_waitcnt lgkmcnt(0)")
    a("s_barrier")
    stamp(6)
    tstamp(1)
    a(f"s_cmp_lt_u32 s{sH}, 4")
    a("s_cbranch_scc0 L_fin_stamp")
    a(f"s_cmp_lt_u32 s{sG}, 5")
    a("s_cbranch_scc0 L_fin_stamp")
    a("s_branch L_final_pre")

    a.label("L_h_post")
    a(f"v_lshlrev_b32 v{vL2}, 1, v{vLane}")
    if skippost:
        a("s_branch L_h_tailprep")
    a(f"s_cmp_lt_u32 s{sG}, 5")
    a("s_cbranch_scc0 L_h_notile")
    vTo = 8
    a(f"v_lshrrev_b32 v{vTo}, 4, v{vLane}")
    a(f"v_mul_u32_u24 v{vTo}, 1280, v{vTo}")
    a(f"v_and_b32 v{vTo+1}, 15, v{vLane}")
    a(f"v_lshlrev_b32 v{vTo+1}, 4, v{vTo+1}")
    a(f"v_add_u32 v{vTo}, v{vTo}, v{vTo+1}")
    srd(SRD_A, sWO, 4096 * 1280)
    srd(SRD_B, sW2, 1728 * 1280)
    a(f"s_lshl_b32 s{sT0}, s{sH}, 7")
    a(f"s_lshl_b32 s{sT1}, s{sHW}, 5")
    a(f"s_add_u32 s{sT0}, s{sT0}, s{sT1}")
    a(f"s_mul_i32 s{sT0}, s{sT0}, 1280")
    a(f"s_lshl_b32 s{sT1}, s{sG}, 8")
    a(f"s_add_u32 s{sT0}, s{sT0}, s{sT1}")
    a(f"s_lshl_b32 s{sT2}, s{sHW}, 13")
    a(f"s_add_u32 s{sT2}, s{sT2}, {L_WT}")
    for i in range(8):
        a(f"s_add_u32 m0, s{sT2}, {i*1024}")
        a(f"s_nop 0")
        a(f"buffer_load_dwordx4 v{vTo}, {P4(SRD_A)}, s{sT0} offen {pol} lds")
        a(f"s_add_u32 s{sT0}, s{sT0}, {4*1280}")
    a(f"s_lshl_b32 s{sT0}, s{sH}, 6")
    a(f"s_lshl_b32 s{sT3}, s{sHW}, 4")
    a(f"s_add_u32 s{sT0}, s{sT0}, s{sT3}")
    a(f"s_mul_i32 s{sT0}, s{sT0}, 1280")
    a(f"s_add_u32 s{sT0}, s{sT0}, s{sT1}")
    a(f"s_lshl_b32 s{sT2}, s{sHW}, 12")
    a(f"s_add_u32 s{sT2}, s{sT2}, {L_W2T}")
    for i in range(4):
        a(f"s_add_u32 m0, s{sT2}, {i*1024}")
        a(f"s_nop 0")
        a(f"buffer_load_dwordx4 v{vTo}, {P4(SRD_B)}, s{sT0} offen {pol} lds")
        a(f"s_add_u32 s{sT0}, s{sT0}, {4*1280}")
    a("s_waitcnt vmcnt(0)")
    lds_arrive(6, vSy, vOne)
    a(f"v_lshrrev_b32 v{vU}, 4, v{vLane}")
    a(f"v_lshlrev_b32 v{vBo}, 11, v{vU}")
    a(f"v_and_b32 v{vU+1}, 15, v{vLane}")
    a(f"v_lshlrev_b32 v{vU+1}, 1, v{vU+1}")
    a(f"v_add_u32 v{vBo}, v{vBo}, v{vU+1}")
    a(f"s_lshl_b32 s{sT1}, s{sHW}, 6")
    a(f"v_add_u32 v{vBo}, s{sT1}, v{vBo}")
    def build_btile(dst, ldsoff, nsteps, tmp):
        for s in range(nsteps):
            for j in range(8):
                a(f"ds_read_u16 v{tmp+8*s+j}, v{vBo} offset:{ldsoff + (32*s+j)*256}")
            a("s_waitcnt lgkmcnt(0)")
            for j2 in range(4):
                a(f"v_lshl_or_b32 v{dst+4*s+j2}, v{tmp+8*s+2*j2+1}, 16, v{tmp+8*s+2*j2}")
    lds_wait(6, 4, vSy, vU + 4, sT0)
    for tt in range(2):
        build_btile(vWO + 16 * tt, L_WT + tt * 32, 4, 64)
    for tt in range(2):
        build_btile(vW2 + 8 * tt, L_W2T + tt * 32, 2, 64)
    a.label("L_h_notile")
    a(f"s_cmp_eq_u32 s{sHW}, 3")
    a("s_cbranch_scc1 L_h3")
    a(f"s_cmp_eq_u32 s{sHW}, 0")
    a("s_cbranch_scc0 L_h_ffn2")
    a(f"s_cmp_lt_u32 s{sH}, 4")
    a("s_cbranch_scc0 L_h_ffn2")
    a.label("L_fflag")
    a(f"global_load_dword v{vU+1}, v{vL4}, {P2(sDBG)} sc1")
    a(f"v_and_b32 v{vU+2}, 16, v{vLane}")
    a(f"v_lshrrev_b32 v{vU+2}, 1, v{vU+2}")
    a("s_waitcnt vmcnt(0)")
    a(f"v_add_u32 v{vU+1}, v{vU+1}, v{vU+2}")
    a(f"v_cmp_gt_u32 vcc, 8, v{vU+1}")
    a("s_nop 4")
    a("s_cbranch_vccz L_h_ffn2")
    a("s_sleep 8")
    spin_timeout("L_fflag")
    a("s_branch L_h_ffn2")

    a.label("L_h3")
    vW1 = 32
    vXq = 112
    vHA = 128
    vHG = 32
    vHa = 112
    if skipffn:
        a("s_branch L_h_tailprep")
    srd(SRD_B, sW1, 640 * 3456)
    a(f"s_mul_i32 s{sOff}, s{sG}, {80*3456}")
    a(f"s_lshl_b32 s{sT0}, s{sH}, 7")
    a(f"s_add_u32 s{sOff}, s{sOff}, s{sT0}")
    a(f"s_cmp_lt_u32 s{sH}, 27")
    a(f"s_cselect_b32 s{sOff}, s{sOff}, 0x7f000000")
    for q4 in range(80 // w1b):
        for i in range(w1b):
            a(f"buffer_load_ushort v{vW1+w1b*q4+i}, v{vL2}, {P4(SRD_B)}, s{sOff} offen {pol}")
            a(f"s_add_u32 s{sOff}, s{sOff}, 3456")
        a("s_waitcnt vmcnt(0)")
    for b in range(4):
        a(f"v_mov_b32 v{vHA+b}, 0")
    a(f"s_mul_i32 s{sT0}, s{sG}, 320")
    a(f"v_mov_b32 v{vU}, s{sT0}")
    for q4 in range(20):
        for b in range(4):
            a(f"ds_read_b128 {V(vXq+4*b,4)}, v{vU} offset:{L_XN+b*2560+16*q4}")
        for r in range(4):
            a(f"v_lshlrev_b32 v{vW1+4*q4+r}, 16, v{vW1+4*q4+r}")
        a("s_waitcnt lgkmcnt(0)")
        for r in range(4):
            for b in range(4):
                a(f"v_fmac_f32 v{vHA+b}, v{vXq+4*b+r}, v{vW1+4*q4+r}")
    a(f"s_add_u32 s{sT0}, s{sIdx}, {OB_HP}")
    a(f"v_add_u32 v{vU+1}, s{sT0}, v{vL4}")
    for b in range(4):
        a(f"global_store_dword v{vU+1}, v{vHA+b}, {P2(sWS)} offset:{b*256} sc1")
    a(f"s_cmp_lt_u32 s{sG}, 5")
    a("s_cbranch_scc0 L_h_tailprep")
    srd(SRD_B, sB1, 1728 * 2)
    a(f"s_lshl_b32 s{sT0}, s{sH}, 7")
    a(f"buffer_load_ushort v{vU+3}, v{vL2}, {P4(SRD_B)}, s{sT0} offen")
    for g_ in range(8):
        a(f"s_add_u32 s{sT0}, s{sHeadW}, {OB_HP+g_*8192}")
        a(f"v_add_u32 v{vHa+g_}, s{sT0}, v{vL4}")
    a(f"v_and_b32 v{vU+5}, 7, v{vLane}")
    a(f"v_lshlrev_b32 v{vU+5}, 13, v{vU+5}")
    a(f"s_add_u32 s{sT0}, s{sHeadW}, {OB_HP+3*256}")
    a(f"v_add_u32 v{vU+5}, s{sT0}, v{vU+5}")
    a("s_mov_b64 exec, 0xff")
    a.label("L_hlp")
    a(f"global_load_dword v{vU+6}, v{vU+5}, {P2(sWS)} sc1")
    a("s_waitcnt vmcnt(0)")
    a(f"v_cmp_eq_u32 vcc, -1, v{vU+6}")
    a("s_nop 4")
    a("s_cbranch_vccz L_hlpok")
    a("s_sleep 32")
    spin_timeout("L_hlp")
    a.label("L_hlpok")
    a("s_mov_b64 exec, -1")
    a.label("L_hg")
    for b in range(4):
        for g_ in range(8):
            a(f"global_load_dword v{vHG+8*b+g_}, v{vHa+g_}, {P2(sWS)} offset:{b*256} sc1")
    a("s_waitcnt vmcnt(0)")
    sentinel_check(range(vHG, vHG + 32), vU + 4)
    a("s_cbranch_vccz L_hgok")
    a("s_sleep 16")
    spin_timeout("L_hg")
    a.label("L_hgok")
    a(f"v_lshlrev_b32 v{vU+3}, 16, v{vU+3}")
    for b in range(4):
        r = vHG + 8 * b
        for g_ in range(1, 8):
            a(f"v_add_f32 v{r}, v{r}, v{r+g_}")
        rnd_bf16(r, r)
        a(f"v_add_f32 v{r}, v{r}, v{vU+3}")
        rnd_bf16(r, r)
        a(f"v_max_f32 v{r}, 0, v{r}")
        a(f"v_mul_f32 v{r}, v{r}, v{r}")
        a(f"v_cvt_pk_bf16_f32 v{r}, v{r}, v{r}")
        a(f"ds_write_b16 v{vL2}, v{r} offset:{L_HB+b*128}")
    lds_arrive(7, vSy, vOne)
    a.label("L_h_ffn2")
    a(f"s_cmp_lt_u32 s{sG}, 5")
    a("s_cbranch_scc0 L_h_tailprep")
    vHAo = 132
    if not skipffn:
        lds_wait(7, 1, vSy, vU + 4, sT0, sleep=32)
    a(f"v_and_b32 v{vU}, 3, v{vLane}")
    a(f"v_lshlrev_b32 v{vU}, 7, v{vU}")
    a(f"v_lshrrev_b32 v{vU+1}, 4, v{vLane}")
    a(f"v_lshlrev_b32 v{vU+1}, 4, v{vU+1}")
    a(f"v_add_u32 v{vU}, v{vU}, v{vU+1}")
    a(f"ds_read_b128 {V(vHAo,4)}, v{vU} offset:{L_HB}")
    a(f"ds_read_b128 {V(vHAo+4,4)}, v{vU} offset:{L_HB+64}")
    for i in range(8):
        a(f"v_mov_b32 v{vY+i}, 0")
    a("s_waitcnt lgkmcnt(0)")
    for s in range(2):
        for tt in range(2):
            a(f"v_mfma_f32_16x16x32_bf16 {V(vY+4*tt,4)}, {V(vHAo+4*s,4)}, {V(vW2+8*tt+4*s,4)}, {V(vY+4*tt,4)}")

    a.label("L_h_tailprep")
    vA0, vA1, vMlA, vPub, vMlP, vMlG, vDbG, vDbO, vOaW, vOaR, vYp = 8, 9, 10, 11, 12, 13, 14, 15, 16, 17, 18
    vGa2 = 20
    vMl2, vC, vLs, vMx = 28, 30, 31, 32
    vOo = 34
    vZ = 38
    vOv = 64
    vGg = 64
    vAo = 96
    a(f"s_lshl_b32 s{sT0}, s{sHW}, 11")
    a(f"s_add_u32 s{sT0}, s{sT0}, {L_OST}")
    a(f"v_lshlrev_b32 v{vZ}, 3, v{vLane}")
    a(f"v_add_u32 v{vA0}, s{sT0}, v{vZ}")
    a(f"v_add_u32 v{vA1}, {2*L_LPW}, v{vA0}")
    a(f"v_and_b32 v{vZ+1}, 15, v{vLane}")
    a(f"v_lshlrev_b32 v{vMlA}, 3, v{vZ+1}")
    a(f"s_lshl_b32 s{sT0}, s{sHW}, 7")
    a(f"v_add_u32 v{vMlA}, s{sT0}, v{vMlA}")
    a(f"s_lshl_b32 s{sT0}, s{sHW}, 9")
    a(f"s_add_u32 s{sT1}, s{sIdx}, s{sT0}")
    a(f"s_add_u32 s{sT1}, s{sT1}, {OB_OP}")
    a(f"v_add_u32 v{vPub}, s{sT1}, v{vZ}")
    a(f"s_add_u32 s{sT1}, s{sHeadW}, s{sT0}")
    for g_ in range(8):
        a(f"s_add_u32 s{sT2}, s{sT1}, {OB_OP+g_*8192}")
        a(f"v_add_u32 v{vGa2+g_}, s{sT2}, v{vZ}")
    a(f"v_and_b32 v{vZ+2}, 7, v{vLane}")
    if mlmode == 0:
        a(f"s_lshl_b32 s{sT0}, s{sH}, 2")
        a(f"s_add_u32 s{sT0}, s{sT0}, s{sHW}")
        a(f"s_lshl_b32 s{sT1}, s{sT0}, 6")
        a(f"s_add_u32 s{sT1}, s{sT1}, {WS_OPML}")
        a(f"s_lshl_b32 s{sT2}, s{sG}, 3")
        a(f"s_add_u32 s{sT2}, s{sT2}, s{sT1}")
        a(f"v_mov_b32 v{vMlP}, s{sT2}")
        a(f"v_lshlrev_b32 v{vMlG}, 3, v{vZ+2}")
        a(f"v_add_u32 v{vMlG}, s{sT1}, v{vMlG}")
    else:
        a(f"s_lshl_b32 s{sT0}, s{sHW}, 3")
        a(f"s_add_u32 s{sT1}, s{sIdx}, s{sT0}")
        a(f"s_add_u32 s{sT1}, s{sT1}, {OB_ML}")
        a(f"v_mov_b32 v{vMlP}, s{sT1}")
        a(f"s_add_u32 s{sT1}, s{sHeadW}, s{sT0}")
        a(f"s_add_u32 s{sT1}, s{sT1}, {OB_ML}")
        a(f"v_lshlrev_b32 v{vMlG}, 13, v{vZ+2}")
        a(f"v_add_u32 v{vMlG}, s{sT1}, v{vMlG}")
    a(f"v_lshlrev_b32 v{vDbG}, 13, v{vZ+2}")
    a(f"s_add_u32 s{sT2}, s{sHeadW}, {OB_DB}")
    a(f"v_add_u32 v{vDbG}, s{sT2}, v{vDbG}")
    a(f"s_add_u32 s{sT2}, s{sIdx}, {OB_DB}")
    a(f"v_mov_b32 v{vDbO}, s{sT2}")
    a(f"s_lshl_b32 s{sT0}, s{sHW}, 8")
    a(f"v_add_u32 v{vOaW}, s{sT0}, v{vL4}")
    a(f"v_and_b32 v{vOaR}, 3, v{vLane}")
    a(f"v_lshlrev_b32 v{vOaR}, 8, v{vOaR}")
    a(f"v_lshrrev_b32 v{vZ+2}, 4, v{vLane}")
    a(f"v_lshlrev_b32 v{vZ+2}, 4, v{vZ+2}")
    a(f"v_add_u32 v{vOaR}, v{vOaR}, v{vZ+2}")
    a(f"v_lshlrev_b32 v{vYp}, 2, v{vZ+1}")
    a(f"s_lshl_b32 s{sT0}, s{sHW}, 7")
    a(f"s_add_u32 s{sT0}, s{sT0}, s{sIdx}")
    a(f"s_add_u32 s{sT0}, s{sT0}, {OB_YP}")
    a(f"v_add_u32 v{vYp}, s{sT0}, v{vYp}")
    a(f"s_mov_b32 s{sSpin}, {spin_cap}")
    stamp(1)
    a("s_waitcnt vmcnt(0) lgkmcnt(0)")
    a("s_barrier")
    stamp(6)
    tstamp(1)
    a(f"ds_read_b64 {V(vMl2,2)}, v{vMlA} offset:{L_ML}")
    for i in range(16):
        w_ = i >> 2
        if i == 14:
            a("s_waitcnt lgkmcnt(14)")
        a(f"ds_read_b64 {V(vOv+2*i,2)}, v{vA0 if w_ < 2 else vA1} offset:{(w_&1)*L_LPW+(i&3)*512}")
    def merge_coef(dup):
        a(f"v_mov_b32 v{vMx}, v{vMl2}")
        row_allreduce("v_max_f32", [vMx])
        a(f"v_sub_f32 v{vC}, v{vMl2}, v{vMx}")
        a(f"v_exp_f32 v{vC}, v{vC}")
        a("s_nop 0")
        a(f"v_mul_f32 v{vLs}, v{vC}, v{vMl2+1}")
        row_allreduce("v_add_f32", [vLs])
        if dup:
            a(f"v_mul_f32 v{vLs}, 0.5, v{vLs}")
    def merge_o(n, base):
        for i in range(4):
            a(f"v_mov_b32 v{vOo+i}, 0")
        for i in range(n):
            for e in range(2):
                a(f"v_fmac_f32_dpp v{vOo+2*(i&1)+e}, v{vC}, v{base+2*i+e} row_newbcast:{i} {DPPM}")
        a(f"v_pk_add_f32 {V(vOo,2)}, {V(vOo,2)}, {V(vOo+2,2)}")
    merge_coef(False)
    a("s_waitcnt lgkmcnt(0)")
    merge_o(16, vOv)
    a(f"global_store_dwordx2 v{vPub}, {V(vOo,2)}, {P2(sWS)} sc1")
    a(f"v_mov_b32 v{vZ+2}, v{vMx}")
    a(f"v_mov_b32 v{vZ+3}, v{vLs}")
    assert (vZ + 2) % 2 == 0
    a("s_mov_b64 exec, 1")
    a(f"global_store_dwordx2 v{vMlP}, {V(vZ+2,2)}, {P2(sWS)} sc1")
    a("s_mov_b64 exec, -1")
    tstamp(2)
    if stamps and sprof == 2 and ackprof:
        a("s_waitcnt vmcnt(0)")
        tstamp(3)
    a(f"s_cmp_lt_u32 s{sG}, 5")
    a("s_cbranch_scc0 L_fin_stamp")
    a(f"s_mov_b32 s{sT4}, 0xff")
    a.label("L_opoll")
    a(f"global_load_dwordx2 {V(vMl2,2)}, v{vMlG}, {P2(sWS)} sc1")
    for g_ in range(8):
        a(f"s_bitcmp1_b32 s{sT4}, {g_}")
        a(f"s_cbranch_scc0 L_sk{g_}")
        a(f"global_load_dwordx2 {V(vGg+2*g_,2)}, v{vGa2+g_}, {P2(sWS)} sc1")
        a.label(f"L_sk{g_}")
    a("s_waitcnt vmcnt(0)")
    a(f"v_max_u32 v{vZ+2}, v{vMl2}, v{vMl2+1}")
    a(f"v_cmp_eq_u32 vcc, -1, v{vZ+2}")
    a("s_nop 4")
    a(f"s_and_b32 s{sT4}, vcc_lo, 0xff")
    a("s_cbranch_scc1 L_oretry")
    sentinel_check(list(range(vGg, vGg + 16)), vZ + 2)
    a("s_cbranch_vccz L_ook")
    a(f"s_mov_b32 s{sT4}, 0xff")
    a.label("L_oretry")
    if resleep:
        a(f"s_sleep {resleep}")
    spin_timeout("L_opoll")
    a.label("L_ook")
    stamp(7)
    tstamp(4)
    merge_coef(True)
    a(f"v_rcp_f32 v{vLs}, v{vLs}")
    merge_o(8, vGg)
    a(f"v_pk_mul_f32 {V(vOo,2)}, {V(vOo,2)}, {V(vLs-1,2)} op_sel:[0,1] op_sel_hi:[1,1]")
    assert (vLs - 1) % 2 == 0
    a(f"v_cvt_pk_bf16_f32 v{vOo}, v{vOo}, v{vOo+1}")
    a(f"ds_write_b32 v{vOaW}, v{vOo} offset:{L_OA}")
    a("s_waitcnt lgkmcnt(0)")
    a("s_barrier")
    tstamp(5)
    for s in range(4):
        a(f"ds_read_b128 {V(vAo+4*s,4)}, v{vOaR} offset:{L_OA+64*s}")
    for s in range(4):
        a(f"s_waitcnt lgkmcnt({3-s})")
        for tt in range(2):
            a(f"v_mfma_f32_16x16x32_bf16 {V(vY+4*tt,4)}, {V(vAo+4*s,4)}, {V(vWO+16*tt+4*s,4)}, {V(vY+4*tt,4)}")
    a("s_mov_b64 exec, 0xffff")
    a("s_nop 7")
    for tt in range(2):
        for b in range(4):
            a(f"global_store_dword v{vYp}, v{vY+4*tt+b}, {P2(sWS)} offset:{b*512+tt*64} sc1")
    a("s_mov_b64 exec, -1")
    tstamp(6)
    a(f"s_cmp_lt_u32 s{sH}, 4")
    a("s_cbranch_scc0 L_fin_stamp")
    a("s_branch L_final")

    a.label("L_final_pre")
    a("s_barrier")
    a.label("L_final")
    vFa, vFx, vF0, vY_ = 2, 4, 8, 30
    vZ2 = 30
    a(f"v_lshrrev_b32 v{vZ2}, 4, v{vLane}")
    a(f"v_lshlrev_b32 v{vZ2}, 2, v{vZ2}")
    a(f"s_lshl_b32 s{sT0}, s{sWave}, 4")
    a(f"v_add_u32 v{vZ2}, s{sT0}, v{vZ2}")
    a(f"v_and_b32 v{vZ2+1}, 15, v{vLane}")
    a(f"v_lshlrev_b32 v{vFa}, 16, v{vZ2+1}")
    a(f"v_lshlrev_b32 v{vZ2+2}, 2, v{vZ2}")
    a(f"v_add_u32 v{vFa}, v{vFa}, v{vZ2+2}")
    a(f"s_lshl_b32 s{sT1}, s{sG}, 13")
    a(f"s_lshl_b32 s{sT0}, s{sH}, 9")
    a(f"s_add_u32 s{sT1}, s{sT1}, s{sT0}")
    a(f"s_add_u32 s{sT1}, s{sT1}, {WS_OB+OB_YP}")
    a(f"v_add_u32 v{vFa}, s{sT1}, v{vFa}")
    a(f"v_add_u32 v{vFa+1}, {16*65536}, v{vFa}")
    a(f"s_lshl_b32 s{sT2}, s{sG}, 7")
    a(f"v_add_u32 v{vZ2}, s{sT2}, v{vZ2}")
    a(f"v_lshlrev_b32 v{vZ2}, 1, v{vZ2}")
    a(f"s_mul_i32 s{sT3}, s{sH}, 1280")
    a(f"v_add_u32 v{vZ2+3}, s{sT3}, v{vZ2}")
    a(f"global_load_dwordx2 {V(vFx,2)}, v{vZ2+3}, {P2(sX)}")
    a(f"global_load_dwordx2 {V(vFx+2,2)}, v{vZ2}, {P2(sB2)}")
    a(f"s_mov_b32 s{sSpin}, {spin_cap}")
    a.label("L_ypoll")
    a(f"global_load_dwordx4 {V(vF0,4)}, v{vFa}, {P2(sWS)} sc1")
    a(f"global_load_dwordx4 {V(vF0+4,4)}, v{vFa+1}, {P2(sWS)} sc1")
    a("s_waitcnt vmcnt(0)")
    sentinel_check(range(vF0, vF0 + 8), vZ2 + 4)
    a("s_cbranch_vccz L_yok")
    spin_timeout("L_ypoll")
    a.label("L_yok")
    tstamp(7)
    for i in range(4):
        a(f"v_add_f32 v{vF0+i}, v{vF0+i}, v{vF0+4+i}")
    row_allreduce("v_add_f32", [vF0, vF0+1, vF0+2, vF0+3])
    for j in range(2):
        a(f"v_lshlrev_b32 v{vZ2+4}, 16, v{vFx+j}")
        a(f"v_and_b32 v{vZ2+5}, s{sMask}, v{vFx+j}")
        a(f"v_add_f32 v{vF0+2*j}, v{vF0+2*j}, v{vZ2+4}")
        a(f"v_add_f32 v{vF0+2*j+1}, v{vF0+2*j+1}, v{vZ2+5}")
        a(f"v_lshlrev_b32 v{vZ2+4}, 16, v{vFx+2+j}")
        a(f"v_and_b32 v{vZ2+5}, s{sMask}, v{vFx+2+j}")
        a(f"v_add_f32 v{vF0+2*j}, v{vF0+2*j}, v{vZ2+4}")
        a(f"v_add_f32 v{vF0+2*j+1}, v{vF0+2*j+1}, v{vZ2+5}")
    a(f"v_cvt_pk_bf16_f32 v{vF0+4}, v{vF0}, v{vF0+1}")
    a(f"v_cvt_pk_bf16_f32 v{vF0+5}, v{vF0+2}, v{vF0+3}")
    a("s_mov_b32 exec_lo, 0x00010001")
    a("s_mov_b32 exec_hi, 0x00010001")
    a(f"global_store_dwordx2 v{vZ2+3}, {V(vF0+4,2)}, {P2(sOUT)}")
    a("s_mov_b64 exec, -1")
    a.label("L_fin_stamp")
    if stamps:
        a("s_memrealtime s[4:5]")
        a("s_waitcnt lgkmcnt(0)")
        a(f"s_lshl_b32 s{sT0}, s2, 3")
        a(f"s_add_u32 s{sT0}, s{sT0}, s{sWave}")
        a(f"s_lshl_b32 s{sT0}, s{sT0}, 6")
        a(f"s_add_u32 s{sT0}, s{sT0}, {WS_STAMP}")
        a(f"v_mov_b32 v2, s{sT0}")
        for i in range(8):
            a(f"v_mov_b32 v{8+i}, s{STAMP0+2*i}")
        a("v_mov_b32 v16, s4")
        a("s_getreg_b32 s6, hwreg(HW_REG_XCC_ID)")
        a("v_mov_b32 v17, s6")
        a(f"v_mov_b32 v18, s{sN}")
        a("v_mov_b32 v19, 0")
        a("s_mov_b64 exec, 1")
        a(f"global_store_dwordx4 v2, v[8:11], {P2(sWS)}")
        a(f"global_store_dwordx4 v2, v[12:15], {P2(sWS)} offset:16")
        a(f"global_store_dwordx4 v2, v[16:19], {P2(sWS)} offset:32")
    a.label("L_end")
    a("s_endpgm")
    a.raw('.section .rodata,"a"')
    a.raw(".p2align 6")
    a.raw(f".amdhsa_kernel {KNAME}")
    a.raw("  .amdhsa_next_free_vgpr 256")
    a.raw("  .amdhsa_next_free_sgpr 102")
    a.raw("  .amdhsa_accum_offset 256")
    a.raw("  .amdhsa_group_segment_fixed_size 0")
    a.raw("  .amdhsa_kernarg_size 104")
    a.raw("  .amdhsa_user_sgpr_count 2")
    a.raw("  .amdhsa_user_sgpr_kernarg_segment_ptr 1")
    a.raw("  .amdhsa_system_sgpr_workgroup_id_x 1")
    a.raw(".end_amdhsa_kernel")
    return "\n".join(x for x in a.L if x is not None) + "\n"

if __name__ == "__main__":
    import argparse, ast
    ap = argparse.ArgumentParser()
    ap.add_argument("-o", default="k.s")
    ap.add_argument("kv", nargs="*")
    args = ap.parse_args()
    kw = {}
    for x in args.kv:
        k, v = x.split("=")
        try: v = ast.literal_eval(v)
        except Exception: pass
        kw[k] = v
    open(args.o, "w").write(gen(**kw))
```

```python
import struct, math

KNAME = "parallel_sum__gqa_block_cached__dense_activation_squared_relu__decode_kernel"

WS_CTR = 0x20000
WS_OPML = 0x10000
WS_OB = 0x100000
OB_QP, OB_OP, OB_HP, OB_YP, OB_DB, OB_GO, OB_ML = 0, 2048, 4096, 5120, 7168, 7296, 7424
OB_FILL = 8
WS_STAMP = 0x300000
WS_SC = 0x400000
L_XN = 0
L_QPART = 10240
L_QB = 18432
L_HB = 19456
L_OA = 19968
L_SYNC = 20992
L_ML = 21248
L_WT = 22528
L_W2T = 55296
L_SCL = 71680
L_OST = 71680 + 16384

NEG_MAX = 0xFF7FFFFF
def f2u(x): return struct.unpack("<I", struct.pack("<f", x))[0]
C_SCALE = f2u((128 ** -0.5) * math.log2(math.e))
SCALE_ONLY = f2u(128 ** -0.5)
LOG2E = f2u(math.log2(math.e))
INV640 = f2u(1.0 / 640.0)
EPS = f2u(1e-5)

class Asm:
    def __init__(self):
        self.L = []
        self.uid = 0
    def __call__(self, s):
        self.L.append("  " + s)
    def label(self, s):
        self.L.append(s + ":")
    def u(self, base):
        self.uid += 1
        return f"{base}_{self.uid}"
    def raw(self, s):
        self.L.append(s)

def gen(dyn=True, S=52, stamps=False, pol="nt", NB=2, spin_cap=1 << 16, th=12, nocomp=0, sprof=0, hprio=3,
        qpoll_sleep=2, opoll_sleep=2, dbneed=7, NL=2, w1b=40, skipffn=0, skippost=0, mimic=1, cstride=256, prot=0, fastre=1, mlmode=0, resleep=0, ackprof=0, stpol="sc1", ilv=0):
    KL = 4
    NX = 6 - NB
    assert NL <= NX
    NXT = NX + NL
    NPRE = 6 + NL
    L_LPW = max(NL, 1) * 8192
    L_TOTAL = L_OST + 4 * L_LPW
    CH = KL * 4096
    NCH = (1 << 20) // CH
    if not dyn:
        S = NCH
    P = NCH - S
    logP = P.bit_length() - 1 if P else 0
    D = 8 * P * 4
    logPW = logP + 2
    a = Asm()
    a.raw("; @launch grid=(256,1,1) block=(512,1,1) lds=%d" % L_TOTAL)
    a.raw('.amdgcn_target "amdgcn-amd-amdhsa--gfx950"')
    a.raw(".text")
    a.raw(f".globl {KNAME}")
    a.raw(".p2align 8")
    a.raw(f".type {KNAME},@function")
    a.label(KNAME)

    sX, sK, sV, sWQ, sWO, sW1, sB1, sW2, sB2, sOUT, sDBG, sWS = 16, 18, 20, 22, 24, 28, 30, 32, 34, 36, 38, 40
    sWave, sH, sG, sHW = 42, 43, 44, 45
    sMask, sC = 46, 47
    SRD_K, SRD_V, SRD_A, SRD_B = 48, 52, 56, 60
    sStatic, sHeadW, sIdx, sN, sNT, sOff, sCur, sBn, sXc = 64, 65, 66, 67, 68, 69, 70, 71, 72
    sBq = [73, 74, 75]
    sT0, sT1, sT2, sT3, sT4 = 76, 77, 78, 79, 6
    sRet = 80
    sSpin = 83
    STAMP0 = 84
    def P2(s): return f"s[{s}:{s+1}]"
    def P4(s): return f"s[{s}:{s+3}]"
    def _st(i): a(f"s_memrealtime s[{STAMP0+2*i}:{STAMP0+2*i+1}]")
    def stamp(i):
        if stamps and (not sprof or i == 0): _st(i)
    def sstamp(i):
        if stamps and sprof == 1: _st(i)
    def tstamp(i):
        if stamps and sprof == 2: _st(i)
    def V(n, cnt=1):
        return f"v{n}" if cnt == 1 else f"v[{n}:{n+cnt-1}]"
    DPPM = "row_mask:0xf bank_mask:0xf"
    def row_allreduce(op, regs, nop_first=True):
        steps = ["quad_perm:[1,0,3,2]", "quad_perm:[2,3,0,1]", "row_half_mirror", "row_mirror"]
        need = max(0, 2 - (len(regs) - 1))
        if nop_first:
            a("s_nop 1")
        for si, st in enumerate(steps):
            for r in regs:
                a(f"{op}_dpp v{r}, v{r}, v{r} {st} {DPPM}")
            if need and si < 3:
                a(f"s_nop {need-1}")
    def wave_sum_to_sgpr(r, sdst):
        row_allreduce("v_add_f32", [r])
        a("s_nop 1")
        a(f"v_add_f32_dpp v{r}, v{r}, v{r} row_bcast:15 row_mask:0xa bank_mask:0xf")
        a("s_nop 1")
        a(f"v_add_f32_dpp v{r}, v{r}, v{r} row_bcast:31 row_mask:0xc bank_mask:0xf")
        a("s_nop 1")
        a(f"v_readlane_b32 s{sdst}, v{r}, 63")
    def rnd_bf16(dst, src):
        a(f"v_cvt_pk_bf16_f32 v{dst}, v{src}, v{src}")
        a(f"v_and_b32 v{dst}, s{sMask}, v{dst}")
    def spin_timeout(lbl_retry):
        d = a.u("L_to")
        a(f"s_cmp_eq_u32 s{sSpin}, 0")
        a(f"s_cbranch_scc1 {d}")
        a(f"s_sub_u32 s{sSpin}, s{sSpin}, 1")
        a(f"s_branch {lbl_retry}")
        a.label(d)
    def lds_arrive(k, vaddr, vone):
        a("s_mov_b64 exec, 1")
        a(f"ds_add_u32 v{vaddr}, v{vone} offset:{4*k}")
        a("s_mov_b64 exec, -1")
    def lds_wait(k, target, vaddr, vtmp, stmp, sleep=1):
        l = a.u("L_lw")
        ok = a.u("L_lwok")
        a.label(l)
        a(f"ds_read_b32 v{vtmp}, v{vaddr} offset:{4*k}")
        a("s_waitcnt lgkmcnt(0)")
        a(f"v_readfirstlane_b32 s{stmp}, v{vtmp}")
        a("s_nop 1")
        a(f"s_cmp_ge_u32 s{stmp}, {target}")
        a(f"s_cbranch_scc1 {ok}")
        if sleep:
            a(f"s_sleep {sleep}")
        spin_timeout(l)
        a.label(ok)
    def srd(base, sptr, nrec):
        a(f"s_mov_b32 s{base}, s{sptr}")
        a(f"s_mov_b32 s{base+1}, s{sptr+1}")
        a(f"s_mov_b32 s{base+2}, {nrec}")
        a(f"s_mov_b32 s{base+3}, 0x20000")
    def sentinel_check(regs, vtmp):
        regs = list(regs)
        a(f"v_max3_u32 v{vtmp}, v{regs[0]}, v{regs[1]}, v{regs[2]}")
        i = 3
        while i + 1 < len(regs):
            a(f"v_max3_u32 v{vtmp}, v{vtmp}, v{regs[i]}, v{regs[i+1]}")
            i += 2
        if i < len(regs):
            a(f"v_max_u32 v{vtmp}, v{vtmp}, v{regs[i]}")
        a(f"v_cmp_eq_u32 vcc, -1, v{vtmp}")
        a("s_nop 4")

    vLane = 1
    a("s_cmp_ge_u32 s2, 256")
    a("s_cbranch_scc1 L_end")
    a("s_load_dwordx16 s[16:31], s[0:1], 0")
    a("s_load_dwordx8 s[32:39], s[0:1], 64")
    a("s_load_dwordx2 s[40:41], s[0:1], 96")
    stamp(0)
    a("v_lshrrev_b32 v2, 6, v0")
    a(f"v_and_b32 v{vLane}, 63, v0")
    a(f"v_readfirstlane_b32 s{sWave}, v2")
    a(f"s_lshr_b32 s{sH}, s2, 3")
    a(f"s_and_b32 s{sG}, s2, 7")
    a(f"s_mov_b32 s{sMask}, 0xffff0000")
    a(f"s_mov_b32 s{sC}, 0x{(LOG2E if mimic else C_SCALE):08x}")
    if mimic:
        a(f"s_mov_b32 s82, 0x{SCALE_ONLY:08x}")
    a(f"s_mov_b32 s{sSpin}, {spin_cap}")
    a(f"v_lshlrev_b32 v3, 2, v{vLane}")
    a("v_mov_b32 v4, 0")
    a(f"s_cmp_eq_u32 s{sWave}, 4")
    a("s_cbranch_scc0 L_nosyinit")
    a(f"ds_write_b32 v3, v4 offset:{L_SYNC}")
    a.label("L_nosyinit")
    a("s_waitcnt lgkmcnt(0)")
    a("s_barrier")
    sstamp(1)
    a(f"s_cmp_lt_u32 s{sWave}, 4")
    a("s_cbranch_scc1 L_swave")

    vL16, vL4, vXo, vXo2, vSy, vOne = 2, 3, 4, 5, 6, 7
    vXr = 8
    vE = 16
    vW = 32
    vXN = 64
    vAcc = 144
    vU = 152
    vWO = 172
    vBo = 204
    vL2 = 205
    vW2 = 208
    vY = 224
    if hprio:
        a(f"s_setprio {hprio}")
    a(f"s_sub_u32 s{sHW}, s{sWave}, 4")
    a(f"v_lshlrev_b32 v{vL16}, 4, v{vLane}")
    a(f"s_mul_i32 s{sT0}, s{sHW}, 1280")
    a(f"v_add_u32 v{vXo}, s{sT0}, v{vL16}")
    a(f"v_add_u32 v{vXo2}, s{sT0}, v{vL4}")
    a(f"global_load_dwordx4 {V(vXr,4)}, v{vXo}, {P2(sX)}")
    a(f"global_load_dword v{vXr+4}, v{vXo2}, {P2(sX)} offset:1024")
    a(f"s_mul_i32 s{sT1}, s{sG}, 80")
    a(f"s_mul_i32 s{sT2}, s{sHW}, 20")
    a(f"s_add_u32 s{sStatic}, s{sT1}, s{sT2}")
    a(f"s_lshl_b32 s{sOff}, s{sStatic}, 13")
    a(f"s_lshl_b32 s{sT2}, s{sH}, 8")
    a(f"s_add_u32 s{sOff}, s{sOff}, s{sT2}")
    srd(SRD_A, sWQ, 640 * 8192)
    for i in range(20):
        a(f"buffer_load_dword v{vW+i}, v{vL4}, {P4(SRD_A)}, s{sOff} offen {pol}")
        if i < 19:
            a(f"s_add_u32 s{sOff}, s{sOff}, 8192")
    sstamp(2)
    a(f"v_lshlrev_b32 v{vU}, 3, v{vLane}")
    a(f"s_lshl_b32 s{sIdx}, s2, 13")
    a(f"s_add_u32 s{sIdx}, s{sIdx}, {WS_OB}")
    a(f"s_lshl_b32 s{sHeadW}, s{sH}, 16")
    a(f"s_add_u32 s{sHeadW}, s{sHeadW}, {WS_OB}")
    a(f"s_lshl_b32 s{sT2}, s{sHW}, 9")
    a(f"s_add_u32 s{sT2}, s{sT2}, s{sIdx}")
    a(f"v_add_u32 v{vU+2}, s{sT2}, v{vU}")
    a(f"v_mov_b32 v{vSy}, {L_SYNC}")
    a(f"v_mov_b32 v{vOne}, 1")
    a("s_waitcnt vmcnt(20)")
    sstamp(3)
    for j in range(5):
        a(f"v_lshlrev_b32 v{vE+2*j}, 16, v{vXr+j}")
        a(f"v_and_b32 v{vE+2*j+1}, s{sMask}, v{vXr+j}")
    vt, vs, vMean, vR = vU + 10, vU + 12, vU + 13, vU + 14
    a(f"v_add_f32 v{vs}, v{vE}, v{vE+1}")
    for j in range(2, 10):
        a(f"v_add_f32 v{vs}, v{vs}, v{vE+j}")
    wave_sum_to_sgpr(vs, sT0)
    a("s_nop 1")
    a(f"v_mov_b32 v{vMean}, s{sT0}")
    a(f"v_mul_f32 v{vMean}, 0x{INV640:08x}, v{vMean}")
    a(f"v_sub_f32 v{vt}, v{vE}, v{vMean}")
    a(f"v_mul_f32 v{vs}, v{vt}, v{vt}")
    for j in range(1, 10):
        a(f"v_sub_f32 v{vt}, v{vE+j}, v{vMean}")
        a(f"v_fmac_f32 v{vs}, v{vt}, v{vt}")
    wave_sum_to_sgpr(vs, sT0)
    a("s_nop 1")
    a(f"v_mov_b32 v{vR}, s{sT0}")
    a(f"v_mul_f32 v{vR}, 0x{INV640:08x}, v{vR}")
    rnd_bf16(vR, vR)
    a(f"v_add_f32 v{vR}, 0x{EPS:08x}, v{vR}")
    rnd_bf16(vR, vR)
    a(f"v_sqrt_f32 v{vR}, v{vR}")
    a("s_nop 0")
    rnd_bf16(vR, vR)
    a(f"v_rcp_f32 v{vR}, v{vR}")
    rnd_bf16(vMean, vMean)
    for j in range(10):
        a(f"v_sub_f32 v{vE+j}, v{vE+j}, v{vMean}")
    for j in range(0, 10, 2):
        a(f"v_cvt_pk_bf16_f32 v{vt}, v{vE+j}, v{vE+j+1}")
        a(f"v_lshlrev_b32 v{vE+j}, 16, v{vt}")
        a(f"v_and_b32 v{vE+j+1}, s{sMask}, v{vt}")
    for j in range(10):
        a(f"v_mul_f32 v{vE+j}, v{vE+j}, v{vR}")
    for j in range(0, 10, 2):
        a(f"v_cvt_pk_bf16_f32 v{vt}, v{vE+j}, v{vE+j+1}")
        a(f"v_lshlrev_b32 v{vE+j}, 16, v{vt}")
        a(f"v_and_b32 v{vE+j+1}, s{sMask}, v{vt}")
    a(f"s_mul_i32 s{sT0}, s{sHW}, 2560")
    a(f"v_lshlrev_b32 v{vt}, 5, v{vLane}")
    a(f"v_add_u32 v{vt}, s{sT0}, v{vt}")
    a(f"v_add_u32 v{vt+1}, s{sT0}, v{vU}")
    a(f"ds_write_b128 v{vt}, {V(vE,4)} offset:{L_XN}")
    a(f"ds_write_b128 v{vt}, {V(vE+4,4)} offset:{L_XN+16}")
    a(f"ds_write_b64 v{vt+1}, {V(vE+8,2)} offset:{L_XN+2048}")
    lds_arrive(1, vSy, vOne)
    sstamp(4)
    a(f"s_lshl_b32 s{sT1}, s{sStatic}, 2")
    a(f"v_mov_b32 v{vt}, s{sT1}")
    for i in range(8):
        a(f"v_mov_b32 v{vAcc+i}, 0")
    lds_wait(1, 4, vSy, vt + 1, sT0)
    stamp(2)
    for b in range(4):
        for k in range(5):
            a(f"ds_read_b128 {V(vXN+b*20+4*k,4)}, v{vt} offset:{L_XN+b*2560+16*k}")
    a("s_waitcnt vmcnt(0) lgkmcnt(0)")
    sstamp(5)
    for i in range(20):
        t = vU + 10 + 2 * (i % 3)
        a(f"v_lshlrev_b32 v{t}, 16, v{vW+i}")
        a(f"v_and_b32 v{t+1}, s{sMask}, v{vW+i}")
        for b in range(4):
            x = vXN + b * 20 + i
            xb = x & ~1
            sel = "op_sel:[0,1,0] op_sel_hi:[1,1,1]" if (x & 1) else "op_sel_hi:[1,0,1]"
            a(f"v_pk_fma_f32 {V(vAcc+2*b,2)}, {V(t,2)}, {V(xb,2)}, {V(vAcc+2*b,2)} {sel}")
    a(f"s_lshl_b32 s{sT0}, s{sHW}, 11")
    a(f"v_add_u32 v{vU+1}, s{sT0}, v{vU}")
    for b in range(4):
        a(f"ds_write_b64 v{vU+1}, {V(vAcc+2*b,2)} offset:{L_QPART+b*512}")
    lds_arrive(2, vSy, vOne)
    a(f"s_lshl_b32 s{sT0}, s{sHW}, 9")
    a(f"v_add_u32 v{vU+1}, s{sT0}, v{vU}")
    lds_wait(2, 4, vSy, vU + 4, sT0)
    for w in range(4):
        a(f"ds_read_b64 {V(vAcc+2*w,2)}, v{vU+1} offset:{L_QPART+w*2048}")
    a("s_waitcnt lgkmcnt(0)")
    a(f"v_pk_add_f32 {V(vAcc,2)}, {V(vAcc,2)}, {V(vAcc+2,2)}")
    a(f"v_pk_add_f32 {V(vAcc+4,2)}, {V(vAcc+4,2)}, {V(vAcc+6,2)}")
    a(f"v_pk_add_f32 {V(vAcc,2)}, {V(vAcc,2)}, {V(vAcc+4,2)}")
    sstamp(6)
    lds_wait(0, 1, vSy, vU + 4, sT0)
    a(f"global_store_dwordx2 v{vU+2}, {V(vAcc,2)}, {P2(sWS)} sc1")
    stamp(3)
    sstamp(7)
    a(f"s_lshl_b32 s{sT2}, s{sHW}, 9")
    a(f"s_add_u32 s{sT2}, s{sT2}, s{sHeadW}")
    vGa = 80
    for g_ in range(8):
        a(f"s_add_u32 s{sT3}, s{sT2}, {g_*8192}")
        a(f"v_add_u32 v{vGa+g_}, s{sT3}, v{vU}")
    a(f"s_cmp_eq_u32 s{sHW}, 0")
    a("s_cbranch_scc0 L_h_b4")
    a(f"s_add_u32 s{sT0}, s{sIdx}, {OB_GO}")
    a(f"v_mov_b32 v{vU+4}, s{sT0}")
    a.label("L_qpoll")
    a(f"global_load_dword v{vU+6}, v{vU+4}, {P2(sWS)} sc1")
    a("s_waitcnt vmcnt(0)")
    a(f"v_readfirstlane_b32 s{sT1}, v{vU+6}")
    a("s_nop 1")
    a(f"s_cmp_eq_u32 s{sT1}, 1")
    a("s_cbranch_scc1 L_qok")
    a(f"s_sleep {qpoll_sleep}")
    spin_timeout("L_qpoll")
    a.label("L_qok")
    lds_arrive(4, vSy, vOne)
    a.label("L_h_b4")
    lds_wait(4, 1, vSy, vU + 4, sT0)
    stamp(4)
    vG = vXN
    a.label("L_qg")
    for g_ in range(8):
        a(f"global_load_dwordx2 {V(vG+2*g_,2)}, v{vGa+g_}, {P2(sWS)} sc1")
    a("s_waitcnt vmcnt(0)")
    sentinel_check(range(vG, vG + 16), vU + 4)
    a("s_cbranch_vccz L_qgok")
    spin_timeout("L_qg")
    a.label("L_qgok")
    for g_ in range(1, 8):
        a(f"v_pk_add_f32 {V(vG,2)}, {V(vG,2)}, {V(vG+2*g_,2)}")
    a(f"v_cvt_pk_bf16_f32 v{vU+4}, v{vG}, v{vG+1}")
    a(f"s_lshl_b32 s{sT0}, s{sHW}, 8")
    a(f"v_add_u32 v{vU+5}, s{sT0}, v{vL4}")
    a(f"ds_write_b32 v{vU+5}, v{vU+4} offset:{L_QB}")
    lds_arrive(5, vSy, vOne)
    stamp(5)
    a("s_branch L_h_post")

    a.label("L_swave")
    NR = 4
    NXR = 8
    NLK = 2 * NL
    NXT = NXR + NLK
    NPRE = NXT + NR
    assert NLK <= NXR
    vOff, vOst, vMl, vQa, vScl = 2, 4, 5, 6, 7
    vQ = 8
    vO = 12
    vM, vL = 20, 21
    vAl, vMn = 22, 23
    vS = 24
    vT = 28
    vTmp, vTk = 36, 38
    vSn = 40
    vSc = [40, 44, 48, 52]
    vTkt = [56, 57, 58, 59]
    vCo, vCo2, vScg = 60, 61, 62
    SRD_C = SRD_A
    SRD_L = SRD_K
    sBq4 = [73, 74, 75, 52]
    sTk4 = [53, 54, 55, 7]
    sVIdx, sNV, sOld = 5, 4, 82 - 1
    sOld = 3
    sMim = 82
    RING = 64
    def rbuf(j): return RING + 16 * j
    def xbuf(x): return RING + 64 + 16 * x
    PH = 4096 * 4
    def ld4(bb):
        for i in range(KL):
            a(f"buffer_load_dwordx4 {V(bb+4*i,4)}, v{vOff}, {P4(SRD_L)}, s{sOff} offen offset:{i*1024} {pol}")
    a(f"v_lshlrev_b32 v{vOff}, 4, v{vLane}")
    a(f"s_cmp_eq_u32 s{sWave}, 0")
    a("s_cbranch_scc0 L_s_nop0")
    a("s_setprio 3")
    for i in range(4):
        a(f"v_mov_b32 v{vSn+i}, -1")
    a(f"s_lshl_b32 s{sT0}, s2, 13")
    a(f"s_add_u32 s{sT0}, s{sT0}, {WS_OB}")
    a(f"v_add_u32 v{vSn+4}, s{sT0}, v{vOff}")
    a(f"v_add_u32 v{vSn+5}, 4096, v{vSn+4}")
    for k in range(OB_FILL):
        a(f"global_store_dwordx4 v{vSn+4+(k>>2)}, {V(vSn,4)}, {P2(sWS)} offset:{(k&3)*1024} sc1")
    a(f"s_lshl_b32 s{sT0}, s{sH}, 8")
    a(f"s_lshl_b32 s{sT1}, s{sG}, 3")
    a(f"s_add_u32 s{sT1}, s{sT1}, s{sT0}")
    a(f"s_add_u32 s{sT1}, s{sT1}, {WS_OPML}")
    a(f"v_lshlrev_b32 v{vSn+6}, 6, v{vLane}")
    a(f"v_add_u32 v{vSn+6}, s{sT1}, v{vSn+6}")
    a(f"s_mul_i32 s{sT2}, s{sH}, {cstride}")
    a(f"s_add_u32 s{sT2}, s{sT2}, {WS_CTR}")
    a(f"v_lshlrev_b32 v{vSn+7}, 7, v{vLane}")
    a(f"v_add_u32 v{vSn+7}, s{sT2}, v{vSn+7}")
    a(f"v_mov_b32 v{vTmp}, 0")
    a("s_mov_b64 exec, 0xf")
    a(f"global_store_dwordx2 v{vSn+6}, {V(vSn,2)}, {P2(sWS)} sc1")
    a("s_mov_b64 exec, 3")
    a(f"s_cmp_eq_u32 s{sG}, 0")
    a("s_cbranch_scc0 L_noctr")
    a(f"global_store_dword v{vSn+7}, v{vTmp}, {P2(sWS)} sc1")
    a.label("L_noctr")
    a("s_mov_b64 exec, 1")
    a(f"s_lshr_b32 s{sT1}, s{sH}, 4")
    a(f"s_lshl_b32 s{sT1}, s{sT1}, 5")
    a(f"s_and_b32 s{sT2}, s{sH}, 15")
    a(f"s_add_u32 s{sT1}, s{sT1}, s{sT2}")
    a(f"s_lshl_b32 s{sT1}, s{sT1}, 2")
    a(f"v_mov_b32 v{vSn+6}, s{sT1}")
    a(f"v_mov_b32 v{vTmp}, 1")
    a(f"v_mov_b32 v{vTk}, {L_SYNC}")
    a("s_waitcnt vmcnt(0)")
    sstamp(3)
    a(f"global_atomic_add v{vSn+7}, v{vSn+6}, v{vTmp}, {P2(sDBG)} sc0")
    a(f"ds_write_b32 v{vTk}, v{vTmp}")
    a("s_waitcnt vmcnt(0)")
    a(f"v_readfirstlane_b32 s{sT0}, v{vSn+7}")
    a("s_mov_b64 exec, -1")
    a("s_nop 0")
    a(f"s_and_b32 s{sT0}, s{sT0}, 7")
    a(f"s_cmp_eq_u32 s{sT0}, 7")
    a("s_cbranch_scc0 L_s_nogo")
    a(f"s_lshl_b32 s{sT1}, s{sH}, 16")
    a(f"s_add_u32 s{sT1}, s{sT1}, {WS_OB+OB_GO}")
    a(f"v_lshlrev_b32 v{vSn+4}, 13, v{vLane}")
    a(f"v_add_u32 v{vSn+4}, s{sT1}, v{vSn+4}")
    a(f"v_mov_b32 v{vTmp}, 1")
    a("s_mov_b64 exec, 0xff")
    a(f"global_store_dword v{vSn+4}, v{vTmp}, {P2(sWS)} sc1")
    a("s_mov_b64 exec, -1")
    a.label("L_s_nogo")
    sstamp(4)
    a("s_setprio 0")
    a.label("L_s_nop0")
    a(f"s_lshl_b32 s{sHeadW}, s{sH}, 21")
    a(f"s_lshr_b32 s{sCur}, s{sG}, 1")
    a(f"s_lshl_b32 s{sT0}, s{sCur}, 26")
    a(f"s_and_b32 s{sT1}, s{sG}, 1")
    a(f"s_lshl_b32 s{sT1}, s{sT1}, 20")
    a(f"s_add_u32 s{sStatic}, s{sHeadW}, s{sT0}")
    a(f"s_add_u32 s{sStatic}, s{sStatic}, s{sT1}")
    a(f"s_lshl_b32 s{sT0}, s{sWave}, 12")
    a(f"s_add_u32 s{sStatic}, s{sStatic}, s{sT0}")
    if stamps and sprof == 3:
        a("v_mov_b32 v63, 0")
        a("v_writelane_b32 v63, s84, 0")
    srd(SRD_L, sK, 0x10000000)
    srd(SRD_C, sWS, 0x100000)
    a(f"v_mov_b32 v{vTk}, {L_SYNC}")
    a(f"s_mul_i32 s{sT0}, s{sH}, {cstride}")
    a(f"s_add_u32 s{sT0}, s{sT0}, {WS_CTR}")
    a(f"v_mov_b32 v{vCo}, s{sT0}")
    a(f"v_add_u32 v{vCo2}, 128, v{vCo}")
    def ost_init():
        for i in range(4):
            a(f"v_mov_b32 v{vT+i}, 0")
        for b in range(4):
            a(f"ds_write_b128 v{vOst}, {V(vT,4)} offset:{b*2048}")
            a(f"ds_write_b128 v{vOst}, {V(vT,4)} offset:{b*2048+16}")
    def s_lds_init():
        a(f"s_mul_i32 s{sT0}, s{sWave}, {L_LPW}")
        a(f"v_lshlrev_b32 v{vOst}, 5, v{vLane}")
        a(f"v_add_u32 v{vOst}, s{sT0}, v{vOst}")
        a(f"v_add_u32 v{vOst}, {L_OST}, v{vOst}")
        a(f"v_lshrrev_b32 v{vMl}, 4, v{vLane}")
        a(f"v_lshlrev_b32 v{vScl}, 4, v{vMl}")
        a(f"s_lshl_b32 s{sT0}, s{sWave}, 12")
        a(f"s_add_u32 s{sT0}, s{sT0}, {L_SCL}")
        a(f"v_add_u32 v{vScl}, s{sT0}, v{vScl}")
        a(f"s_lshl_b32 s{sT0}, s{sWave}, 2")
        a(f"v_add_u32 v{vMl}, s{sT0}, v{vMl}")
        a(f"v_lshlrev_b32 v{vMl}, 3, v{vMl}")
        a(f"v_add_u32 v{vMl}, {L_ML}, v{vMl}")
        a(f"v_and_b32 v{vQa}, 15, v{vLane}")
        a(f"v_lshlrev_b32 v{vQa}, 4, v{vQa}")
        a(f"v_add_u32 v{vQa}, {L_QB}, v{vQa}")
        for i in range(8):
            a(f"v_mov_b32 v{vO+i}, 0")
        a(f"v_mov_b32 v{vM}, 0x{NEG_MAX:08x}")
        a(f"v_mov_b32 v{vL}, 0")
        for b in range(4):
            a(f"ds_write_b64 v{vMl}, {V(vM,2)} offset:{b*128}")
        if NLK == 0:
            ost_init()
    nld = 0
    th_ = min(th, 48)
    a(f"s_mul_i32 s{sT4}, s{sWave}, {L_LPW}")
    a(f"s_add_u32 s{sT4}, s{sT4}, {L_OST}")
    seq = [("x", i) for i in range(NXR)] + [("l", j) for j in range(NLK)] + [("r", j) for j in range(NR)]
    for n_, (kind, bi) in enumerate(seq):
        a(f"s_add_u32 s{sOff}, s{sStatic}, {n_ * CH}")
        if kind == "l":
            a(f"s_add_u32 m0, s{sT4}, {bi*4096}")
        for i in range(KL):
            if nld >= th_:
                a(f"s_waitcnt vmcnt({th_-1})")
            elif kind == "l" and i == 0:
                a("s_nop 0")
            if kind == "l":
                a(f"buffer_load_dwordx4 v{vOff}, {P4(SRD_L)}, s{sOff} offen offset:{i*1024} {pol} lds")
            else:
                bb = xbuf(bi) if kind == "x" else rbuf(bi)
                a(f"buffer_load_dwordx4 {V(bb+4*i,4)}, v{vOff}, {P4(SRD_L)}, s{sOff} offen offset:{i*1024} {pol}")
            nld += 1
            if nld == th_:
                sstamp(2)
    stamp(1)
    sstamp(5)
    s_lds_init()
    lds_wait(5, 4, vTk, vTmp, sT0)
    stamp(2)
    sstamp(6)
    a(f"s_lshl_b32 s{sT0}, s{sCur}, 8")
    a(f"v_add_u32 v{vTmp}, s{sT0}, v{vQa}")
    a(f"ds_read_b128 {V(vQ,4)}, v{vTmp}")
    a(f"s_mov_b32 s{sIdx}, {NPRE}")
    a(f"s_mov_b32 s{sN}, {NXT}")
    a(f"s_mov_b32 s{sNT}, 0")
    a(f"s_mov_b32 s{sVIdx}, 0")
    a(f"s_mov_b32 s{sNV}, 0x7fffffff")
    for j in range(NR):
        a(f"s_mov_b32 s{sBq4[j]}, s{sCur}")
        a(f"s_mov_b32 s{sTk4[j]}, {NXT + j}")
    a(f"s_mov_b32 s{sXc}, 0")
    a(f"s_mov_b32 s{sBn}, s{sCur}")
    sQb = sBn
    sNb, sNtag = sT3, sT2
    a("s_waitcnt lgkmcnt(0)")

    LEAD = ("s_mov_b32 exec_lo, 0x00010001", "s_mov_b32 exec_hi, 0x00010001")
    def qk(bb):
        for j in range(4):
            for i in range(KL):
                k = bb + 4 * i + j
                if j == 0:
                    a(f"v_dot2_f32_bf16 v{vS+i}, v{k}, v{vQ+j}, 0")
                else:
                    a(f"v_dot2_f32_bf16 v{vS+i}, v{k}, v{vQ+j}, v{vS+i}")
    def reduce_scores():
        row_allreduce("v_add_f32", [vS, vS+1, vS+2, vS+3], nop_first=False)
        for rep in range(2):
            if mimic:
                a(f"v_cvt_pk_bf16_f32 v{vT}, v{vS}, v{vS+1}")
                a(f"v_cvt_pk_bf16_f32 v{vT+1}, v{vS+2}, v{vS+3}")
                a(f"v_lshlrev_b32 v{vS}, 16, v{vT}")
                a(f"v_and_b32 v{vS+1}, s{sMask}, v{vT}")
                a(f"v_lshlrev_b32 v{vS+2}, 16, v{vT+1}")
                a(f"v_and_b32 v{vS+3}, s{sMask}, v{vT+1}")
            if rep == 0 and mimic:
                for i in range(4):
                    a(f"v_mul_f32 v{vS+i}, s{sMim}, v{vS+i}")
    def store_scores_static(stag):
        a(f"s_lshl_b32 s{sT0}, s{stag}, 6")
        a(f"v_add_u32 v{vTmp}, s{sT0}, v{vScl}")
        a(LEAD[0]); a(LEAD[1])
        a(f"ds_write_b128 v{vTmp}, {V(vS,4)}")
        a("s_mov_b64 exec, -1")
    def softmax(sb):
        a(f"v_max3_f32 v{vMn}, v{sb}, v{sb+1}, v{sb+2}")
        a(f"v_max_f32 v{vMn}, v{vMn}, v{sb+3}")
        a(f"v_mul_f32 v{vMn}, s{sC}, v{vMn}")
        a(f"v_max_f32 v{vMn}, v{vMn}, v{vM}")
        a(f"v_sub_f32 v{vAl}, v{vM}, v{vMn}")
        for i in range(4):
            a(f"v_fma_f32 v{sb+i}, v{sb+i}, s{sC}, -v{vMn}")
        a(f"v_exp_f32 v{vAl}, v{vAl}")
        for i in range(4):
            a(f"v_exp_f32 v{sb+i}, v{sb+i}")
        a(f"v_mov_b32 v{vM}, v{vMn}")
        a(f"v_fma_f32 v{vL}, v{vL}, v{vAl}, v{sb}")
        a(f"v_add_f32 v{vT}, v{sb+1}, v{sb+2}")
        a(f"v_add_f32 v{vL}, v{vL}, v{sb+3}")
        a(f"v_add_f32 v{vL}, v{vL}, v{vT}")
        for j in range(4):
            a(f"v_pk_mul_f32 {V(vO+2*j,2)}, {V(vO+2*j,2)}, {V(vAl,2)} op_sel_hi:[1,0]")
    def pv(bb, sb):
        for i in range(KL):
            p = sb + i
            pb = p & ~1
            sel = "op_sel:[0,1,0] op_sel_hi:[1,1,1]" if (p & 1) else "op_sel_hi:[1,0,1]"
            for j in range(4):
                v = bb + 4 * i + j
                t = vT + 2 * j
                a(f"v_lshlrev_b32 v{t}, 16, v{v}")
                a(f"v_and_b32 v{t+1}, s{sMask}, v{v}")
            for j in range(4):
                t = vT + 2 * j
                a(f"v_pk_fma_f32 {V(vO+2*j,2)}, {V(t,2)}, {V(pb,2)}, {V(vO+2*j,2)} {sel}")
    WAITN = (NR - 1) * KL
    sTyp = 8
    def set_srd(ptr):
        a(f"s_mov_b32 s{SRD_L}, s{ptr}")
        a(f"s_mov_b32 s{SRD_L+1}, s{ptr+1}")
    PP = 4 * P
    MAGIC = -(-65536 // PP) if PP else 0
    for t_ in range(D):
        assert (t_ * MAGIC) >> 16 == t_ // PP, (t_, PP)
    def decode_ticket(st):
        a(f"s_mul_i32 s{sT0}, s{st}, {MAGIC}")
        a(f"s_lshr_b32 s{sT0}, s{sT0}, 16")
        a(f"s_mul_i32 s{sOff}, s{sT0}, {PP}")
        a(f"s_sub_u32 s{sOff}, s{st}, s{sOff}")
        a(f"s_lshl_b32 s{sOff}, s{sOff}, 12")
        a(f"s_add_u32 s{sOff}, s{sOff}, {S*CH}")
        a(f"s_add_u32 s{sOff}, s{sOff}, s{sHeadW}")
        a(f"s_lshr_b32 s{sNb}, s{sT0}, 1")
        a(f"s_and_b32 s{sT0}, s{sT0}, 1")
        a(f"s_lshl_b32 s{sT0}, s{sT0}, 20")
        a(f"s_add_u32 s{sOff}, s{sOff}, s{sT0}")
        a(f"s_lshl_b32 s{sT0}, s{sNb}, 26")
        a(f"s_add_u32 s{sOff}, s{sOff}, s{sT0}")
    def issue_v_static(j):
        a(f"s_mul_i32 s{sOff}, s{sVIdx}, {CH}")
        a(f"s_add_u32 s{sOff}, s{sOff}, s{sStatic}")
        a(f"s_lshl_b32 s{sT0}, s{sVIdx}, 6")
        a(f"v_add_u32 v{vTmp}, s{sT0}, v{vScl}")
        a(f"ds_read_b128 {V(vSc[j],4)}, v{vTmp}")
        a(f"s_lshr_b32 s{sNb}, s{sG}, 1")
        a(f"s_add_u32 s{sVIdx}, s{sVIdx}, 1")
    def progstamp(tag):
        if stamps and sprof == 3:
            a(f"s_and_b32 s{sT0}, s{sN}, 7")
            a(f"s_cbranch_scc1 L_nops_{tag}")
            a(f"s_memrealtime s[84:85]")
            a(f"s_lshr_b32 m0, s{sN}, 3")
            a("s_waitcnt lgkmcnt(0)")
            a(f"v_writelane_b32 v63, s84, m0")
            a.label(f"L_nops_{tag}")
    sDOff, sDB, sDVal = 9, 10, 11
    def request_ticket(j):
        a(f"v_mov_b32 v{vTkt[j]}, 1")
        a("s_mov_b64 exec, 1")
        a(f"buffer_atomic_add v{vTkt[j]}, v{vCo}, {P4(SRD_C)}, 0 offen sc0")
        a("s_mov_b64 exec, -1")
    def next_dyn(j, tag):
        if j % 2 == 0:
            set_srd(sK)
            a(f"s_mov_b32 s{sNtag}, 0")
            a(f"s_mov_b32 s{sDVal}, 0")
            a(f"s_cmp_lg_u32 s{sNT}, 0")
            a(f"s_cbranch_scc1 L_nx_{tag}")
            a(f"v_readfirstlane_b32 s{sT1}, v{vTkt[j]}")
            a("s_nop 1")
            a(f"s_cmp_lt_u32 s{sT1}, {D}")
            a(f"s_cbranch_scc0 L_ne_{tag}")
            decode_ticket(sT1)
            a(f"s_mov_b32 s{sDOff}, s{sOff}")
            a(f"s_mov_b32 s{sDB}, s{sNb}")
            a(f"s_mov_b32 s{sDVal}, 1")
            a(f"s_mov_b32 s{sNtag}, 1")
            request_ticket(j)
            a(f"s_branch L_nd_{tag}")
            a.label(f"L_ne_{tag}")
            a(f"s_mov_b32 s{sNT}, 1")
            a.label(f"L_nx_{tag}")
            a(f"s_mov_b32 s{sOff}, 0x7ff00000")
            a(f"s_mov_b32 s{sNb}, s{sCur}")
            a.label(f"L_nd_{tag}")
        else:
            set_srd(sV)
            a(f"s_mov_b32 s{sNtag}, s{sDVal}")
            a(f"s_mov_b32 s{sNb}, s{sDB}")
            a(f"s_cmp_eq_u32 s{sDVal}, 1")
            a(f"s_cselect_b32 s{sOff}, s{sDOff}, 0x7ff00000")

    def kbody(j):
        tag = f"K{j}"
        bb = rbuf(j)
        a(f"s_cmp_lt_u32 s{sXc}, {NXT}")
        a(f"s_cbranch_scc1 L_x{tag}")
        a.label(f"L_x{tag}_ret")
        a(f"s_waitcnt vmcnt({WAITN})")
        qk(bb)
        a(f"s_cmp_lt_u32 s{sIdx}, {S}")
        a(f"s_cbranch_scc0 L_kd_{tag}")
        a(f"s_mul_i32 s{sOff}, s{sIdx}, {CH}")
        a(f"s_add_u32 s{sOff}, s{sOff}, s{sStatic}")
        a(f"s_add_u32 s{sIdx}, s{sIdx}, 1")
        a.label(f"L_kld_{tag}")
        ld4(bb)
        reduce_scores()
        store_scores_static(sN)
        a(f"s_add_u32 s{sN}, s{sN}, 1")
        progstamp(tag)
        a(f"s_cmp_ge_u32 s{sN}, {S}")
        a(f"s_cbranch_scc1 L_V{(j+1)%NR}_entry")
    def kbody_ool(j):
        tag = f"K{j}"
        a.label(f"L_kd_{tag}")
        set_srd(sV)
        issue_v_static(j)
        a(f"s_branch L_kld_{tag}")
        a.label(f"L_x{tag}")
        a(f"s_add_u32 s{sXc}, s{sXc}, 1")
        a(f"s_call_b64 {P2(sRet)}, L_xbody")
        a(f"s_branch L_x{tag}_ret")
    def vbody(j):
        tag = f"V{j}"
        bb = rbuf(j)
        a.label(f"L_V{j}_entry")
        a(f"s_waitcnt vmcnt({WAITN}) lgkmcnt(0)")
        softmax(vSc[j])
        pv(bb, vSc[j])
        a(f"s_cmp_lt_u32 s{sVIdx}, {S}")
        a(f"s_cbranch_scc0 L_vd_{tag}")
        issue_v_static(j)
        if dyn and j % 2 == 0:
            a(f"s_cmp_le_u32 s{sVIdx}, {S-NR}")
            a(f"s_cbranch_scc1 L_vld_{tag}")
            request_ticket(j)
        a.label(f"L_vld_{tag}")
        ld4(bb)
        a(f"s_add_u32 s{sN}, s{sN}, 1")
        progstamp(tag)
        a(f"s_cmp_ge_u32 s{sN}, {2*S}")
        a(f"s_cbranch_scc1 {'L_D%d_entry' % ((j+1)%NR) if dyn else 'L_sfin'}")
    def vbody_ool(j):
        tag = f"V{j}"
        a.label(f"L_vd_{tag}")
        if dyn:
            next_dyn(j, tag)
            a(f"s_mov_b32 s{sBq4[j]}, s{sNb}")
            a(f"s_mov_b32 s{sTk4[j]}, s{sNtag}")
        else:
            a(f"s_mov_b32 s{sOff}, 0x7ff00000")
        a(f"s_branch L_vld_{tag}")
    def dbody(j):
        tag = f"D{j}"
        bb = rbuf(j)
        a.label(f"L_D{j}_entry")
        a(f"s_cmp_eq_u32 s{sTk4[j]}, 0")
        a(f"s_cbranch_scc1 L_dinv_{tag}")
        if j % 2 == 0:
            a(f"s_cmp_eq_u32 s{sBq4[j]}, s{sQb}")
            a(f"s_cbranch_scc1 L_nq_{tag}")
            a(f"s_mov_b32 s{sQb}, s{sBq4[j]}")
            a(f"s_lshl_b32 s{sT0}, s{sQb}, 8")
            a(f"v_add_u32 v{vTmp}, s{sT0}, v{vQa}")
            a(f"ds_read_b128 {V(vQ,4)}, v{vTmp}")
            a("s_waitcnt lgkmcnt(0)")
            a.label(f"L_nq_{tag}")
            a(f"s_waitcnt vmcnt({WAITN})")
            qk(bb)
            next_dyn(j, tag)
            ld4(bb)
            reduce_scores()
        else:
            a(f"s_cmp_eq_u32 s{sBq4[j]}, s{sCur}")
            a(f"s_cbranch_scc1 L_nosw_{tag}")
            a(f"s_mov_b32 s{sSw}, s{sBq4[j]}")
            a(f"s_call_b64 {P2(sRet)}, L_switch")
            a.label(f"L_nosw_{tag}")
            softmax(vS)
            a(f"s_waitcnt vmcnt({WAITN})")
            pv(bb, vS)
            next_dyn(j, tag)
            ld4(bb)
        a(f"s_mov_b32 s{sBq4[j]}, s{sNb}")
        a(f"s_mov_b32 s{sTk4[j]}, s{sNtag}")
        a(f"s_add_u32 s{sN}, s{sN}, 1")
        progstamp(tag)
        if j == NR - 1:
            a("s_branch L_D0_entry")
    def dbody_ool(j):
        tag = f"D{j}"
        a.label(f"L_dinv_{tag}")
        a("s_branch L_sfin")

    sSw = 12
    a.label("L_kloop")
    for j in range(NR):
        kbody(j)
    a("s_branch L_kloop")
    a.label("L_vloop")
    for j in range(NR):
        vbody(j)
    a("s_branch L_vloop")
    if dyn:
        for j in range(NR):
            dbody(j)
        for j in range(NR):
            dbody_ool(j)
    for j in range(NR):
        kbody_ool(j)
    for j in range(NR):
        vbody_ool(j)
    a.label("L_xbody")
    a(f"s_sub_u32 s{sOld}, s{sXc}, 1")
    if NLK:
        a(f"s_cmp_le_u32 s{sXc}, {NXR}")
        a("s_cbranch_scc1 L_xreg")
        a(f"s_sub_u32 s{sT1}, s{sXc}, {NXR+1}")
        a(f"s_mul_i32 s{sT0}, s{sWave}, {L_LPW}")
        a(f"s_lshl_b32 s{sT2}, s{sT1}, 12")
        a(f"s_add_u32 s{sT0}, s{sT0}, s{sT2}")
        a(f"s_add_u32 s{sT0}, s{sT0}, {L_OST}")
        a(f"v_add_u32 v{vTmp}, s{sT0}, v{vOff}")
        for i in range(4):
            a(f"ds_read_b128 {V(xbuf(0)+4*i,4)}, v{vTmp} offset:{i*1024}")
        a("s_waitcnt lgkmcnt(0)")
        a(f"s_cmp_eq_u32 s{sXc}, {NXT}")
        a("s_cbranch_scc0 L_xb0")
        ost_init()
        a("s_branch L_xb0")
        a.label("L_xreg")
    for x in range(NXR):
        if x < NXR - 1:
            a(f"s_cmp_eq_u32 s{sXc}, {x+1}")
            a(f"s_cbranch_scc0 L_xn{x}")
        a.label(f"L_xb{x}")
        qk(xbuf(x))
        a("s_nop 2")
        reduce_scores()
        store_scores_static(sOld)
        a(f"s_setpc_b64 {P2(sRet)}")
        if x < NXR - 1:
            a.label(f"L_xn{x}")
    def save_state():
        a(f"s_lshl_b32 s{sT0}, s{sCur}, 11")
        a(f"v_add_u32 v{vTmp}, s{sT0}, v{vOst}")
        a(f"ds_write_b128 v{vTmp}, {V(vO,4)}")
        a(f"ds_write_b128 v{vTmp}, {V(vO+4,4)} offset:16")
        a(f"s_lshl_b32 s{sT0}, s{sCur}, 7")
        a(f"v_add_u32 v{vTmp+1}, s{sT0}, v{vMl}")
        a(f"ds_write_b64 v{vTmp+1}, {V(vM,2)}")
    a.label("L_switch")
    save_state()
    a(f"s_mov_b32 s{sCur}, s{sSw}")
    a(f"s_lshl_b32 s{sT0}, s{sCur}, 11")
    a(f"v_add_u32 v{vTmp}, s{sT0}, v{vOst}")
    a(f"ds_read_b128 {V(vO,4)}, v{vTmp}")
    a(f"ds_read_b128 {V(vO+4,4)}, v{vTmp} offset:16")
    a(f"s_lshl_b32 s{sT0}, s{sCur}, 7")
    a(f"v_add_u32 v{vTmp+1}, s{sT0}, v{vMl}")
    a(f"ds_read_b64 {V(vM,2)}, v{vTmp+1}")
    a("s_waitcnt lgkmcnt(0)")
    a(f"s_setpc_b64 {P2(sRet)}")

    a.label("L_sfin")
    if stamps and sprof == 3:
        a(f"s_lshl_b32 s{sT0}, s2, 2")
        a(f"s_add_u32 s{sT0}, s{sT0}, s{sWave}")
        a(f"s_lshl_b32 s{sT0}, s{sT0}, 8")
        a(f"s_add_u32 s{sT0}, s{sT0}, {WS_STAMP+0x40000}")
        a(f"v_lshlrev_b32 v39, 2, v{vLane}")
        a(f"v_add_u32 v39, s{sT0}, v39")
        a(f"global_store_dword v39, v63, {P2(sWS)}")
    stamp(3)
    save_state()
    a("s_waitcnt lgkmcnt(0)")
    a("s_barrier")
    stamp(6)
    tstamp(1)
    a(f"s_cmp_lt_u32 s{sH}, 4")
    a("s_cbranch_scc0 L_fin_stamp")
    a(f"s_cmp_lt_u32 s{sG}, 5")
    a("s_cbranch_scc0 L_fin_stamp")
    a("s_branch L_final_pre")

    a.label("L_h_post")
    a(f"v_lshlrev_b32 v{vL2}, 1, v{vLane}")
    if skippost:
        a("s_branch L_h_tailprep")
    a(f"s_cmp_lt_u32 s{sG}, 5")
    a("s_cbranch_scc0 L_h_notile")
    vTo = 8
    a(f"v_lshrrev_b32 v{vTo}, 4, v{vLane}")
    a(f"v_mul_u32_u24 v{vTo}, 1280, v{vTo}")
    a(f"v_and_b32 v{vTo+1}, 15, v{vLane}")
    a(f"v_lshlrev_b32 v{vTo+1}, 4, v{vTo+1}")
    a(f"v_add_u32 v{vTo}, v{vTo}, v{vTo+1}")
    srd(SRD_A, sWO, 4096 * 1280)
    srd(SRD_B, sW2, 1728 * 1280)
    a(f"s_lshl_b32 s{sT0}, s{sH}, 7")
    a(f"s_lshl_b32 s{sT1}, s{sHW}, 5")
    a(f"s_add_u32 s{sT0}, s{sT0}, s{sT1}")
    a(f"s_mul_i32 s{sT0}, s{sT0}, 1280")
    a(f"s_lshl_b32 s{sT1}, s{sG}, 8")
    a(f"s_add_u32 s{sT0}, s{sT0}, s{sT1}")
    a(f"s_lshl_b32 s{sT2}, s{sHW}, 13")
    a(f"s_add_u32 s{sT2}, s{sT2}, {L_WT}")
    for i in range(8):
        a(f"s_add_u32 m0, s{sT2}, {i*1024}")
        a(f"s_nop 0")
        a(f"buffer_load_dwordx4 v{vTo}, {P4(SRD_A)}, s{sT0} offen {pol} lds")
        a(f"s_add_u32 s{sT0}, s{sT0}, {4*1280}")
    a(f"s_lshl_b32 s{sT0}, s{sH}, 6")
    a(f"s_lshl_b32 s{sT3}, s{sHW}, 4")
    a(f"s_add_u32 s{sT0}, s{sT0}, s{sT3}")
    a(f"s_mul_i32 s{sT0}, s{sT0}, 1280")
    a(f"s_add_u32 s{sT0}, s{sT0}, s{sT1}")
    a(f"s_lshl_b32 s{sT2}, s{sHW}, 12")
    a(f"s_add_u32 s{sT2}, s{sT2}, {L_W2T}")
    for i in range(4):
        a(f"s_add_u32 m0, s{sT2}, {i*1024}")
        a(f"s_nop 0")
        a(f"buffer_load_dwordx4 v{vTo}, {P4(SRD_B)}, s{sT0} offen {pol} lds")
        a(f"s_add_u32 s{sT0}, s{sT0}, {4*1280}")
    a("s_waitcnt vmcnt(0)")
    lds_arrive(6, vSy, vOne)
    a(f"v_lshrrev_b32 v{vU}, 4, v{vLane}")
    a(f"v_lshlrev_b32 v{vBo}, 11, v{vU}")
    a(f"v_and_b32 v{vU+1}, 15, v{vLane}")
    a(f"v_lshlrev_b32 v{vU+1}, 1, v{vU+1}")
    a(f"v_add_u32 v{vBo}, v{vBo}, v{vU+1}")
    a(f"s_lshl_b32 s{sT1}, s{sHW}, 6")
    a(f"v_add_u32 v{vBo}, s{sT1}, v{vBo}")
    def build_btile(dst, ldsoff, nsteps, tmp):
        for s in range(nsteps):
            for j in range(8):
                a(f"ds_read_u16 v{tmp+8*s+j}, v{vBo} offset:{ldsoff + (32*s+j)*256}")
            a("s_waitcnt lgkmcnt(0)")
            for j2 in range(4):
                a(f"v_lshl_or_b32 v{dst+4*s+j2}, v{tmp+8*s+2*j2+1}, 16, v{tmp+8*s+2*j2}")
    lds_wait(6, 4, vSy, vU + 4, sT0)
    for tt in range(2):
        build_btile(vWO + 16 * tt, L_WT + tt * 32, 4, 64)
    for tt in range(2):
        build_btile(vW2 + 8 * tt, L_W2T + tt * 32, 2, 64)
    a.label("L_h_notile")
    a(f"s_cmp_eq_u32 s{sHW}, 3")
    a("s_cbranch_scc1 L_h3")
    a(f"s_cmp_eq_u32 s{sHW}, 0")
    a("s_cbranch_scc0 L_h_ffn2")
    a(f"s_cmp_lt_u32 s{sH}, 4")
    a("s_cbranch_scc0 L_h_ffn2")
    a.label("L_fflag")
    a(f"global_load_dword v{vU+1}, v{vL4}, {P2(sDBG)} sc1")
    a(f"v_and_b32 v{vU+2}, 16, v{vLane}")
    a(f"v_lshrrev_b32 v{vU+2}, 1, v{vU+2}")
    a("s_waitcnt vmcnt(0)")
    a(f"v_add_u32 v{vU+1}, v{vU+1}, v{vU+2}")
    a(f"v_cmp_gt_u32 vcc, 8, v{vU+1}")
    a("s_nop 4")
    a("s_cbranch_vccz L_h_ffn2")
    a("s_sleep 8")
    spin_timeout("L_fflag")
    a("s_branch L_h_ffn2")

    a.label("L_h3")
    vW1 = 32
    vXq = 112
    vHA = 128
    vHG = 32
    vHa = 112
    if skipffn:
        a("s_branch L_h_tailprep")
    srd(SRD_B, sW1, 640 * 3456)
    a(f"s_mul_i32 s{sOff}, s{sG}, {80*3456}")
    a(f"s_lshl_b32 s{sT0}, s{sH}, 7")
    a(f"s_add_u32 s{sOff}, s{sOff}, s{sT0}")
    a(f"s_cmp_lt_u32 s{sH}, 27")
    a(f"s_cselect_b32 s{sOff}, s{sOff}, 0x7f000000")
    for q4 in range(80 // w1b):
        for i in range(w1b):
            a(f"buffer_load_ushort v{vW1+w1b*q4+i}, v{vL2}, {P4(SRD_B)}, s{sOff} offen {pol}")
            a(f"s_add_u32 s{sOff}, s{sOff}, 3456")
        a("s_waitcnt vmcnt(0)")
    for b in range(4):
        a(f"v_mov_b32 v{vHA+b}, 0")
    a(f"s_mul_i32 s{sT0}, s{sG}, 320")
    a(f"v_mov_b32 v{vU}, s{sT0}")
    for q4 in range(20):
        for b in range(4):
            a(f"ds_read_b128 {V(vXq+4*b,4)}, v{vU} offset:{L_XN+b*2560+16*q4}")
        for r in range(4):
            a(f"v_lshlrev_b32 v{vW1+4*q4+r}, 16, v{vW1+4*q4+r}")
        a("s_waitcnt lgkmcnt(0)")
        for r in range(4):
            for b in range(4):
                a(f"v_fmac_f32 v{vHA+b}, v{vXq+4*b+r}, v{vW1+4*q4+r}")
    a(f"s_add_u32 s{sT0}, s{sIdx}, {OB_HP}")
    a(f"v_add_u32 v{vU+1}, s{sT0}, v{vL4}")
    for b in range(4):
        a(f"global_store_dword v{vU+1}, v{vHA+b}, {P2(sWS)} offset:{b*256} sc1")
    a(f"s_cmp_lt_u32 s{sG}, 5")
    a("s_cbranch_scc0 L_h_tailprep")
    srd(SRD_B, sB1, 1728 * 2)
    a(f"s_lshl_b32 s{sT0}, s{sH}, 7")
    a(f"buffer_load_ushort v{vU+3}, v{vL2}, {P4(SRD_B)}, s{sT0} offen")
    for g_ in range(8):
        a(f"s_add_u32 s{sT0}, s{sHeadW}, {OB_HP+g_*8192}")
        a(f"v_add_u32 v{vHa+g_}, s{sT0}, v{vL4}")
    a(f"v_and_b32 v{vU+5}, 7, v{vLane}")
    a(f"v_lshlrev_b32 v{vU+5}, 13, v{vU+5}")
    a(f"s_add_u32 s{sT0}, s{sHeadW}, {OB_HP+3*256}")
    a(f"v_add_u32 v{vU+5}, s{sT0}, v{vU+5}")
    a("s_mov_b64 exec, 0xff")
    a.label("L_hlp")
    a(f"global_load_dword v{vU+6}, v{vU+5}, {P2(sWS)} sc1")
    a("s_waitcnt vmcnt(0)")
    a(f"v_cmp_eq_u32 vcc, -1, v{vU+6}")
    a("s_nop 4")
    a("s_cbranch_vccz L_hlpok")
    a("s_sleep 32")
    spin_timeout("L_hlp")
    a.label("L_hlpok")
    a("s_mov_b64 exec, -1")
    a.label("L_hg")
    for b in range(4):
        for g_ in range(8):
            a(f"global_load_dword v{vHG+8*b+g_}, v{vHa+g_}, {P2(sWS)} offset:{b*256} sc1")
    a("s_waitcnt vmcnt(0)")
    sentinel_check(range(vHG, vHG + 32), vU + 4)
    a("s_cbranch_vccz L_hgok")
    a("s_sleep 16")
    spin_timeout("L_hg")
    a.label("L_hgok")
    a(f"v_lshlrev_b32 v{vU+3}, 16, v{vU+3}")
    for b in range(4):
        r = vHG + 8 * b
        for g_ in range(1, 8):
            a(f"v_add_f32 v{r}, v{r}, v{r+g_}")
        rnd_bf16(r, r)
        a(f"v_add_f32 v{r}, v{r}, v{vU+3}")
        rnd_bf16(r, r)
        a(f"v_max_f32 v{r}, 0, v{r}")
        a(f"v_mul_f32 v{r}, v{r}, v{r}")
        a(f"v_cvt_pk_bf16_f32 v{r}, v{r}, v{r}")
        a(f"ds_write_b16 v{vL2}, v{r} offset:{L_HB+b*128}")
    lds_arrive(7, vSy, vOne)
    a.label("L_h_ffn2")
    a(f"s_cmp_lt_u32 s{sG}, 5")
    a("s_cbranch_scc0 L_h_tailprep")
    vHAo = 132
    if not skipffn:
        lds_wait(7, 1, vSy, vU + 4, sT0, sleep=32)
    a(f"v_and_b32 v{vU}, 3, v{vLane}")
    a(f"v_lshlrev_b32 v{vU}, 7, v{vU}")
    a(f"v_lshrrev_b32 v{vU+1}, 4, v{vLane}")
    a(f"v_lshlrev_b32 v{vU+1}, 4, v{vU+1}")
    a(f"v_add_u32 v{vU}, v{vU}, v{vU+1}")
    a(f"ds_read_b128 {V(vHAo,4)}, v{vU} offset:{L_HB}")
    a(f"ds_read_b128 {V(vHAo+4,4)}, v{vU} offset:{L_HB+64}")
    for i in range(8):
        a(f"v_mov_b32 v{vY+i}, 0")
    a("s_waitcnt lgkmcnt(0)")
    for s in range(2):
        for tt in range(2):
            a(f"v_mfma_f32_16x16x32_bf16 {V(vY+4*tt,4)}, {V(vHAo+4*s,4)}, {V(vW2+8*tt+4*s,4)}, {V(vY+4*tt,4)}")

    a.label("L_h_tailprep")
    vA0, vA1, vMlA, vPub, vMlP, vMlG, vDbG, vDbO, vOaW, vOaR, vYp = 8, 9, 10, 11, 12, 13, 14, 15, 16, 17, 18
    vGa2 = 20
    vMl2, vC, vLs, vMx = 28, 30, 31, 32
    vOo = 34
    vZ = 38
    vOv = 64
    vGg = 64
    vAo = 96
    a(f"s_lshl_b32 s{sT0}, s{sHW}, 11")
    a(f"s_add_u32 s{sT0}, s{sT0}, {L_OST}")
    a(f"v_lshlrev_b32 v{vZ}, 3, v{vLane}")
    a(f"v_add_u32 v{vA0}, s{sT0}, v{vZ}")
    a(f"v_add_u32 v{vA1}, {2*L_LPW}, v{vA0}")
    a(f"v_and_b32 v{vZ+1}, 15, v{vLane}")
    a(f"v_lshlrev_b32 v{vMlA}, 3, v{vZ+1}")
    a(f"s_lshl_b32 s{sT0}, s{sHW}, 7")
    a(f"v_add_u32 v{vMlA}, s{sT0}, v{vMlA}")
    a(f"s_lshl_b32 s{sT0}, s{sHW}, 9")
    a(f"s_add_u32 s{sT1}, s{sIdx}, s{sT0}")
    a(f"s_add_u32 s{sT1}, s{sT1}, {OB_OP}")
    a(f"v_add_u32 v{vPub}, s{sT1}, v{vZ}")
    a(f"s_add_u32 s{sT1}, s{sHeadW}, s{sT0}")
    for g_ in range(8):
        a(f"s_add_u32 s{sT2}, s{sT1}, {OB_OP+g_*8192}")
        a(f"v_add_u32 v{vGa2+g_}, s{sT2}, v{vZ}")
    a(f"v_and_b32 v{vZ+2}, 7, v{vLane}")
    if mlmode == 0:
        a(f"s_lshl_b32 s{sT0}, s{sH}, 2")
        a(f"s_add_u32 s{sT0}, s{sT0}, s{sHW}")
        a(f"s_lshl_b32 s{sT1}, s{sT0}, 6")
        a(f"s_add_u32 s{sT1}, s{sT1}, {WS_OPML}")
        a(f"s_lshl_b32 s{sT2}, s{sG}, 3")
        a(f"s_add_u32 s{sT2}, s{sT2}, s{sT1}")
        a(f"v_mov_b32 v{vMlP}, s{sT2}")
        a(f"v_lshlrev_b32 v{vMlG}, 3, v{vZ+2}")
        a(f"v_add_u32 v{vMlG}, s{sT1}, v{vMlG}")
    else:
        a(f"s_lshl_b32 s{sT0}, s{sHW}, 3")
        a(f"s_add_u32 s{sT1}, s{sIdx}, s{sT0}")
        a(f"s_add_u32 s{sT1}, s{sT1}, {OB_ML}")
        a(f"v_mov_b32 v{vMlP}, s{sT1}")
        a(f"s_add_u32 s{sT1}, s{sHeadW}, s{sT0}")
        a(f"s_add_u32 s{sT1}, s{sT1}, {OB_ML}")
        a(f"v_lshlrev_b32 v{vMlG}, 13, v{vZ+2}")
        a(f"v_add_u32 v{vMlG}, s{sT1}, v{vMlG}")
    a(f"v_lshlrev_b32 v{vDbG}, 13, v{vZ+2}")
    a(f"s_add_u32 s{sT2}, s{sHeadW}, {OB_DB}")
    a(f"v_add_u32 v{vDbG}, s{sT2}, v{vDbG}")
    a(f"s_add_u32 s{sT2}, s{sIdx}, {OB_DB}")
    a(f"v_mov_b32 v{vDbO}, s{sT2}")
    a(f"s_lshl_b32 s{sT0}, s{sHW}, 8")
    a(f"v_add_u32 v{vOaW}, s{sT0}, v{vL4}")
    a(f"v_and_b32 v{vOaR}, 3, v{vLane}")
    a(f"v_lshlrev_b32 v{vOaR}, 8, v{vOaR}")
    a(f"v_lshrrev_b32 v{vZ+2}, 4, v{vLane}")
    a(f"v_lshlrev_b32 v{vZ+2}, 4, v{vZ+2}")
    a(f"v_add_u32 v{vOaR}, v{vOaR}, v{vZ+2}")
    a(f"v_lshlrev_b32 v{vYp}, 2, v{vZ+1}")
    a(f"s_lshl_b32 s{sT0}, s{sHW}, 7")
    a(f"s_add_u32 s{sT0}, s{sT0}, s{sIdx}")
    a(f"s_add_u32 s{sT0}, s{sT0}, {OB_YP}")
    a(f"v_add_u32 v{vYp}, s{sT0}, v{vYp}")
    a(f"s_mov_b32 s{sSpin}, {spin_cap}")
    stamp(1)
    a("s_waitcnt vmcnt(0) lgkmcnt(0)")
    a("s_barrier")
    stamp(6)
    tstamp(1)
    a(f"ds_read_b64 {V(vMl2,2)}, v{vMlA} offset:{L_ML}")
    for i in range(16):
        w_ = i >> 2
        if i == 14:
            a("s_waitcnt lgkmcnt(14)")
        a(f"ds_read_b64 {V(vOv+2*i,2)}, v{vA0 if w_ < 2 else vA1} offset:{(w_&1)*L_LPW+(i&3)*512}")
    def merge_coef(dup):
        a(f"v_mov_b32 v{vMx}, v{vMl2}")
        row_allreduce("v_max_f32", [vMx])
        a(f"v_sub_f32 v{vC}, v{vMl2}, v{vMx}")
        a(f"v_exp_f32 v{vC}, v{vC}")
        a("s_nop 0")
        a(f"v_mul_f32 v{vLs}, v{vC}, v{vMl2+1}")
        row_allreduce("v_add_f32", [vLs])
        if dup:
            a(f"v_mul_f32 v{vLs}, 0.5, v{vLs}")
    def merge_o(n, base):
        for i in range(4):
            a(f"v_mov_b32 v{vOo+i}, 0")
        for i in range(n):
            for e in range(2):
                a(f"v_fmac_f32_dpp v{vOo+2*(i&1)+e}, v{vC}, v{base+2*i+e} row_newbcast:{i} {DPPM}")
        a(f"v_pk_add_f32 {V(vOo,2)}, {V(vOo,2)}, {V(vOo+2,2)}")
    merge_coef(False)
    a("s_waitcnt lgkmcnt(0)")
    merge_o(16, vOv)
    a(f"global_store_dwordx2 v{vPub}, {V(vOo,2)}, {P2(sWS)} sc1")
    a(f"v_mov_b32 v{vZ+2}, v{vMx}")
    a(f"v_mov_b32 v{vZ+3}, v{vLs}")
    assert (vZ + 2) % 2 == 0
    a("s_mov_b64 exec, 1")
    a(f"global_store_dwordx2 v{vMlP}, {V(vZ+2,2)}, {P2(sWS)} sc1")
    a("s_mov_b64 exec, -1")
    tstamp(2)
    if stamps and sprof == 2 and ackprof:
        a("s_waitcnt vmcnt(0)")
        tstamp(3)
    a(f"s_cmp_lt_u32 s{sG}, 5")
    a("s_cbranch_scc0 L_fin_stamp")
    a(f"s_mov_b32 s{sT4}, 0xff")
    a.label("L_opoll")
    a(f"global_load_dwordx2 {V(vMl2,2)}, v{vMlG}, {P2(sWS)} sc1")
    for g_ in range(8):
        a(f"s_bitcmp1_b32 s{sT4}, {g_}")
        a(f"s_cbranch_scc0 L_sk{g_}")
        a(f"global_load_dwordx2 {V(vGg+2*g_,2)}, v{vGa2+g_}, {P2(sWS)} sc1")
        a.label(f"L_sk{g_}")
    a("s_waitcnt vmcnt(0)")
    a(f"v_max_u32 v{vZ+2}, v{vMl2}, v{vMl2+1}")
    a(f"v_cmp_eq_u32 vcc, -1, v{vZ+2}")
    a("s_nop 4")
    a(f"s_and_b32 s{sT4}, vcc_lo, 0xff")
    a("s_cbranch_scc1 L_oretry")
    sentinel_check(list(range(vGg, vGg + 16)), vZ + 2)
    a("s_cbranch_vccz L_ook")
    a(f"s_mov_b32 s{sT4}, 0xff")
    a.label("L_oretry")
    if resleep:
        a(f"s_sleep {resleep}")
    spin_timeout("L_opoll")
    a.label("L_ook")
    stamp(7)
    tstamp(4)
    merge_coef(True)
    a(f"v_rcp_f32 v{vLs}, v{vLs}")
    merge_o(8, vGg)
    a(f"v_pk_mul_f32 {V(vOo,2)}, {V(vOo,2)}, {V(vLs-1,2)} op_sel:[0,1] op_sel_hi:[1,1]")
    assert (vLs - 1) % 2 == 0
    a(f"v_cvt_pk_bf16_f32 v{vOo}, v{vOo}, v{vOo+1}")
    a(f"ds_write_b32 v{vOaW}, v{vOo} offset:{L_OA}")
    a("s_waitcnt lgkmcnt(0)")
    a("s_barrier")
    tstamp(5)
    for s in range(4):
        a(f"ds_read_b128 {V(vAo+4*s,4)}, v{vOaR} offset:{L_OA+64*s}")
    for s in range(4):
        a(f"s_waitcnt lgkmcnt({3-s})")
        for tt in range(2):
            a(f"v_mfma_f32_16x16x32_bf16 {V(vY+4*tt,4)}, {V(vAo+4*s,4)}, {V(vWO+16*tt+4*s,4)}, {V(vY+4*tt,4)}")
    a("s_mov_b64 exec, 0xffff")
    a("s_nop 7")
    for tt in range(2):
        for b in range(4):
            a(f"global_store_dword v{vYp}, v{vY+4*tt+b}, {P2(sWS)} offset:{b*512+tt*64} sc1")
    a("s_mov_b64 exec, -1")
    tstamp(6)
    a(f"s_cmp_lt_u32 s{sH}, 4")
    a("s_cbranch_scc0 L_fin_stamp")
    a("s_branch L_final")

    a.label("L_final_pre")
    a("s_barrier")
    a.label("L_final")
    vFa, vFx, vF0, vY_ = 2, 4, 8, 30
    vZ2 = 30
    a(f"v_lshrrev_b32 v{vZ2}, 4, v{vLane}")
    a(f"v_lshlrev_b32 v{vZ2}, 2, v{vZ2}")
    a(f"s_lshl_b32 s{sT0}, s{sWave}, 4")
    a(f"v_add_u32 v{vZ2}, s{sT0}, v{vZ2}")
    a(f"v_and_b32 v{vZ2+1}, 15, v{vLane}")
    a(f"v_lshlrev_b32 v{vFa}, 16, v{vZ2+1}")
    a(f"v_lshlrev_b32 v{vZ2+2}, 2, v{vZ2}")
    a(f"v_add_u32 v{vFa}, v{vFa}, v{vZ2+2}")
    a(f"s_lshl_b32 s{sT1}, s{sG}, 13")
    a(f"s_lshl_b32 s{sT0}, s{sH}, 9")
    a(f"s_add_u32 s{sT1}, s{sT1}, s{sT0}")
    a(f"s_add_u32 s{sT1}, s{sT1}, {WS_OB+OB_YP}")
    a(f"v_add_u32 v{vFa}, s{sT1}, v{vFa}")
    a(f"v_add_u32 v{vFa+1}, {16*65536}, v{vFa}")
    a(f"s_lshl_b32 s{sT2}, s{sG}, 7")
    a(f"v_add_u32 v{vZ2}, s{sT2}, v{vZ2}")
    a(f"v_lshlrev_b32 v{vZ2}, 1, v{vZ2}")
    a(f"s_mul_i32 s{sT3}, s{sH}, 1280")
    a(f"v_add_u32 v{vZ2+3}, s{sT3}, v{vZ2}")
    a(f"global_load_dwordx2 {V(vFx,2)}, v{vZ2+3}, {P2(sX)}")
    a(f"global_load_dwordx2 {V(vFx+2,2)}, v{vZ2}, {P2(sB2)}")
    a(f"s_mov_b32 s{sSpin}, {spin_cap}")
    a.label("L_ypoll")
    a(f"global_load_dwordx4 {V(vF0,4)}, v{vFa}, {P2(sWS)} sc1")
    a(f"global_load_dwordx4 {V(vF0+4,4)}, v{vFa+1}, {P2(sWS)} sc1")
    a("s_waitcnt vmcnt(0)")
    sentinel_check(range(vF0, vF0 + 8), vZ2 + 4)
    a("s_cbranch_vccz L_yok")
    spin_timeout("L_ypoll")
    a.label("L_yok")
    tstamp(7)
    for i in range(4):
        a(f"v_add_f32 v{vF0+i}, v{vF0+i}, v{vF0+4+i}")
    row_allreduce("v_add_f32", [vF0, vF0+1, vF0+2, vF0+3])
    for j in range(2):
        a(f"v_lshlrev_b32 v{vZ2+4}, 16, v{vFx+j}")
        a(f"v_and_b32 v{vZ2+5}, s{sMask}, v{vFx+j}")
        a(f"v_add_f32 v{vF0+2*j}, v{vF0+2*j}, v{vZ2+4}")
        a(f"v_add_f32 v{vF0+2*j+1}, v{vF0+2*j+1}, v{vZ2+5}")
        a(f"v_lshlrev_b32 v{vZ2+4}, 16, v{vFx+2+j}")
        a(f"v_and_b32 v{vZ2+5}, s{sMask}, v{vFx+2+j}")
        a(f"v_add_f32 v{vF0+2*j}, v{vF0+2*j}, v{vZ2+4}")
        a(f"v_add_f32 v{vF0+2*j+1}, v{vF0+2*j+1}, v{vZ2+5}")
    a(f"v_cvt_pk_bf16_f32 v{vF0+4}, v{vF0}, v{vF0+1}")
    a(f"v_cvt_pk_bf16_f32 v{vF0+5}, v{vF0+2}, v{vF0+3}")
    a("s_mov_b32 exec_lo, 0x00010001")
    a("s_mov_b32 exec_hi, 0x00010001")
    a(f"global_store_dwordx2 v{vZ2+3}, {V(vF0+4,2)}, {P2(sOUT)}")
    a("s_mov_b64 exec, -1")
    a.label("L_fin_stamp")
    if stamps:
        a("s_memrealtime s[4:5]")
        a("s_waitcnt lgkmcnt(0)")
        a(f"s_lshl_b32 s{sT0}, s2, 3")
        a(f"s_add_u32 s{sT0}, s{sT0}, s{sWave}")
        a(f"s_lshl_b32 s{sT0}, s{sT0}, 6")
        a(f"s_add_u32 s{sT0}, s{sT0}, {WS_STAMP}")
        a(f"v_mov_b32 v2, s{sT0}")
        for i in range(8):
            a(f"v_mov_b32 v{8+i}, s{STAMP0+2*i}")
        a("v_mov_b32 v16, s4")
        a("s_getreg_b32 s6, hwreg(HW_REG_XCC_ID)")
        a("v_mov_b32 v17, s6")
        a(f"v_mov_b32 v18, s{sN}")
        a("v_mov_b32 v19, 0")
        a("s_mov_b64 exec, 1")
        a(f"global_store_dwordx4 v2, v[8:11], {P2(sWS)}")
        a(f"global_store_dwordx4 v2, v[12:15], {P2(sWS)} offset:16")
        a(f"global_store_dwordx4 v2, v[16:19], {P2(sWS)} offset:32")
    a.label("L_end")
    a("s_endpgm")
    a.raw('.section .rodata,"a"')
    a.raw(".p2align 6")
    a.raw(f".amdhsa_kernel {KNAME}")
    a.raw("  .amdhsa_next_free_vgpr 256")
    a.raw("  .amdhsa_next_free_sgpr 102")
    a.raw("  .amdhsa_accum_offset 256")
    a.raw("  .amdhsa_group_segment_fixed_size 0")
    a.raw("  .amdhsa_kernarg_size 104")
    a.raw("  .amdhsa_user_sgpr_count 2")
    a.raw("  .amdhsa_user_sgpr_kernarg_segment_ptr 1")
    a.raw("  .amdhsa_system_sgpr_workgroup_id_x 1")
    a.raw(".end_amdhsa_kernel")
    return "\n".join(x for x in a.L if x is not None) + "\n"

if __name__ == "__main__":
    import argparse, ast
    ap = argparse.ArgumentParser()
    ap.add_argument("-o", default="k.s")
    ap.add_argument("kv", nargs="*")
    args = ap.parse_args()
    kw = {}
    for x in args.kv:
        k, v = x.split("=")
        try: v = ast.literal_eval(v)
        except Exception: pass
        kw[k] = v
    open(args.o, "w").write(gen(**kw))
```

```python
import struct, math

KNAME = "parallel_sum__gqa_block_cached__dense_activation_squared_relu__decode_kernel"

WS_CTR = 0x20000
WS_OPML = 0x10000
WS_OB = 0x100000
OB_QP, OB_OP, OB_HP, OB_YP, OB_DB, OB_GO, OB_ML = 0, 2048, 4096, 5120, 7168, 7296, 7424
OB_FILL = 8
WS_STAMP = 0x300000
WS_SC = 0x400000
L_XN = 0
L_QPART = 10240
L_QB = 18432
L_HB = 19456
L_OA = 19968
L_SYNC = 20992
L_ML = 21248
L_WT = 22528
L_W2T = 55296
L_SCL = 71680
L_OST = 71680 + 16384

NEG_MAX = 0xFF7FFFFF
def f2u(x): return struct.unpack("<I", struct.pack("<f", x))[0]
C_SCALE = f2u((128 ** -0.5) * math.log2(math.e))
SCALE_ONLY = f2u(128 ** -0.5)
LOG2E = f2u(math.log2(math.e))
INV640 = f2u(1.0 / 640.0)
EPS = f2u(1e-5)

DOC = """
Fused LayerNorm + decode attention (B=4, H=32, Sk=8192, Dh=128) + squared-ReLU FFN + residual.
One workgroup per CU: wg = 8*h + g.  The 8 workgroups of head h share its 4 x 8192 keys.
Waves 0-3 stream K/V (nt loads, flash-decoding partials per 16-lane row): first K of the static
key range (scores kept in LDS), then V of that range, then ticket-balanced chunks (atomic counter).
Waves 4-7: LayerNorm, K-split q projection (partials exchanged through the workspace), FFN,
output-projection tile (MFMA) and the final reduction over heads.
Cross-workgroup hand-offs: write-through stores into slots pre-filled with a sentinel by their
owner; a per-head arrival counter in d_debug orders the fill before any read.
"""

class Asm:
    def __init__(self):
        self.L = []
        self.uid = 0
    def __call__(self, s):
        self.L.append("  " + s)
    def label(self, s):
        self.L.append(s + ":")
    def u(self, base):
        self.uid += 1
        return f"{base}_{self.uid}"
    def raw(self, s):
        self.L.append(s)

def gen(dyn=True, S=52, stamps=False, pol="nt", NB=2, spin_cap=1 << 16, th=12, nocomp=0, sprof=0, hprio=3,
        qpoll_sleep=2, opoll_sleep=2, dbneed=7, NL=2, w1b=40, skipffn=0, skippost=0, mimic=1, cstride=256, prot=0, fastre=1, mlmode=0, resleep=0, ackprof=0, stpol="sc1", ilv=0):
    KL = 4
    NX = 6 - NB
    assert NL <= NX
    NXT = NX + NL
    NPRE = 6 + NL
    L_LPW = max(NL, 1) * 8192
    L_TOTAL = L_OST + 4 * L_LPW
    CH = KL * 4096
    NCH = (1 << 20) // CH
    if not dyn:
        S = NCH
    P = NCH - S
    logP = P.bit_length() - 1 if P else 0
    D = 8 * P * 4
    logPW = logP + 2
    a = Asm()
    a.raw("; @launch grid=(256,1,1) block=(512,1,1) lds=%d" % L_TOTAL)
    for line in DOC.strip().split("\n"):
        a.raw("; " + line)
    a.raw('.amdgcn_target "amdgcn-amd-amdhsa--gfx950"')
    a.raw(".text")
    a.raw(f".globl {KNAME}")
    a.raw(".p2align 8")
    a.raw(f".type {KNAME},@function")
    a.label(KNAME)

    sX, sK, sV, sWQ, sWO, sW1, sB1, sW2, sB2, sOUT, sDBG, sWS = 16, 18, 20, 22, 24, 28, 30, 32, 34, 36, 38, 40
    sWave, sH, sG, sHW = 42, 43, 44, 45
    sMask, sC = 46, 47
    SRD_K, SRD_V, SRD_A, SRD_B = 48, 52, 56, 60
    sStatic, sHeadW, sIdx, sN, sNT, sOff, sCur, sBn, sXc = 64, 65, 66, 67, 68, 69, 70, 71, 72
    sBq = [73, 74, 75]
    sT0, sT1, sT2, sT3, sT4 = 76, 77, 78, 79, 6
    sRet = 80
    sSpin = 83
    STAMP0 = 84
    def P2(s): return f"s[{s}:{s+1}]"
    def P4(s): return f"s[{s}:{s+3}]"
    def _st(i): a(f"s_memrealtime s[{STAMP0+2*i}:{STAMP0+2*i+1}]")
    def stamp(i):
        if stamps and (not sprof or i == 0): _st(i)
    def sstamp(i):
        if stamps and sprof == 1: _st(i)
    def tstamp(i):
        if stamps and sprof == 2: _st(i)
    def V(n, cnt=1):
        return f"v{n}" if cnt == 1 else f"v[{n}:{n+cnt-1}]"
    DPPM = "row_mask:0xf bank_mask:0xf"
    def row_allreduce(op, regs, nop_first=True):
        steps = ["quad_perm:[1,0,3,2]", "quad_perm:[2,3,0,1]", "row_half_mirror", "row_mirror"]
        need = max(0, 2 - (len(regs) - 1))
        if nop_first:
            a("s_nop 1")
        for si, st in enumerate(steps):
            for r in regs:
                a(f"{op}_dpp v{r}, v{r}, v{r} {st} {DPPM}")
            if need and si < 3:
                a(f"s_nop {need-1}")
    def wave_sum_to_sgpr(r, sdst):
        row_allreduce("v_add_f32", [r])
        a("s_nop 1")
        a(f"v_add_f32_dpp v{r}, v{r}, v{r} row_bcast:15 row_mask:0xa bank_mask:0xf")
        a("s_nop 1")
        a(f"v_add_f32_dpp v{r}, v{r}, v{r} row_bcast:31 row_mask:0xc bank_mask:0xf")
        a("s_nop 1")
        a(f"v_readlane_b32 s{sdst}, v{r}, 63")
    def rnd_bf16(dst, src):
        a(f"v_cvt_pk_bf16_f32 v{dst}, v{src}, v{src}")
        a(f"v_and_b32 v{dst}, s{sMask}, v{dst}")
    def spin_timeout(lbl_retry):
        d = a.u("L_to")
        a(f"s_cmp_eq_u32 s{sSpin}, 0")
        a(f"s_cbranch_scc1 {d}")
        a(f"s_sub_u32 s{sSpin}, s{sSpin}, 1")
        a(f"s_branch {lbl_retry}")
        a.label(d)
    def lds_arrive(k, vaddr, vone):
        a("s_mov_b64 exec, 1")
        a(f"ds_add_u32 v{vaddr}, v{vone} offset:{4*k}")
        a("s_mov_b64 exec, -1")
    def lds_wait(k, target, vaddr, vtmp, stmp, sleep=1):
        l = a.u("L_lw")
        ok = a.u("L_lwok")
        a.label(l)
        a(f"ds_read_b32 v{vtmp}, v{vaddr} offset:{4*k}")
        a("s_waitcnt lgkmcnt(0)")
        a(f"v_readfirstlane_b32 s{stmp}, v{vtmp}")
        a("s_nop 1")
        a(f"s_cmp_ge_u32 s{stmp}, {target}")
        a(f"s_cbranch_scc1 {ok}")
        if sleep:
            a(f"s_sleep {sleep}")
        spin_timeout(l)
        a.label(ok)
    def srd(base, sptr, nrec):
        a(f"s_mov_b32 s{base}, s{sptr}")
        a(f"s_mov_b32 s{base+1}, s{sptr+1}")
        a(f"s_mov_b32 s{base+2}, {nrec}")
        a(f"s_mov_b32 s{base+3}, 0x20000")
    def sentinel_check(regs, vtmp):
        regs = list(regs)
        a(f"v_max3_u32 v{vtmp}, v{regs[0]}, v{regs[1]}, v{regs[2]}")
        i = 3
        while i + 1 < len(regs):
            a(f"v_max3_u32 v{vtmp}, v{vtmp}, v{regs[i]}, v{regs[i+1]}")
            i += 2
        if i < len(regs):
            a(f"v_max_u32 v{vtmp}, v{vtmp}, v{regs[i]}")
        a(f"v_cmp_eq_u32 vcc, -1, v{vtmp}")
        a("s_nop 4")

    vLane = 1
    a("s_cmp_ge_u32 s2, 256")
    a("s_cbranch_scc1 L_end")
    a("s_load_dwordx16 s[16:31], s[0:1], 0")
    a("s_load_dwordx8 s[32:39], s[0:1], 64")
    a("s_load_dwordx2 s[40:41], s[0:1], 96")
    stamp(0)
    a("v_lshrrev_b32 v2, 6, v0")
    a(f"v_and_b32 v{vLane}, 63, v0")
    a(f"v_readfirstlane_b32 s{sWave}, v2")
    a(f"s_lshr_b32 s{sH}, s2, 3")
    a(f"s_and_b32 s{sG}, s2, 7")
    a(f"s_mov_b32 s{sMask}, 0xffff0000")
    a(f"s_mov_b32 s{sC}, 0x{(LOG2E if mimic else C_SCALE):08x}")
    if mimic:
        a(f"s_mov_b32 s82, 0x{SCALE_ONLY:08x}")
    a(f"s_mov_b32 s{sSpin}, {spin_cap}")
    a(f"v_lshlrev_b32 v3, 2, v{vLane}")
    a("v_mov_b32 v4, 0")
    a(f"s_cmp_eq_u32 s{sWave}, 4")
    a("s_cbranch_scc0 L_nosyinit")
    a(f"ds_write_b32 v3, v4 offset:{L_SYNC}")
    a.label("L_nosyinit")
    a("s_waitcnt lgkmcnt(0)")
    a("s_barrier")
    sstamp(1)
    a(f"s_cmp_lt_u32 s{sWave}, 4")
    a("s_cbranch_scc1 L_swave")

    vL16, vL4, vXo, vXo2, vSy, vOne = 2, 3, 4, 5, 6, 7
    vXr = 8
    vE = 16
    vW = 32
    vXN = 64
    vAcc = 144
    vU = 152
    vWO = 172
    vBo = 204
    vL2 = 205
    vW2 = 208
    vY = 224
    if hprio:
        a(f"s_setprio {hprio}")
    a(f"s_sub_u32 s{sHW}, s{sWave}, 4")
    a(f"v_lshlrev_b32 v{vL16}, 4, v{vLane}")
    a(f"s_mul_i32 s{sT0}, s{sHW}, 1280")
    a(f"v_add_u32 v{vXo}, s{sT0}, v{vL16}")
    a(f"v_add_u32 v{vXo2}, s{sT0}, v{vL4}")
    a(f"global_load_dwordx4 {V(vXr,4)}, v{vXo}, {P2(sX)}")
    a(f"global_load_dword v{vXr+4}, v{vXo2}, {P2(sX)} offset:1024")
    a(f"s_mul_i32 s{sT1}, s{sG}, 80")
    a(f"s_mul_i32 s{sT2}, s{sHW}, 20")
    a(f"s_add_u32 s{sStatic}, s{sT1}, s{sT2}")
    a(f"s_lshl_b32 s{sOff}, s{sStatic}, 13")
    a(f"s_lshl_b32 s{sT2}, s{sH}, 8")
    a(f"s_add_u32 s{sOff}, s{sOff}, s{sT2}")
    srd(SRD_A, sWQ, 640 * 8192)
    for i in range(20):
        a(f"buffer_load_dword v{vW+i}, v{vL4}, {P4(SRD_A)}, s{sOff} offen {pol}")
        if i < 19:
            a(f"s_add_u32 s{sOff}, s{sOff}, 8192")
    sstamp(2)
    a(f"v_lshlrev_b32 v{vU}, 3, v{vLane}")
    a(f"s_lshl_b32 s{sIdx}, s2, 13")
    a(f"s_add_u32 s{sIdx}, s{sIdx}, {WS_OB}")
    a(f"s_lshl_b32 s{sHeadW}, s{sH}, 16")
    a(f"s_add_u32 s{sHeadW}, s{sHeadW}, {WS_OB}")
    a(f"s_lshl_b32 s{sT2}, s{sHW}, 9")
    a(f"s_add_u32 s{sT2}, s{sT2}, s{sIdx}")
    a(f"v_add_u32 v{vU+2}, s{sT2}, v{vU}")
    a(f"v_mov_b32 v{vSy}, {L_SYNC}")
    a(f"v_mov_b32 v{vOne}, 1")
    a("s_waitcnt vmcnt(20)")
    sstamp(3)
    for j in range(5):
        a(f"v_lshlrev_b32 v{vE+2*j}, 16, v{vXr+j}")
        a(f"v_and_b32 v{vE+2*j+1}, s{sMask}, v{vXr+j}")
    vt, vs, vMean, vR = vU + 10, vU + 12, vU + 13, vU + 14
    a(f"v_add_f32 v{vs}, v{vE}, v{vE+1}")
    for j in range(2, 10):
        a(f"v_add_f32 v{vs}, v{vs}, v{vE+j}")
    wave_sum_to_sgpr(vs, sT0)
    a("s_nop 1")
    a(f"v_mov_b32 v{vMean}, s{sT0}")
    a(f"v_mul_f32 v{vMean}, 0x{INV640:08x}, v{vMean}")
    a(f"v_sub_f32 v{vt}, v{vE}, v{vMean}")
    a(f"v_mul_f32 v{vs}, v{vt}, v{vt}")
    for j in range(1, 10):
        a(f"v_sub_f32 v{vt}, v{vE+j}, v{vMean}")
        a(f"v_fmac_f32 v{vs}, v{vt}, v{vt}")
    wave_sum_to_sgpr(vs, sT0)
    a("s_nop 1")
    a(f"v_mov_b32 v{vR}, s{sT0}")
    a(f"v_mul_f32 v{vR}, 0x{INV640:08x}, v{vR}")
    rnd_bf16(vR, vR)
    a(f"v_add_f32 v{vR}, 0x{EPS:08x}, v{vR}")
    rnd_bf16(vR, vR)
    a(f"v_sqrt_f32 v{vR}, v{vR}")
    a("s_nop 0")
    rnd_bf16(vR, vR)
    a(f"v_rcp_f32 v{vR}, v{vR}")
    rnd_bf16(vMean, vMean)
    for j in range(10):
        a(f"v_sub_f32 v{vE+j}, v{vE+j}, v{vMean}")
    for j in range(0, 10, 2):
        a(f"v_cvt_pk_bf16_f32 v{vt}, v{vE+j}, v{vE+j+1}")
        a(f"v_lshlrev_b32 v{vE+j}, 16, v{vt}")
        a(f"v_and_b32 v{vE+j+1}, s{sMask}, v{vt}")
    for j in range(10):
        a(f"v_mul_f32 v{vE+j}, v{vE+j}, v{vR}")
    for j in range(0, 10, 2):
        a(f"v_cvt_pk_bf16_f32 v{vt}, v{vE+j}, v{vE+j+1}")
        a(f"v_lshlrev_b32 v{vE+j}, 16, v{vt}")
        a(f"v_and_b32 v{vE+j+1}, s{sMask}, v{vt}")
    a(f"s_mul_i32 s{sT0}, s{sHW}, 2560")
    a(f"v_lshlrev_b32 v{vt}, 5, v{vLane}")
    a(f"v_add_u32 v{vt}, s{sT0}, v{vt}")
    a(f"v_add_u32 v{vt+1}, s{sT0}, v{vU}")
    a(f"ds_write_b128 v{vt}, {V(vE,4)} offset:{L_XN}")
    a(f"ds_write_b128 v{vt}, {V(vE+4,4)} offset:{L_XN+16}")
    a(f"ds_write_b64 v{vt+1}, {V(vE+8,2)} offset:{L_XN+2048}")
    lds_arrive(1, vSy, vOne)
    sstamp(4)
    a(f"s_lshl_b32 s{sT1}, s{sStatic}, 2")
    a(f"v_mov_b32 v{vt}, s{sT1}")
    for i in range(8):
        a(f"v_mov_b32 v{vAcc+i}, 0")
    lds_wait(1, 4, vSy, vt + 1, sT0)
    stamp(2)
    for b in range(4):
        for k in range(5):
            a(f"ds_read_b128 {V(vXN+b*20+4*k,4)}, v{vt} offset:{L_XN+b*2560+16*k}")
    a("s_waitcnt vmcnt(0) lgkmcnt(0)")
    sstamp(5)
    for i in range(20):
        t = vU + 10 + 2 * (i % 3)
        a(f"v_lshlrev_b32 v{t}, 16, v{vW+i}")
        a(f"v_and_b32 v{t+1}, s{sMask}, v{vW+i}")
        for b in range(4):
            x = vXN + b * 20 + i
            xb = x & ~1
            sel = "op_sel:[0,1,0] op_sel_hi:[1,1,1]" if (x & 1) else "op_sel_hi:[1,0,1]"
            a(f"v_pk_fma_f32 {V(vAcc+2*b,2)}, {V(t,2)}, {V(xb,2)}, {V(vAcc+2*b,2)} {sel}")
    a(f"s_lshl_b32 s{sT0}, s{sHW}, 11")
    a(f"v_add_u32 v{vU+1}, s{sT0}, v{vU}")
    for b in range(4):
        a(f"ds_write_b64 v{vU+1}, {V(vAcc+2*b,2)} offset:{L_QPART+b*512}")
    lds_arrive(2, vSy, vOne)
    a(f"s_lshl_b32 s{sT0}, s{sHW}, 9")
    a(f"v_add_u32 v{vU+1}, s{sT0}, v{vU}")
    lds_wait(2, 4, vSy, vU + 4, sT0)
    for w in range(4):
        a(f"ds_read_b64 {V(vAcc+2*w,2)}, v{vU+1} offset:{L_QPART+w*2048}")
    a("s_waitcnt lgkmcnt(0)")
    a(f"v_pk_add_f32 {V(vAcc,2)}, {V(vAcc,2)}, {V(vAcc+2,2)}")
    a(f"v_pk_add_f32 {V(vAcc+4,2)}, {V(vAcc+4,2)}, {V(vAcc+6,2)}")
    a(f"v_pk_add_f32 {V(vAcc,2)}, {V(vAcc,2)}, {V(vAcc+4,2)}")
    sstamp(6)
    lds_wait(0, 1, vSy, vU + 4, sT0)
    a(f"global_store_dwordx2 v{vU+2}, {V(vAcc,2)}, {P2(sWS)} sc1")
    stamp(3)
    sstamp(7)
    a(f"s_lshl_b32 s{sT2}, s{sHW}, 9")
    a(f"s_add_u32 s{sT2}, s{sT2}, s{sHeadW}")
    vGa = 80
    for g_ in range(8):
        a(f"s_add_u32 s{sT3}, s{sT2}, {g_*8192}")
        a(f"v_add_u32 v{vGa+g_}, s{sT3}, v{vU}")
    a(f"s_cmp_eq_u32 s{sHW}, 0")
    a("s_cbranch_scc0 L_h_b4")
    a(f"s_add_u32 s{sT0}, s{sIdx}, {OB_GO}")
    a(f"v_mov_b32 v{vU+4}, s{sT0}")
    a.label("L_qpoll")
    a(f"global_load_dword v{vU+6}, v{vU+4}, {P2(sWS)} sc1")
    a("s_waitcnt vmcnt(0)")
    a(f"v_readfirstlane_b32 s{sT1}, v{vU+6}")
    a("s_nop 1")
    a(f"s_cmp_eq_u32 s{sT1}, 1")
    a("s_cbranch_scc1 L_qok")
    a(f"s_sleep {qpoll_sleep}")
    spin_timeout("L_qpoll")
    a.label("L_qok")
    lds_arrive(4, vSy, vOne)
    a.label("L_h_b4")
    lds_wait(4, 1, vSy, vU + 4, sT0)
    stamp(4)
    vG = vXN
    a.label("L_qg")
    for g_ in range(8):
        a(f"global_load_dwordx2 {V(vG+2*g_,2)}, v{vGa+g_}, {P2(sWS)} sc1")
    a("s_waitcnt vmcnt(0)")
    sentinel_check(range(vG, vG + 16), vU + 4)
    a("s_cbranch_vccz L_qgok")
    spin_timeout("L_qg")
    a.label("L_qgok")
    for g_ in range(1, 8):
        a(f"v_pk_add_f32 {V(vG,2)}, {V(vG,2)}, {V(vG+2*g_,2)}")
    a(f"v_cvt_pk_bf16_f32 v{vU+4}, v{vG}, v{vG+1}")
    a(f"s_lshl_b32 s{sT0}, s{sHW}, 8")
    a(f"v_add_u32 v{vU+5}, s{sT0}, v{vL4}")
    a(f"ds_write_b32 v{vU+5}, v{vU+4} offset:{L_QB}")
    lds_arrive(5, vSy, vOne)
    stamp(5)
    a("s_branch L_h_post")

    a.label("L_swave")
    NR = 4
    NXR = 8
    NLK = 2 * NL
    NXT = NXR + NLK
    NPRE = NXT + NR
    assert NLK <= NXR
    vOff, vOst, vMl, vQa, vScl = 2, 4, 5, 6, 7
    vQ = 8
    vO = 12
    vM, vL = 20, 21
    vAl, vMn = 22, 23
    vS = 24
    vT = 28
    vTmp, vTk = 36, 38
    vSn = 40
    vSc = [40, 44, 48, 52]
    vTkt = [56, 57, 58, 59]
    vCo, vCo2, vScg = 60, 61, 62
    SRD_C = SRD_A
    SRD_L = SRD_K
    sBq4 = [73, 74, 75, 52]
    sTk4 = [53, 54, 55, 7]
    sVIdx, sNV, sOld = 5, 4, 82 - 1
    sOld = 3
    sMim = 82
    RING = 64
    def rbuf(j): return RING + 16 * j
    def xbuf(x): return RING + 64 + 16 * x
    PH = 4096 * 4
    def ld4(bb):
        for i in range(KL):
            a(f"buffer_load_dwordx4 {V(bb+4*i,4)}, v{vOff}, {P4(SRD_L)}, s{sOff} offen offset:{i*1024} {pol}")
    a(f"v_lshlrev_b32 v{vOff}, 4, v{vLane}")
    a(f"s_cmp_eq_u32 s{sWave}, 0")
    a("s_cbranch_scc0 L_s_nop0")
    a("s_setprio 3")
    for i in range(4):
        a(f"v_mov_b32 v{vSn+i}, -1")
    a(f"s_lshl_b32 s{sT0}, s2, 13")
    a(f"s_add_u32 s{sT0}, s{sT0}, {WS_OB}")
    a(f"v_add_u32 v{vSn+4}, s{sT0}, v{vOff}")
    a(f"v_add_u32 v{vSn+5}, 4096, v{vSn+4}")
    for k in range(OB_FILL):
        a(f"global_store_dwordx4 v{vSn+4+(k>>2)}, {V(vSn,4)}, {P2(sWS)} offset:{(k&3)*1024} sc1")
    a(f"s_lshl_b32 s{sT0}, s{sH}, 8")
    a(f"s_lshl_b32 s{sT1}, s{sG}, 3")
    a(f"s_add_u32 s{sT1}, s{sT1}, s{sT0}")
    a(f"s_add_u32 s{sT1}, s{sT1}, {WS_OPML}")
    a(f"v_lshlrev_b32 v{vSn+6}, 6, v{vLane}")
    a(f"v_add_u32 v{vSn+6}, s{sT1}, v{vSn+6}")
    a(f"s_mul_i32 s{sT2}, s{sH}, {cstride}")
    a(f"s_add_u32 s{sT2}, s{sT2}, {WS_CTR}")
    a(f"v_lshlrev_b32 v{vSn+7}, 7, v{vLane}")
    a(f"v_add_u32 v{vSn+7}, s{sT2}, v{vSn+7}")
    a(f"v_mov_b32 v{vTmp}, 0")
    a("s_mov_b64 exec, 0xf")
    a(f"global_store_dwordx2 v{vSn+6}, {V(vSn,2)}, {P2(sWS)} sc1")
    a("s_mov_b64 exec, 3")
    a(f"s_cmp_eq_u32 s{sG}, 0")
    a("s_cbranch_scc0 L_noctr")
    a(f"global_store_dword v{vSn+7}, v{vTmp}, {P2(sWS)} sc1")
    a.label("L_noctr")
    a("s_mov_b64 exec, 1")
    a(f"s_lshr_b32 s{sT1}, s{sH}, 4")
    a(f"s_lshl_b32 s{sT1}, s{sT1}, 5")
    a(f"s_and_b32 s{sT2}, s{sH}, 15")
    a(f"s_add_u32 s{sT1}, s{sT1}, s{sT2}")
    a(f"s_lshl_b32 s{sT1}, s{sT1}, 2")
    a(f"v_mov_b32 v{vSn+6}, s{sT1}")
    a(f"v_mov_b32 v{vTmp}, 1")
    a(f"v_mov_b32 v{vTk}, {L_SYNC}")
    a("s_waitcnt vmcnt(0)")
    sstamp(3)
    a(f"global_atomic_add v{vSn+7}, v{vSn+6}, v{vTmp}, {P2(sDBG)} sc0")
    a(f"ds_write_b32 v{vTk}, v{vTmp}")
    a("s_waitcnt vmcnt(0)")
    a(f"v_readfirstlane_b32 s{sT0}, v{vSn+7}")
    a("s_mov_b64 exec, -1")
    a("s_nop 0")
    a(f"s_and_b32 s{sT0}, s{sT0}, 7")
    a(f"s_cmp_eq_u32 s{sT0}, 7")
    a("s_cbranch_scc0 L_s_nogo")
    a(f"s_lshl_b32 s{sT1}, s{sH}, 16")
    a(f"s_add_u32 s{sT1}, s{sT1}, {WS_OB+OB_GO}")
    a(f"v_lshlrev_b32 v{vSn+4}, 13, v{vLane}")
    a(f"v_add_u32 v{vSn+4}, s{sT1}, v{vSn+4}")
    a(f"v_mov_b32 v{vTmp}, 1")
    a("s_mov_b64 exec, 0xff")
    a(f"global_store_dword v{vSn+4}, v{vTmp}, {P2(sWS)} sc1")
    a("s_mov_b64 exec, -1")
    a.label("L_s_nogo")
    sstamp(4)
    a("s_setprio 0")
    a.label("L_s_nop0")
    a(f"s_lshl_b32 s{sHeadW}, s{sH}, 21")
    a(f"s_lshr_b32 s{sCur}, s{sG}, 1")
    a(f"s_lshl_b32 s{sT0}, s{sCur}, 26")
    a(f"s_and_b32 s{sT1}, s{sG}, 1")
    a(f"s_lshl_b32 s{sT1}, s{sT1}, 20")
    a(f"s_add_u32 s{sStatic}, s{sHeadW}, s{sT0}")
    a(f"s_add_u32 s{sStatic}, s{sStatic}, s{sT1}")
    a(f"s_lshl_b32 s{sT0}, s{sWave}, 12")
    a(f"s_add_u32 s{sStatic}, s{sStatic}, s{sT0}")
    if stamps and sprof == 3:
        a("v_mov_b32 v63, 0")
        a("v_writelane_b32 v63, s84, 0")
    srd(SRD_L, sK, 0x10000000)
    srd(SRD_C, sWS, 0x100000)
    a(f"v_mov_b32 v{vTk}, {L_SYNC}")
    a(f"s_mul_i32 s{sT0}, s{sH}, {cstride}")
    a(f"s_add_u32 s{sT0}, s{sT0}, {WS_CTR}")
    a(f"v_mov_b32 v{vCo}, s{sT0}")
    a(f"v_add_u32 v{vCo2}, 128, v{vCo}")
    def ost_init():
        for i in range(4):
            a(f"v_mov_b32 v{vT+i}, 0")
        for b in range(4):
            a(f"ds_write_b128 v{vOst}, {V(vT,4)} offset:{b*2048}")
            a(f"ds_write_b128 v{vOst}, {V(vT,4)} offset:{b*2048+16}")
    def s_lds_init():
        a(f"s_mul_i32 s{sT0}, s{sWave}, {L_LPW}")
        a(f"v_lshlrev_b32 v{vOst}, 5, v{vLane}")
        a(f"v_add_u32 v{vOst}, s{sT0}, v{vOst}")
        a(f"v_add_u32 v{vOst}, {L_OST}, v{vOst}")
        a(f"v_lshrrev_b32 v{vMl}, 4, v{vLane}")
        a(f"v_lshlrev_b32 v{vScl}, 4, v{vMl}")
        a(f"s_lshl_b32 s{sT0}, s{sWave}, 12")
        a(f"s_add_u32 s{sT0}, s{sT0}, {L_SCL}")
        a(f"v_add_u32 v{vScl}, s{sT0}, v{vScl}")
        a(f"s_lshl_b32 s{sT0}, s{sWave}, 2")
        a(f"v_add_u32 v{vMl}, s{sT0}, v{vMl}")
        a(f"v_lshlrev_b32 v{vMl}, 3, v{vMl}")
        a(f"v_add_u32 v{vMl}, {L_ML}, v{vMl}")
        a(f"v_and_b32 v{vQa}, 15, v{vLane}")
        a(f"v_lshlrev_b32 v{vQa}, 4, v{vQa}")
        a(f"v_add_u32 v{vQa}, {L_QB}, v{vQa}")
        for i in range(8):
            a(f"v_mov_b32 v{vO+i}, 0")
        a(f"v_mov_b32 v{vM}, 0x{NEG_MAX:08x}")
        a(f"v_mov_b32 v{vL}, 0")
        for b in range(4):
            a(f"ds_write_b64 v{vMl}, {V(vM,2)} offset:{b*128}")
        if NLK == 0:
            ost_init()
    nld = 0
    th_ = min(th, 48)
    a(f"s_mul_i32 s{sT4}, s{sWave}, {L_LPW}")
    a(f"s_add_u32 s{sT4}, s{sT4}, {L_OST}")
    seq = [("x", i) for i in range(NXR)] + [("l", j) for j in range(NLK)] + [("r", j) for j in range(NR)]
    for n_, (kind, bi) in enumerate(seq):
        a(f"s_add_u32 s{sOff}, s{sStatic}, {n_ * CH}")
        if kind == "l":
            a(f"s_add_u32 m0, s{sT4}, {bi*4096}")
        for i in range(KL):
            if nld >= th_:
                a(f"s_waitcnt vmcnt({th_-1})")
            elif kind == "l" and i == 0:
                a("s_nop 0")
            if kind == "l":
                a(f"buffer_load_dwordx4 v{vOff}, {P4(SRD_L)}, s{sOff} offen offset:{i*1024} {pol} lds")
            else:
                bb = xbuf(bi) if kind == "x" else rbuf(bi)
                a(f"buffer_load_dwordx4 {V(bb+4*i,4)}, v{vOff}, {P4(SRD_L)}, s{sOff} offen offset:{i*1024} {pol}")
            nld += 1
            if nld == th_:
                sstamp(2)
    stamp(1)
    sstamp(5)
    s_lds_init()
    lds_wait(5, 4, vTk, vTmp, sT0)
    stamp(2)
    sstamp(6)
    a(f"s_lshl_b32 s{sT0}, s{sCur}, 8")
    a(f"v_add_u32 v{vTmp}, s{sT0}, v{vQa}")
    a(f"ds_read_b128 {V(vQ,4)}, v{vTmp}")
    a(f"s_mov_b32 s{sIdx}, {NPRE}")
    a(f"s_mov_b32 s{sN}, {NXT}")
    a(f"s_mov_b32 s{sNT}, 0")
    a(f"s_mov_b32 s{sVIdx}, 0")
    a(f"s_mov_b32 s{sNV}, 0x7fffffff")
    for j in range(NR):
        a(f"s_mov_b32 s{sBq4[j]}, s{sCur}")
        a(f"s_mov_b32 s{sTk4[j]}, {NXT + j}")
    a(f"s_mov_b32 s{sXc}, 0")
    a(f"s_mov_b32 s{sBn}, s{sCur}")
    sQb = sBn
    sNb, sNtag = sT3, sT2
    a("s_waitcnt lgkmcnt(0)")

    LEAD = ("s_mov_b32 exec_lo, 0x00010001", "s_mov_b32 exec_hi, 0x00010001")
    def qk(bb):
        for j in range(4):
            for i in range(KL):
                k = bb + 4 * i + j
                if j == 0:
                    a(f"v_dot2_f32_bf16 v{vS+i}, v{k}, v{vQ+j}, 0")
                else:
                    a(f"v_dot2_f32_bf16 v{vS+i}, v{k}, v{vQ+j}, v{vS+i}")
    def reduce_scores():
        row_allreduce("v_add_f32", [vS, vS+1, vS+2, vS+3], nop_first=False)
        for rep in range(2):
            if mimic:
                a(f"v_cvt_pk_bf16_f32 v{vT}, v{vS}, v{vS+1}")
                a(f"v_cvt_pk_bf16_f32 v{vT+1}, v{vS+2}, v{vS+3}")
                a(f"v_lshlrev_b32 v{vS}, 16, v{vT}")
                a(f"v_and_b32 v{vS+1}, s{sMask}, v{vT}")
                a(f"v_lshlrev_b32 v{vS+2}, 16, v{vT+1}")
                a(f"v_and_b32 v{vS+3}, s{sMask}, v{vT+1}")
            if rep == 0 and mimic:
                for i in range(4):
                    a(f"v_mul_f32 v{vS+i}, s{sMim}, v{vS+i}")
    def store_scores_static(stag):
        a(f"s_lshl_b32 s{sT0}, s{stag}, 6")
        a(f"v_add_u32 v{vTmp}, s{sT0}, v{vScl}")
        a(LEAD[0]); a(LEAD[1])
        a(f"ds_write_b128 v{vTmp}, {V(vS,4)}")
        a("s_mov_b64 exec, -1")
    def softmax(sb):
        a(f"v_max3_f32 v{vMn}, v{sb}, v{sb+1}, v{sb+2}")
        a(f"v_max_f32 v{vMn}, v{vMn}, v{sb+3}")
        a(f"v_mul_f32 v{vMn}, s{sC}, v{vMn}")
        a(f"v_max_f32 v{vMn}, v{vMn}, v{vM}")
        a(f"v_sub_f32 v{vAl}, v{vM}, v{vMn}")
        for i in range(4):
            a(f"v_fma_f32 v{sb+i}, v{sb+i}, s{sC}, -v{vMn}")
        a(f"v_exp_f32 v{vAl}, v{vAl}")
        for i in range(4):
            a(f"v_exp_f32 v{sb+i}, v{sb+i}")
        a(f"v_mov_b32 v{vM}, v{vMn}")
        a(f"v_fma_f32 v{vL}, v{vL}, v{vAl}, v{sb}")
        a(f"v_add_f32 v{vT}, v{sb+1}, v{sb+2}")
        a(f"v_add_f32 v{vL}, v{vL}, v{sb+3}")
        a(f"v_add_f32 v{vL}, v{vL}, v{vT}")
        for j in range(4):
            a(f"v_pk_mul_f32 {V(vO+2*j,2)}, {V(vO+2*j,2)}, {V(vAl,2)} op_sel_hi:[1,0]")
    def pv(bb, sb):
        for i in range(KL):
            p = sb + i
            pb = p & ~1
            sel = "op_sel:[0,1,0] op_sel_hi:[1,1,1]" if (p & 1) else "op_sel_hi:[1,0,1]"
            for j in range(4):
                v = bb + 4 * i + j
                t = vT + 2 * j
                a(f"v_lshlrev_b32 v{t}, 16, v{v}")
                a(f"v_and_b32 v{t+1}, s{sMask}, v{v}")
            for j in range(4):
                t = vT + 2 * j
                a(f"v_pk_fma_f32 {V(vO+2*j,2)}, {V(t,2)}, {V(pb,2)}, {V(vO+2*j,2)} {sel}")
    WAITN = (NR - 1) * KL
    sTyp = 8
    def set_srd(ptr):
        a(f"s_mov_b32 s{SRD_L}, s{ptr}")
        a(f"s_mov_b32 s{SRD_L+1}, s{ptr+1}")
    PP = 4 * P
    MAGIC = -(-65536 // PP) if PP else 0
    for t_ in range(D):
        assert (t_ * MAGIC) >> 16 == t_ // PP, (t_, PP)
    def decode_ticket(st):
        a(f"s_mul_i32 s{sT0}, s{st}, {MAGIC}")
        a(f"s_lshr_b32 s{sT0}, s{sT0}, 16")
        a(f"s_mul_i32 s{sOff}, s{sT0}, {PP}")
        a(f"s_sub_u32 s{sOff}, s{st}, s{sOff}")
        a(f"s_lshl_b32 s{sOff}, s{sOff}, 12")
        a(f"s_add_u32 s{sOff}, s{sOff}, {S*CH}")
        a(f"s_add_u32 s{sOff}, s{sOff}, s{sHeadW}")
        a(f"s_lshr_b32 s{sNb}, s{sT0}, 1")
        a(f"s_and_b32 s{sT0}, s{sT0}, 1")
        a(f"s_lshl_b32 s{sT0}, s{sT0}, 20")
        a(f"s_add_u32 s{sOff}, s{sOff}, s{sT0}")
        a(f"s_lshl_b32 s{sT0}, s{sNb}, 26")
        a(f"s_add_u32 s{sOff}, s{sOff}, s{sT0}")
    def issue_v_static(j):
        a(f"s_mul_i32 s{sOff}, s{sVIdx}, {CH}")
        a(f"s_add_u32 s{sOff}, s{sOff}, s{sStatic}")
        a(f"s_lshl_b32 s{sT0}, s{sVIdx}, 6")
        a(f"v_add_u32 v{vTmp}, s{sT0}, v{vScl}")
        a(f"ds_read_b128 {V(vSc[j],4)}, v{vTmp}")
        a(f"s_lshr_b32 s{sNb}, s{sG}, 1")
        a(f"s_add_u32 s{sVIdx}, s{sVIdx}, 1")
    def progstamp(tag):
        if stamps and sprof == 3:
            a(f"s_and_b32 s{sT0}, s{sN}, 7")
            a(f"s_cbranch_scc1 L_nops_{tag}")
            a(f"s_memrealtime s[84:85]")
            a(f"s_lshr_b32 m0, s{sN}, 3")
            a("s_waitcnt lgkmcnt(0)")
            a(f"v_writelane_b32 v63, s84, m0")
            a.label(f"L_nops_{tag}")
    sDOff, sDB, sDVal = 9, 10, 11
    def request_ticket(j):
        a(f"v_mov_b32 v{vTkt[j]}, 1")
        a("s_mov_b64 exec, 1")
        a(f"buffer_atomic_add v{vTkt[j]}, v{vCo}, {P4(SRD_C)}, 0 offen sc0")
        a("s_mov_b64 exec, -1")
    def next_dyn(j, tag):
        if j % 2 == 0:
            set_srd(sK)
            a(f"s_mov_b32 s{sNtag}, 0")
            a(f"s_mov_b32 s{sDVal}, 0")
            a(f"s_cmp_lg_u32 s{sNT}, 0")
            a(f"s_cbranch_scc1 L_nx_{tag}")
            a(f"v_readfirstlane_b32 s{sT1}, v{vTkt[j]}")
            a("s_nop 1")
            a(f"s_cmp_lt_u32 s{sT1}, {D}")
            a(f"s_cbranch_scc0 L_ne_{tag}")
            decode_ticket(sT1)
            a(f"s_mov_b32 s{sDOff}, s{sOff}")
            a(f"s_mov_b32 s{sDB}, s{sNb}")
            a(f"s_mov_b32 s{sDVal}, 1")
            a(f"s_mov_b32 s{sNtag}, 1")
            request_ticket(j)
            a(f"s_branch L_nd_{tag}")
            a.label(f"L_ne_{tag}")
            a(f"s_mov_b32 s{sNT}, 1")
            a.label(f"L_nx_{tag}")
            a(f"s_mov_b32 s{sOff}, 0x7ff00000")
            a(f"s_mov_b32 s{sNb}, s{sCur}")
            a.label(f"L_nd_{tag}")
        else:
            set_srd(sV)
            a(f"s_mov_b32 s{sNtag}, s{sDVal}")
            a(f"s_mov_b32 s{sNb}, s{sDB}")
            a(f"s_cmp_eq_u32 s{sDVal}, 1")
            a(f"s_cselect_b32 s{sOff}, s{sDOff}, 0x7ff00000")

    def kbody(j):
        tag = f"K{j}"
        bb = rbuf(j)
        a(f"s_cmp_lt_u32 s{sXc}, {NXT}")
        a(f"s_cbranch_scc1 L_x{tag}")
        a.label(f"L_x{tag}_ret")
        a(f"s_waitcnt vmcnt({WAITN})")
        qk(bb)
        a(f"s_cmp_lt_u32 s{sIdx}, {S}")
        a(f"s_cbranch_scc0 L_kd_{tag}")
        a(f"s_mul_i32 s{sOff}, s{sIdx}, {CH}")
        a(f"s_add_u32 s{sOff}, s{sOff}, s{sStatic}")
        a(f"s_add_u32 s{sIdx}, s{sIdx}, 1")
        a.label(f"L_kld_{tag}")
        ld4(bb)
        reduce_scores()
        store_scores_static(sN)
        a(f"s_add_u32 s{sN}, s{sN}, 1")
        progstamp(tag)
        a(f"s_cmp_ge_u32 s{sN}, {S}")
        a(f"s_cbranch_scc1 L_V{(j+1)%NR}_entry")
    def kbody_ool(j):
        tag = f"K{j}"
        a.label(f"L_kd_{tag}")
        set_srd(sV)
        issue_v_static(j)
        a(f"s_branch L_kld_{tag}")
        a.label(f"L_x{tag}")
        a(f"s_add_u32 s{sXc}, s{sXc}, 1")
        a(f"s_call_b64 {P2(sRet)}, L_xbody")
        a(f"s_branch L_x{tag}_ret")
    def vbody(j):
        tag = f"V{j}"
        bb = rbuf(j)
        a.label(f"L_V{j}_entry")
        a(f"s_waitcnt vmcnt({WAITN}) lgkmcnt(0)")
        softmax(vSc[j])
        pv(bb, vSc[j])
        a(f"s_cmp_lt_u32 s{sVIdx}, {S}")
        a(f"s_cbranch_scc0 L_vd_{tag}")
        issue_v_static(j)
        if dyn and j % 2 == 0:
            a(f"s_cmp_le_u32 s{sVIdx}, {S-NR}")
            a(f"s_cbranch_scc1 L_vld_{tag}")
            request_ticket(j)
        a.label(f"L_vld_{tag}")
        ld4(bb)
        a(f"s_add_u32 s{sN}, s{sN}, 1")
        progstamp(tag)
        a(f"s_cmp_ge_u32 s{sN}, {2*S}")
        a(f"s_cbranch_scc1 {'L_D%d_entry' % ((j+1)%NR) if dyn else 'L_sfin'}")
    def vbody_ool(j):
        tag = f"V{j}"
        a.label(f"L_vd_{tag}")
        if dyn:
            next_dyn(j, tag)
            a(f"s_mov_b32 s{sBq4[j]}, s{sNb}")
            a(f"s_mov_b32 s{sTk4[j]}, s{sNtag}")
        else:
            a(f"s_mov_b32 s{sOff}, 0x7ff00000")
        a(f"s_branch L_vld_{tag}")
    def dbody(j):
        tag = f"D{j}"
        bb = rbuf(j)
        a.label(f"L_D{j}_entry")
        a(f"s_cmp_eq_u32 s{sTk4[j]}, 0")
        a(f"s_cbranch_scc1 L_dinv_{tag}")
        if j % 2 == 0:
            a(f"s_cmp_eq_u32 s{sBq4[j]}, s{sQb}")
            a(f"s_cbranch_scc1 L_nq_{tag}")
            a(f"s_mov_b32 s{sQb}, s{sBq4[j]}")
            a(f"s_lshl_b32 s{sT0}, s{sQb}, 8")
            a(f"v_add_u32 v{vTmp}, s{sT0}, v{vQa}")
            a(f"ds_read_b128 {V(vQ,4)}, v{vTmp}")
            a("s_waitcnt lgkmcnt(0)")
            a.label(f"L_nq_{tag}")
            a(f"s_waitcnt vmcnt({WAITN})")
            qk(bb)
            next_dyn(j, tag)
            ld4(bb)
            reduce_scores()
        else:
            a(f"s_cmp_eq_u32 s{sBq4[j]}, s{sCur}")
            a(f"s_cbranch_scc1 L_nosw_{tag}")
            a(f"s_mov_b32 s{sSw}, s{sBq4[j]}")
            a(f"s_call_b64 {P2(sRet)}, L_switch")
            a.label(f"L_nosw_{tag}")
            softmax(vS)
            a(f"s_waitcnt vmcnt({WAITN})")
            pv(bb, vS)
            next_dyn(j, tag)
            ld4(bb)
        a(f"s_mov_b32 s{sBq4[j]}, s{sNb}")
        a(f"s_mov_b32 s{sTk4[j]}, s{sNtag}")
        a(f"s_add_u32 s{sN}, s{sN}, 1")
        progstamp(tag)
        if j == NR - 1:
            a("s_branch L_D0_entry")
    def dbody_ool(j):
        tag = f"D{j}"
        a.label(f"L_dinv_{tag}")
        a("s_branch L_sfin")

    sSw = 12
    a.label("L_kloop")
    for j in range(NR):
        kbody(j)
    a("s_branch L_kloop")
    a.label("L_vloop")
    for j in range(NR):
        vbody(j)
    a("s_branch L_vloop")
    if dyn:
        for j in range(NR):
            dbody(j)
        for j in range(NR):
            dbody_ool(j)
    for j in range(NR):
        kbody_ool(j)
    for j in range(NR):
        vbody_ool(j)
    a.label("L_xbody")
    a(f"s_sub_u32 s{sOld}, s{sXc}, 1")
    if NLK:
        a(f"s_cmp_le_u32 s{sXc}, {NXR}")
        a("s_cbranch_scc1 L_xreg")
        a(f"s_sub_u32 s{sT1}, s{sXc}, {NXR+1}")
        a(f"s_mul_i32 s{sT0}, s{sWave}, {L_LPW}")
        a(f"s_lshl_b32 s{sT2}, s{sT1}, 12")
        a(f"s_add_u32 s{sT0}, s{sT0}, s{sT2}")
        a(f"s_add_u32 s{sT0}, s{sT0}, {L_OST}")
        a(f"v_add_u32 v{vTmp}, s{sT0}, v{vOff}")
        for i in range(4):
            a(f"ds_read_b128 {V(xbuf(0)+4*i,4)}, v{vTmp} offset:{i*1024}")
        a("s_waitcnt lgkmcnt(0)")
        a(f"s_cmp_eq_u32 s{sXc}, {NXT}")
        a("s_cbranch_scc0 L_xb0")
        ost_init()
        a("s_branch L_xb0")
        a.label("L_xreg")
    for x in range(NXR):
        if x < NXR - 1:
            a(f"s_cmp_eq_u32 s{sXc}, {x+1}")
            a(f"s_cbranch_scc0 L_xn{x}")
        a.label(f"L_xb{x}")
        qk(xbuf(x))
        a("s_nop 2")
        reduce_scores()
        store_scores_static(sOld)
        a(f"s_setpc_b64 {P2(sRet)}")
        if x < NXR - 1:
            a.label(f"L_xn{x}")
    def save_state():
        a(f"s_lshl_b32 s{sT0}, s{sCur}, 11")
        a(f"v_add_u32 v{vTmp}, s{sT0}, v{vOst}")
        a(f"ds_write_b128 v{vTmp}, {V(vO,4)}")
        a(f"ds_write_b128 v{vTmp}, {V(vO+4,4)} offset:16")
        a(f"s_lshl_b32 s{sT0}, s{sCur}, 7")
        a(f"v_add_u32 v{vTmp+1}, s{sT0}, v{vMl}")
        a(f"ds_write_b64 v{vTmp+1}, {V(vM,2)}")
    a.label("L_switch")
    save_state()
    a(f"s_mov_b32 s{sCur}, s{sSw}")
    a(f"s_lshl_b32 s{sT0}, s{sCur}, 11")
    a(f"v_add_u32 v{vTmp}, s{sT0}, v{vOst}")
    a(f"ds_read_b128 {V(vO,4)}, v{vTmp}")
    a(f"ds_read_b128 {V(vO+4,4)}, v{vTmp} offset:16")
    a(f"s_lshl_b32 s{sT0}, s{sCur}, 7")
    a(f"v_add_u32 v{vTmp+1}, s{sT0}, v{vMl}")
    a(f"ds_read_b64 {V(vM,2)}, v{vTmp+1}")
    a("s_waitcnt lgkmcnt(0)")
    a(f"s_setpc_b64 {P2(sRet)}")

    a.label("L_sfin")
    if stamps and sprof == 3:
        a(f"s_lshl_b32 s{sT0}, s2, 2")
        a(f"s_add_u32 s{sT0}, s{sT0}, s{sWave}")
        a(f"s_lshl_b32 s{sT0}, s{sT0}, 8")
        a(f"s_add_u32 s{sT0}, s{sT0}, {WS_STAMP+0x40000}")
        a(f"v_lshlrev_b32 v39, 2, v{vLane}")
        a(f"v_add_u32 v39, s{sT0}, v39")
        a(f"global_store_dword v39, v63, {P2(sWS)}")
    stamp(3)
    save_state()
    a("s_waitcnt lgkmcnt(0)")
    a("s_barrier")
    stamp(6)
    tstamp(1)
    a(f"s_cmp_lt_u32 s{sH}, 4")
    a("s_cbranch_scc0 L_fin_stamp")
    a(f"s_cmp_lt_u32 s{sG}, 5")
    a("s_cbranch_scc0 L_fin_stamp")
    a("s_branch L_final_pre")

    a.label("L_h_post")
    a(f"v_lshlrev_b32 v{vL2}, 1, v{vLane}")
    if skippost:
        a("s_branch L_h_tailprep")
    a(f"s_cmp_lt_u32 s{sG}, 5")
    a("s_cbranch_scc0 L_h_notile")
    vTo = 8
    a(f"v_lshrrev_b32 v{vTo}, 4, v{vLane}")
    a(f"v_mul_u32_u24 v{vTo}, 1280, v{vTo}")
    a(f"v_and_b32 v{vTo+1}, 15, v{vLane}")
    a(f"v_lshlrev_b32 v{vTo+1}, 4, v{vTo+1}")
    a(f"v_add_u32 v{vTo}, v{vTo}, v{vTo+1}")
    srd(SRD_A, sWO, 4096 * 1280)
    srd(SRD_B, sW2, 1728 * 1280)
    a(f"s_lshl_b32 s{sT0}, s{sH}, 7")
    a(f"s_lshl_b32 s{sT1}, s{sHW}, 5")
    a(f"s_add_u32 s{sT0}, s{sT0}, s{sT1}")
    a(f"s_mul_i32 s{sT0}, s{sT0}, 1280")
    a(f"s_lshl_b32 s{sT1}, s{sG}, 8")
    a(f"s_add_u32 s{sT0}, s{sT0}, s{sT1}")
    a(f"s_lshl_b32 s{sT2}, s{sHW}, 13")
    a(f"s_add_u32 s{sT2}, s{sT2}, {L_WT}")
    for i in range(8):
        a(f"s_add_u32 m0, s{sT2}, {i*1024}")
        a(f"s_nop 0")
        a(f"buffer_load_dwordx4 v{vTo}, {P4(SRD_A)}, s{sT0} offen {pol} lds")
        a(f"s_add_u32 s{sT0}, s{sT0}, {4*1280}")
    a(f"s_lshl_b32 s{sT0}, s{sH}, 6")
    a(f"s_lshl_b32 s{sT3}, s{sHW}, 4")
    a(f"s_add_u32 s{sT0}, s{sT0}, s{sT3}")
    a(f"s_mul_i32 s{sT0}, s{sT0}, 1280")
    a(f"s_add_u32 s{sT0}, s{sT0}, s{sT1}")
    a(f"s_lshl_b32 s{sT2}, s{sHW}, 12")
    a(f"s_add_u32 s{sT2}, s{sT2}, {L_W2T}")
    for i in range(4):
        a(f"s_add_u32 m0, s{sT2}, {i*1024}")
        a(f"s_nop 0")
        a(f"buffer_load_dwordx4 v{vTo}, {P4(SRD_B)}, s{sT0} offen {pol} lds")
        a(f"s_add_u32 s{sT0}, s{sT0}, {4*1280}")
    a("s_waitcnt vmcnt(0)")
    lds_arrive(6, vSy, vOne)
    a(f"v_lshrrev_b32 v{vU}, 4, v{vLane}")
    a(f"v_lshlrev_b32 v{vBo}, 11, v{vU}")
    a(f"v_and_b32 v{vU+1}, 15, v{vLane}")
    a(f"v_lshlrev_b32 v{vU+1}, 1, v{vU+1}")
    a(f"v_add_u32 v{vBo}, v{vBo}, v{vU+1}")
    a(f"s_lshl_b32 s{sT1}, s{sHW}, 6")
    a(f"v_add_u32 v{vBo}, s{sT1}, v{vBo}")
    def build_btile(dst, ldsoff, nsteps, tmp):
        for s in range(nsteps):
            for j in range(8):
                a(f"ds_read_u16 v{tmp+8*s+j}, v{vBo} offset:{ldsoff + (32*s+j)*256}")
            a("s_waitcnt lgkmcnt(0)")
            for j2 in range(4):
                a(f"v_lshl_or_b32 v{dst+4*s+j2}, v{tmp+8*s+2*j2+1}, 16, v{tmp+8*s+2*j2}")
    lds_wait(6, 4, vSy, vU + 4, sT0)
    for tt in range(2):
        build_btile(vWO + 16 * tt, L_WT + tt * 32, 4, 64)
    for tt in range(2):
        build_btile(vW2 + 8 * tt, L_W2T + tt * 32, 2, 64)
    a.label("L_h_notile")
    a(f"s_cmp_eq_u32 s{sHW}, 3")
    a("s_cbranch_scc1 L_h3")
    a(f"s_cmp_eq_u32 s{sHW}, 0")
    a("s_cbranch_scc0 L_h_ffn2")
    a(f"s_cmp_lt_u32 s{sH}, 4")
    a("s_cbranch_scc0 L_h_ffn2")
    a.label("L_fflag")
    a(f"global_load_dword v{vU+1}, v{vL4}, {P2(sDBG)} sc1")
    a(f"v_and_b32 v{vU+2}, 16, v{vLane}")
    a(f"v_lshrrev_b32 v{vU+2}, 1, v{vU+2}")
    a("s_waitcnt vmcnt(0)")
    a(f"v_add_u32 v{vU+1}, v{vU+1}, v{vU+2}")
    a(f"v_cmp_gt_u32 vcc, 8, v{vU+1}")
    a("s_nop 4")
    a("s_cbranch_vccz L_h_ffn2")
    a("s_sleep 8")
    spin_timeout("L_fflag")
    a("s_branch L_h_ffn2")

    a.label("L_h3")
    vW1 = 32
    vXq = 112
    vHA = 128
    vHG = 32
    vHa = 112
    if skipffn:
        a("s_branch L_h_tailprep")
    srd(SRD_B, sW1, 640 * 3456)
    a(f"s_mul_i32 s{sOff}, s{sG}, {80*3456}")
    a(f"s_lshl_b32 s{sT0}, s{sH}, 7")
    a(f"s_add_u32 s{sOff}, s{sOff}, s{sT0}")
    a(f"s_cmp_lt_u32 s{sH}, 27")
    a(f"s_cselect_b32 s{sOff}, s{sOff}, 0x7f000000")
    for q4 in range(80 // w1b):
        for i in range(w1b):
            a(f"buffer_load_ushort v{vW1+w1b*q4+i}, v{vL2}, {P4(SRD_B)}, s{sOff} offen {pol}")
            a(f"s_add_u32 s{sOff}, s{sOff}, 3456")
        a("s_waitcnt vmcnt(0)")
    for b in range(4):
        a(f"v_mov_b32 v{vHA+b}, 0")
    a(f"s_mul_i32 s{sT0}, s{sG}, 320")
    a(f"v_mov_b32 v{vU}, s{sT0}")
    for q4 in range(20):
        for b in range(4):
            a(f"ds_read_b128 {V(vXq+4*b,4)}, v{vU} offset:{L_XN+b*2560+16*q4}")
        for r in range(4):
            a(f"v_lshlrev_b32 v{vW1+4*q4+r}, 16, v{vW1+4*q4+r}")
        a("s_waitcnt lgkmcnt(0)")
        for r in range(4):
            for b in range(4):
                a(f"v_fmac_f32 v{vHA+b}, v{vXq+4*b+r}, v{vW1+4*q4+r}")
    a(f"s_add_u32 s{sT0}, s{sIdx}, {OB_HP}")
    a(f"v_add_u32 v{vU+1}, s{sT0}, v{vL4}")
    for b in range(4):
        a(f"global_store_dword v{vU+1}, v{vHA+b}, {P2(sWS)} offset:{b*256} sc1")
    a(f"s_cmp_lt_u32 s{sG}, 5")
    a("s_cbranch_scc0 L_h_tailprep")
    srd(SRD_B, sB1, 1728 * 2)
    a(f"s_lshl_b32 s{sT0}, s{sH}, 7")
    a(f"buffer_load_ushort v{vU+3}, v{vL2}, {P4(SRD_B)}, s{sT0} offen")
    for g_ in range(8):
        a(f"s_add_u32 s{sT0}, s{sHeadW}, {OB_HP+g_*8192}")
        a(f"v_add_u32 v{vHa+g_}, s{sT0}, v{vL4}")
    a(f"v_and_b32 v{vU+5}, 7, v{vLane}")
    a(f"v_lshlrev_b32 v{vU+5}, 13, v{vU+5}")
    a(f"s_add_u32 s{sT0}, s{sHeadW}, {OB_HP+3*256}")
    a(f"v_add_u32 v{vU+5}, s{sT0}, v{vU+5}")
    a("s_mov_b64 exec, 0xff")
    a.label("L_hlp")
    a(f"global_load_dword v{vU+6}, v{vU+5}, {P2(sWS)} sc1")
    a("s_waitcnt vmcnt(0)")
    a(f"v_cmp_eq_u32 vcc, -1, v{vU+6}")
    a("s_nop 4")
    a("s_cbranch_vccz L_hlpok")
    a("s_sleep 32")
    spin_timeout("L_hlp")
    a.label("L_hlpok")
    a("s_mov_b64 exec, -1")
    a.label("L_hg")
    for b in range(4):
        for g_ in range(8):
            a(f"global_load_dword v{vHG+8*b+g_}, v{vHa+g_}, {P2(sWS)} offset:{b*256} sc1")
    a("s_waitcnt vmcnt(0)")
    sentinel_check(range(vHG, vHG + 32), vU + 4)
    a("s_cbranch_vccz L_hgok")
    a("s_sleep 16")
    spin_timeout("L_hg")
    a.label("L_hgok")
    a(f"v_lshlrev_b32 v{vU+3}, 16, v{vU+3}")
    for b in range(4):
        r = vHG + 8 * b
        for g_ in range(1, 8):
            a(f"v_add_f32 v{r}, v{r}, v{r+g_}")
        rnd_bf16(r, r)
        a(f"v_add_f32 v{r}, v{r}, v{vU+3}")
        rnd_bf16(r, r)
        a(f"v_max_f32 v{r}, 0, v{r}")
        a(f"v_mul_f32 v{r}, v{r}, v{r}")
        a(f"v_cvt_pk_bf16_f32 v{r}, v{r}, v{r}")
        a(f"ds_write_b16 v{vL2}, v{r} offset:{L_HB+b*128}")
    lds_arrive(7, vSy, vOne)
    a.label("L_h_ffn2")
    a(f"s_cmp_lt_u32 s{sG}, 5")
    a("s_cbranch_scc0 L_h_tailprep")
    vHAo = 132
    if not skipffn:
        lds_wait(7, 1, vSy, vU + 4, sT0, sleep=32)
    a(f"v_and_b32 v{vU}, 3, v{vLane}")
    a(f"v_lshlrev_b32 v{vU}, 7, v{vU}")
    a(f"v_lshrrev_b32 v{vU+1}, 4, v{vLane}")
    a(f"v_lshlrev_b32 v{vU+1}, 4, v{vU+1}")
    a(f"v_add_u32 v{vU}, v{vU}, v{vU+1}")
    a(f"ds_read_b128 {V(vHAo,4)}, v{vU} offset:{L_HB}")
    a(f"ds_read_b128 {V(vHAo+4,4)}, v{vU} offset:{L_HB+64}")
    for i in range(8):
        a(f"v_mov_b32 v{vY+i}, 0")
    a("s_waitcnt lgkmcnt(0)")
    for s in range(2):
        for tt in range(2):
            a(f"v_mfma_f32_16x16x32_bf16 {V(vY+4*tt,4)}, {V(vHAo+4*s,4)}, {V(vW2+8*tt+4*s,4)}, {V(vY+4*tt,4)}")

    a.label("L_h_tailprep")
    vA0, vA1, vMlA, vPub, vMlP, vMlG, vDbG, vDbO, vOaW, vOaR, vYp = 8, 9, 10, 11, 12, 13, 14, 15, 16, 17, 18
    vGa2 = 20
    vMl2, vC, vLs, vMx = 28, 30, 31, 32
    vOo = 34
    vZ = 38
    vOv = 64
    vGg = 64
    vAo = 96
    a(f"s_lshl_b32 s{sT0}, s{sHW}, 11")
    a(f"s_add_u32 s{sT0}, s{sT0}, {L_OST}")
    a(f"v_lshlrev_b32 v{vZ}, 3, v{vLane}")
    a(f"v_add_u32 v{vA0}, s{sT0}, v{vZ}")
    a(f"v_add_u32 v{vA1}, {2*L_LPW}, v{vA0}")
    a(f"v_and_b32 v{vZ+1}, 15, v{vLane}")
    a(f"v_lshlrev_b32 v{vMlA}, 3, v{vZ+1}")
    a(f"s_lshl_b32 s{sT0}, s{sHW}, 7")
    a(f"v_add_u32 v{vMlA}, s{sT0}, v{vMlA}")
    a(f"s_lshl_b32 s{sT0}, s{sHW}, 9")
    a(f"s_add_u32 s{sT1}, s{sIdx}, s{sT0}")
    a(f"s_add_u32 s{sT1}, s{sT1}, {OB_OP}")
    a(f"v_add_u32 v{vPub}, s{sT1}, v{vZ}")
    a(f"s_add_u32 s{sT1}, s{sHeadW}, s{sT0}")
    for g_ in range(8):
        a(f"s_add_u32 s{sT2}, s{sT1}, {OB_OP+g_*8192}")
        a(f"v_add_u32 v{vGa2+g_}, s{sT2}, v{vZ}")
    a(f"v_and_b32 v{vZ+2}, 7, v{vLane}")
    if mlmode == 0:
        a(f"s_lshl_b32 s{sT0}, s{sH}, 2")
        a(f"s_add_u32 s{sT0}, s{sT0}, s{sHW}")
        a(f"s_lshl_b32 s{sT1}, s{sT0}, 6")
        a(f"s_add_u32 s{sT1}, s{sT1}, {WS_OPML}")
        a(f"s_lshl_b32 s{sT2}, s{sG}, 3")
        a(f"s_add_u32 s{sT2}, s{sT2}, s{sT1}")
        a(f"v_mov_b32 v{vMlP}, s{sT2}")
        a(f"v_lshlrev_b32 v{vMlG}, 3, v{vZ+2}")
        a(f"v_add_u32 v{vMlG}, s{sT1}, v{vMlG}")
    else:
        a(f"s_lshl_b32 s{sT0}, s{sHW}, 3")
        a(f"s_add_u32 s{sT1}, s{sIdx}, s{sT0}")
        a(f"s_add_u32 s{sT1}, s{sT1}, {OB_ML}")
        a(f"v_mov_b32 v{vMlP}, s{sT1}")
        a(f"s_add_u32 s{sT1}, s{sHeadW}, s{sT0}")
        a(f"s_add_u32 s{sT1}, s{sT1}, {OB_ML}")
        a(f"v_lshlrev_b32 v{vMlG}, 13, v{vZ+2}")
        a(f"v_add_u32 v{vMlG}, s{sT1}, v{vMlG}")
    a(f"v_lshlrev_b32 v{vDbG}, 13, v{vZ+2}")
    a(f"s_add_u32 s{sT2}, s{sHeadW}, {OB_DB}")
    a(f"v_add_u32 v{vDbG}, s{sT2}, v{vDbG}")
    a(f"s_add_u32 s{sT2}, s{sIdx}, {OB_DB}")
    a(f"v_mov_b32 v{vDbO}, s{sT2}")
    a(f"s_lshl_b32 s{sT0}, s{sHW}, 8")
    a(f"v_add_u32 v{vOaW}, s{sT0}, v{vL4}")
    a(f"v_and_b32 v{vOaR}, 3, v{vLane}")
    a(f"v_lshlrev_b32 v{vOaR}, 8, v{vOaR}")
    a(f"v_lshrrev_b32 v{vZ+2}, 4, v{vLane}")
    a(f"v_lshlrev_b32 v{vZ+2}, 4, v{vZ+2}")
    a(f"v_add_u32 v{vOaR}, v{vOaR}, v{vZ+2}")
    a(f"v_lshlrev_b32 v{vYp}, 2, v{vZ+1}")
    a(f"s_lshl_b32 s{sT0}, s{sHW}, 7")
    a(f"s_add_u32 s{sT0}, s{sT0}, s{sIdx}")
    a(f"s_add_u32 s{sT0}, s{sT0}, {OB_YP}")
    a(f"v_add_u32 v{vYp}, s{sT0}, v{vYp}")
    a(f"s_mov_b32 s{sSpin}, {spin_cap}")
    stamp(1)
    a("s_waitcnt vmcnt(0) lgkmcnt(0)")
    a("s_barrier")
    stamp(6)
    tstamp(1)
    a(f"ds_read_b64 {V(vMl2,2)}, v{vMlA} offset:{L_ML}")
    for i in range(16):
        w_ = i >> 2
        if i == 14:
            a("s_waitcnt lgkmcnt(14)")
        a(f"ds_read_b64 {V(vOv+2*i,2)}, v{vA0 if w_ < 2 else vA1} offset:{(w_&1)*L_LPW+(i&3)*512}")
    def merge_coef(dup):
        a(f"v_mov_b32 v{vMx}, v{vMl2}")
        row_allreduce("v_max_f32", [vMx])
        a(f"v_sub_f32 v{vC}, v{vMl2}, v{vMx}")
        a(f"v_exp_f32 v{vC}, v{vC}")
        a("s_nop 0")
        a(f"v_mul_f32 v{vLs}, v{vC}, v{vMl2+1}")
        row_allreduce("v_add_f32", [vLs])
        if dup:
            a(f"v_mul_f32 v{vLs}, 0.5, v{vLs}")
    def merge_o(n, base):
        for i in range(4):
            a(f"v_mov_b32 v{vOo+i}, 0")
        for i in range(n):
            for e in range(2):
                a(f"v_fmac_f32_dpp v{vOo+2*(i&1)+e}, v{vC}, v{base+2*i+e} row_newbcast:{i} {DPPM}")
        a(f"v_pk_add_f32 {V(vOo,2)}, {V(vOo,2)}, {V(vOo+2,2)}")
    merge_coef(False)
    a("s_waitcnt lgkmcnt(0)")
    merge_o(16, vOv)
    a(f"global_store_dwordx2 v{vPub}, {V(vOo,2)}, {P2(sWS)} sc1")
    a(f"v_mov_b32 v{vZ+2}, v{vMx}")
    a(f"v_mov_b32 v{vZ+3}, v{vLs}")
    assert (vZ + 2) % 2 == 0
    a("s_mov_b64 exec, 1")
    a(f"global_store_dwordx2 v{vMlP}, {V(vZ+2,2)}, {P2(sWS)} sc1")
    a("s_mov_b64 exec, -1")
    tstamp(2)
    if stamps and sprof == 2 and ackprof:
        a("s_waitcnt vmcnt(0)")
        tstamp(3)
    a(f"s_cmp_lt_u32 s{sG}, 5")
    a("s_cbranch_scc0 L_fin_stamp")
    a(f"s_mov_b32 s{sT4}, 0xff")
    a(f"s_mov_b32 s{sT0}, 0")
    a.label("L_opoll")
    a(f"global_load_dwordx2 {V(vMl2,2)}, v{vMlG}, {P2(sWS)} sc1")
    for g_ in range(8):
        a(f"s_bitcmp1_b32 s{sT4}, {g_}")
        a(f"s_cbranch_scc0 L_sk{g_}")
        a(f"global_load_dwordx2 {V(vGg+2*g_,2)}, v{vGa2+g_}, {P2(sWS)} sc1")
        a.label(f"L_sk{g_}")
    a("s_waitcnt vmcnt(0)")
    a(f"v_max_u32 v{vZ+2}, v{vMl2}, v{vMl2+1}")
    a(f"v_cmp_eq_u32 vcc, -1, v{vZ+2}")
    a("s_nop 4")
    a(f"s_mov_b32 s{sT1}, s{sT4}")
    a(f"s_and_b32 s{sT4}, vcc_lo, 0xff")
    a("s_cbranch_scc1 L_oretry")
    sentinel_check(list(range(vGg, vGg + 16)), vZ + 2)
    a("s_cbranch_vccz L_ook")
    a(f"s_xor_b32 s{sT0}, s{sT0}, 1")
    a(f"s_cmp_eq_u32 s{sT0}, 1")
    a(f"s_cselect_b32 s{sT4}, s{sT1}, 0xff")
    a.label("L_oretry")
    if resleep:
        a(f"s_sleep {resleep}")
    spin_timeout("L_opoll")
    a.label("L_ook")
    stamp(7)
    tstamp(4)
    merge_coef(True)
    a(f"v_rcp_f32 v{vLs}, v{vLs}")
    merge_o(8, vGg)
    a(f"v_pk_mul_f32 {V(vOo,2)}, {V(vOo,2)}, {V(vLs-1,2)} op_sel:[0,1] op_sel_hi:[1,1]")
    assert (vLs - 1) % 2 == 0
    a(f"v_cvt_pk_bf16_f32 v{vOo}, v{vOo}, v{vOo+1}")
    a(f"ds_write_b32 v{vOaW}, v{vOo} offset:{L_OA}")
    a("s_waitcnt lgkmcnt(0)")
    a("s_barrier")
    tstamp(5)
    for s in range(4):
        a(f"ds_read_b128 {V(vAo+4*s,4)}, v{vOaR} offset:{L_OA+64*s}")
    for s in range(4):
        a(f"s_waitcnt lgkmcnt({3-s})")
        for tt in range(2):
            a(f"v_mfma_f32_16x16x32_bf16 {V(vY+4*tt,4)}, {V(vAo+4*s,4)}, {V(vWO+16*tt+4*s,4)}, {V(vY+4*tt,4)}")
    a("s_mov_b64 exec, 0xffff")
    a("s_nop 7")
    for tt in range(2):
        for b in range(4):
            a(f"global_store_dword v{vYp}, v{vY+4*tt+b}, {P2(sWS)} offset:{b*512+tt*64} sc1")
    a("s_mov_b64 exec, -1")
    tstamp(6)
    a(f"s_cmp_lt_u32 s{sH}, 4")
    a("s_cbranch_scc0 L_fin_stamp")
    a("s_branch L_final")

    a.label("L_final_pre")
    a("s_barrier")
    a.label("L_final")
    vFa, vFx, vF0, vY_ = 2, 4, 8, 30
    vZ2 = 30
    a(f"v_lshrrev_b32 v{vZ2}, 4, v{vLane}")
    a(f"v_lshlrev_b32 v{vZ2}, 2, v{vZ2}")
    a(f"s_lshl_b32 s{sT0}, s{sWave}, 4")
    a(f"v_add_u32 v{vZ2}, s{sT0}, v{vZ2}")
    a(f"v_and_b32 v{vZ2+1}, 15, v{vLane}")
    a(f"v_lshlrev_b32 v{vFa}, 16, v{vZ2+1}")
    a(f"v_lshlrev_b32 v{vZ2+2}, 2, v{vZ2}")
    a(f"v_add_u32 v{vFa}, v{vFa}, v{vZ2+2}")
    a(f"s_lshl_b32 s{sT1}, s{sG}, 13")
    a(f"s_lshl_b32 s{sT0}, s{sH}, 9")
    a(f"s_add_u32 s{sT1}, s{sT1}, s{sT0}")
    a(f"s_add_u32 s{sT1}, s{sT1}, {WS_OB+OB_YP}")
    a(f"v_add_u32 v{vFa}, s{sT1}, v{vFa}")
    a(f"v_add_u32 v{vFa+1}, {16*65536}, v{vFa}")
    a(f"s_lshl_b32 s{sT2}, s{sG}, 7")
    a(f"v_add_u32 v{vZ2}, s{sT2}, v{vZ2}")
    a(f"v_lshlrev_b32 v{vZ2}, 1, v{vZ2}")
    a(f"s_mul_i32 s{sT3}, s{sH}, 1280")
    a(f"v_add_u32 v{vZ2+3}, s{sT3}, v{vZ2}")
    a(f"global_load_dwordx2 {V(vFx,2)}, v{vZ2+3}, {P2(sX)}")
    a(f"global_load_dwordx2 {V(vFx+2,2)}, v{vZ2}, {P2(sB2)}")
    a(f"s_mov_b32 s{sSpin}, {spin_cap}")
    a.label("L_ypoll")
    a(f"global_load_dwordx4 {V(vF0,4)}, v{vFa}, {P2(sWS)} sc1")
    a(f"global_load_dwordx4 {V(vF0+4,4)}, v{vFa+1}, {P2(sWS)} sc1")
    a("s_waitcnt vmcnt(0)")
    sentinel_check(range(vF0, vF0 + 8), vZ2 + 4)
    a("s_cbranch_vccz L_yok")
    spin_timeout("L_ypoll")
    a.label("L_yok")
    tstamp(7)
    for i in range(4):
        a(f"v_add_f32 v{vF0+i}, v{vF0+i}, v{vF0+4+i}")
    row_allreduce("v_add_f32", [vF0, vF0+1, vF0+2, vF0+3])
    for j in range(2):
        a(f"v_lshlrev_b32 v{vZ2+4}, 16, v{vFx+j}")
        a(f"v_and_b32 v{vZ2+5}, s{sMask}, v{vFx+j}")
        a(f"v_add_f32 v{vF0+2*j}, v{vF0+2*j}, v{vZ2+4}")
        a(f"v_add_f32 v{vF0+2*j+1}, v{vF0+2*j+1}, v{vZ2+5}")
        a(f"v_lshlrev_b32 v{vZ2+4}, 16, v{vFx+2+j}")
        a(f"v_and_b32 v{vZ2+5}, s{sMask}, v{vFx+2+j}")
        a(f"v_add_f32 v{vF0+2*j}, v{vF0+2*j}, v{vZ2+4}")
        a(f"v_add_f32 v{vF0+2*j+1}, v{vF0+2*j+1}, v{vZ2+5}")
    a(f"v_cvt_pk_bf16_f32 v{vF0+4}, v{vF0}, v{vF0+1}")
    a(f"v_cvt_pk_bf16_f32 v{vF0+5}, v{vF0+2}, v{vF0+3}")
    a("s_mov_b32 exec_lo, 0x00010001")
    a("s_mov_b32 exec_hi, 0x00010001")
    a(f"global_store_dwordx2 v{vZ2+3}, {V(vF0+4,2)}, {P2(sOUT)}")
    a("s_mov_b64 exec, -1")
    a.label("L_fin_stamp")
    if stamps:
        a("s_memrealtime s[4:5]")
        a("s_waitcnt lgkmcnt(0)")
        a(f"s_lshl_b32 s{sT0}, s2, 3")
        a(f"s_add_u32 s{sT0}, s{sT0}, s{sWave}")
        a(f"s_lshl_b32 s{sT0}, s{sT0}, 6")
        a(f"s_add_u32 s{sT0}, s{sT0}, {WS_STAMP}")
        a(f"v_mov_b32 v2, s{sT0}")
        for i in range(8):
            a(f"v_mov_b32 v{8+i}, s{STAMP0+2*i}")
        a("v_mov_b32 v16, s4")
        a("s_getreg_b32 s6, hwreg(HW_REG_XCC_ID)")
        a("v_mov_b32 v17, s6")
        a(f"v_mov_b32 v18, s{sN}")
        a("v_mov_b32 v19, 0")
        a("s_mov_b64 exec, 1")
        a(f"global_store_dwordx4 v2, v[8:11], {P2(sWS)}")
        a(f"global_store_dwordx4 v2, v[12:15], {P2(sWS)} offset:16")
        a(f"global_store_dwordx4 v2, v[16:19], {P2(sWS)} offset:32")
    a.label("L_end")
    a("s_endpgm")
    a.raw('.section .rodata,"a"')
    a.raw(".p2align 6")
    a.raw(f".amdhsa_kernel {KNAME}")
    a.raw("  .amdhsa_next_free_vgpr 256")
    a.raw("  .amdhsa_next_free_sgpr 102")
    a.raw("  .amdhsa_accum_offset 256")
    a.raw("  .amdhsa_group_segment_fixed_size 0")
    a.raw("  .amdhsa_kernarg_size 104")
    a.raw("  .amdhsa_user_sgpr_count 2")
    a.raw("  .amdhsa_user_sgpr_kernarg_segment_ptr 1")
    a.raw("  .amdhsa_system_sgpr_workgroup_id_x 1")
    a.raw(".end_amdhsa_kernel")
    return "\n".join(x for x in a.L if x is not None) + "\n"

if __name__ == "__main__":
    import argparse, ast
    ap = argparse.ArgumentParser()
    ap.add_argument("-o", default="k.s")
    ap.add_argument("kv", nargs="*")
    args = ap.parse_args()
    kw = {}
    for x in args.kv:
        k, v = x.split("=")
        try: v = ast.literal_eval(v)
        except Exception: pass
        kw[k] = v
    open(args.o, "w").write(gen(**kw))
```

```python
import struct, math

KNAME = "parallel_sum__gqa_block_cached__dense_activation_squared_relu__decode_kernel"

WS_CTR = 0x20000
WS_OPML = 0x10000
WS_OB = 0x100000
OB_QP, OB_OP, OB_HP, OB_YP, OB_DB, OB_GO, OB_ML = 0, 2048, 4096, 5120, 7168, 7296, 7424
OB_FILL = 8
WS_STAMP = 0x300000
WS_SC = 0x400000
L_XN = 0
L_QPART = 10240
L_QB = 18432
L_HB = 19456
L_OA = 19968
L_SYNC = 20992
L_ML = 21248
L_WT = 22528
L_W2T = 55296
L_SCL = 71680
L_OST = 71680 + 16384

NEG_MAX = 0xFF7FFFFF
def f2u(x): return struct.unpack("<I", struct.pack("<f", x))[0]
C_SCALE = f2u((128 ** -0.5) * math.log2(math.e))
SCALE_ONLY = f2u(128 ** -0.5)
LOG2E = f2u(math.log2(math.e))
INV640 = f2u(1.0 / 640.0)
EPS = f2u(1e-5)

DOC = """
Fused LayerNorm + decode attention (B=4, H=32, Sk=8192, Dh=128) + squared-ReLU FFN + residual.
One workgroup per CU: wg = 8*h + g.  The 8 workgroups of head h share its 4 x 8192 keys.
Waves 0-3 stream K/V (nt loads, flash-decoding partials per 16-lane row): first K of the static
key range (scores kept in LDS), then V of that range, then ticket-balanced chunks (atomic counter).
Waves 4-7: LayerNorm, K-split q projection (partials exchanged through the workspace), FFN,
output-projection tile (MFMA) and the final reduction over heads.
Cross-workgroup hand-offs: write-through stores into slots pre-filled with a sentinel by their
owner; a per-head arrival counter in d_debug orders the fill before any read.
"""

class Asm:
    def __init__(self):
        self.L = []
        self.uid = 0
    def __call__(self, s):
        self.L.append("  " + s)
    def label(self, s):
        self.L.append(s + ":")
    def u(self, base):
        self.uid += 1
        return f"{base}_{self.uid}"
    def raw(self, s):
        self.L.append(s)

def gen(dyn=True, S=52, stamps=False, pol="nt", NB=2, spin_cap=1 << 16, th=12, nocomp=0, sprof=0, hprio=3,
        qpoll_sleep=2, opoll_sleep=2, dbneed=7, NL=2, w1b=40, skipffn=0, skippost=0, mimic=1, cstride=256, prot=0, fastre=1, mlmode=0, resleep=0, ackprof=0, stpol="sc1", ilv=0, ystag=10):
    KL = 4
    NX = 6 - NB
    assert NL <= NX
    NXT = NX + NL
    NPRE = 6 + NL
    L_LPW = max(NL, 1) * 8192
    L_TOTAL = L_OST + 4 * L_LPW
    CH = KL * 4096
    NCH = (1 << 20) // CH
    if not dyn:
        S = NCH
    P = NCH - S
    logP = P.bit_length() - 1 if P else 0
    D = 8 * P * 4
    logPW = logP + 2
    a = Asm()
    a.raw("; @launch grid=(256,1,1) block=(512,1,1) lds=%d" % L_TOTAL)
    for line in DOC.strip().split("\n"):
        a.raw("; " + line)
    a.raw('.amdgcn_target "amdgcn-amd-amdhsa--gfx950"')
    a.raw(".text")
    a.raw(f".globl {KNAME}")
    a.raw(".p2align 8")
    a.raw(f".type {KNAME},@function")
    a.label(KNAME)

    sX, sK, sV, sWQ, sWO, sW1, sB1, sW2, sB2, sOUT, sDBG, sWS = 16, 18, 20, 22, 24, 28, 30, 32, 34, 36, 38, 40
    sWave, sH, sG, sHW = 42, 43, 44, 45
    sMask, sC = 46, 47
    SRD_K, SRD_V, SRD_A, SRD_B = 48, 52, 56, 60
    sStatic, sHeadW, sIdx, sN, sNT, sOff, sCur, sBn, sXc = 64, 65, 66, 67, 68, 69, 70, 71, 72
    sBq = [73, 74, 75]
    sT0, sT1, sT2, sT3, sT4 = 76, 77, 78, 79, 6
    sRet = 80
    sSpin = 83
    STAMP0 = 84
    def P2(s): return f"s[{s}:{s+1}]"
    def P4(s): return f"s[{s}:{s+3}]"
    def _st(i): a(f"s_memrealtime s[{STAMP0+2*i}:{STAMP0+2*i+1}]")
    def stamp(i):
        if stamps and (not sprof or i == 0): _st(i)
    def sstamp(i):
        if stamps and sprof == 1: _st(i)
    def tstamp(i):
        if stamps and sprof == 2: _st(i)
    def V(n, cnt=1):
        return f"v{n}" if cnt == 1 else f"v[{n}:{n+cnt-1}]"
    DPPM = "row_mask:0xf bank_mask:0xf"
    def row_allreduce(op, regs, nop_first=True):
        steps = ["quad_perm:[1,0,3,2]", "quad_perm:[2,3,0,1]", "row_half_mirror", "row_mirror"]
        need = max(0, 2 - (len(regs) - 1))
        if nop_first:
            a("s_nop 1")
        for si, st in enumerate(steps):
            for r in regs:
                a(f"{op}_dpp v{r}, v{r}, v{r} {st} {DPPM}")
            if need and si < 3:
                a(f"s_nop {need-1}")
    def wave_sum_to_sgpr(r, sdst):
        row_allreduce("v_add_f32", [r])
        a("s_nop 1")
        a(f"v_add_f32_dpp v{r}, v{r}, v{r} row_bcast:15 row_mask:0xa bank_mask:0xf")
        a("s_nop 1")
        a(f"v_add_f32_dpp v{r}, v{r}, v{r} row_bcast:31 row_mask:0xc bank_mask:0xf")
        a("s_nop 1")
        a(f"v_readlane_b32 s{sdst}, v{r}, 63")
    def rnd_bf16(dst, src):
        a(f"v_cvt_pk_bf16_f32 v{dst}, v{src}, v{src}")
        a(f"v_and_b32 v{dst}, s{sMask}, v{dst}")
    def spin_timeout(lbl_retry):
        d = a.u("L_to")
        a(f"s_cmp_eq_u32 s{sSpin}, 0")
        a(f"s_cbranch_scc1 {d}")
        a(f"s_sub_u32 s{sSpin}, s{sSpin}, 1")
        a(f"s_branch {lbl_retry}")
        a.label(d)
    def lds_arrive(k, vaddr, vone):
        a("s_mov_b64 exec, 1")
        a(f"ds_add_u32 v{vaddr}, v{vone} offset:{4*k}")
        a("s_mov_b64 exec, -1")
    def lds_wait(k, target, vaddr, vtmp, stmp, sleep=1):
        l = a.u("L_lw")
        ok = a.u("L_lwok")
        a.label(l)
        a(f"ds_read_b32 v{vtmp}, v{vaddr} offset:{4*k}")
        a("s_waitcnt lgkmcnt(0)")
        a(f"v_readfirstlane_b32 s{stmp}, v{vtmp}")
        a("s_nop 1")
        a(f"s_cmp_ge_u32 s{stmp}, {target}")
        a(f"s_cbranch_scc1 {ok}")
        if sleep:
            a(f"s_sleep {sleep}")
        spin_timeout(l)
        a.label(ok)
    def srd(base, sptr, nrec):
        a(f"s_mov_b32 s{base}, s{sptr}")
        a(f"s_mov_b32 s{base+1}, s{sptr+1}")
        a(f"s_mov_b32 s{base+2}, {nrec}")
        a(f"s_mov_b32 s{base+3}, 0x20000")
    def sentinel_check(regs, vtmp):
        regs = list(regs)
        a(f"v_max3_u32 v{vtmp}, v{regs[0]}, v{regs[1]}, v{regs[2]}")
        i = 3
        while i + 1 < len(regs):
            a(f"v_max3_u32 v{vtmp}, v{vtmp}, v{regs[i]}, v{regs[i+1]}")
            i += 2
        if i < len(regs):
            a(f"v_max_u32 v{vtmp}, v{vtmp}, v{regs[i]}")
        a(f"v_cmp_eq_u32 vcc, -1, v{vtmp}")
        a("s_nop 4")

    vLane = 1
    a("s_cmp_ge_u32 s2, 256")
    a("s_cbranch_scc1 L_end")
    a("s_load_dwordx16 s[16:31], s[0:1], 0")
    a("s_load_dwordx8 s[32:39], s[0:1], 64")
    a("s_load_dwordx2 s[40:41], s[0:1], 96")
    stamp(0)
    a("v_lshrrev_b32 v2, 6, v0")
    a(f"v_and_b32 v{vLane}, 63, v0")
    a(f"v_readfirstlane_b32 s{sWave}, v2")
    a(f"s_lshr_b32 s{sH}, s2, 3")
    a(f"s_and_b32 s{sG}, s2, 7")
    a(f"s_mov_b32 s{sMask}, 0xffff0000")
    a(f"s_mov_b32 s{sC}, 0x{(LOG2E if mimic else C_SCALE):08x}")
    if mimic:
        a(f"s_mov_b32 s82, 0x{SCALE_ONLY:08x}")
    a(f"s_mov_b32 s{sSpin}, {spin_cap}")
    a(f"v_lshlrev_b32 v3, 2, v{vLane}")
    a("v_mov_b32 v4, 0")
    a(f"s_cmp_eq_u32 s{sWave}, 4")
    a("s_cbranch_scc0 L_nosyinit")
    a(f"ds_write_b32 v3, v4 offset:{L_SYNC}")
    a.label("L_nosyinit")
    a("s_waitcnt lgkmcnt(0)")
    a("s_barrier")
    sstamp(1)
    a(f"s_cmp_lt_u32 s{sWave}, 4")
    a("s_cbranch_scc1 L_swave")

    vL16, vL4, vXo, vXo2, vSy, vOne = 2, 3, 4, 5, 6, 7
    vXr = 8
    vE = 16
    vW = 32
    vXN = 64
    vAcc = 144
    vU = 152
    vWO = 172
    vBo = 204
    vL2 = 205
    vW2 = 208
    vY = 224
    if hprio:
        a(f"s_setprio {hprio}")
    a(f"s_sub_u32 s{sHW}, s{sWave}, 4")
    a(f"v_lshlrev_b32 v{vL16}, 4, v{vLane}")
    a(f"s_mul_i32 s{sT0}, s{sHW}, 1280")
    a(f"v_add_u32 v{vXo}, s{sT0}, v{vL16}")
    a(f"v_add_u32 v{vXo2}, s{sT0}, v{vL4}")
    a(f"global_load_dwordx4 {V(vXr,4)}, v{vXo}, {P2(sX)}")
    a(f"global_load_dword v{vXr+4}, v{vXo2}, {P2(sX)} offset:1024")
    a(f"s_mul_i32 s{sT1}, s{sG}, 80")
    a(f"s_mul_i32 s{sT2}, s{sHW}, 20")
    a(f"s_add_u32 s{sStatic}, s{sT1}, s{sT2}")
    a(f"s_lshl_b32 s{sOff}, s{sStatic}, 13")
    a(f"s_lshl_b32 s{sT2}, s{sH}, 8")
    a(f"s_add_u32 s{sOff}, s{sOff}, s{sT2}")
    srd(SRD_A, sWQ, 640 * 8192)
    for i in range(20):
        a(f"buffer_load_dword v{vW+i}, v{vL4}, {P4(SRD_A)}, s{sOff} offen {pol}")
        if i < 19:
            a(f"s_add_u32 s{sOff}, s{sOff}, 8192")
    sstamp(2)
    a(f"v_lshlrev_b32 v{vU}, 3, v{vLane}")
    a(f"s_lshl_b32 s{sIdx}, s2, 13")
    a(f"s_add_u32 s{sIdx}, s{sIdx}, {WS_OB}")
    a(f"s_lshl_b32 s{sHeadW}, s{sH}, 16")
    a(f"s_add_u32 s{sHeadW}, s{sHeadW}, {WS_OB}")
    a(f"s_lshl_b32 s{sT2}, s{sHW}, 9")
    a(f"s_add_u32 s{sT2}, s{sT2}, s{sIdx}")
    a(f"v_add_u32 v{vU+2}, s{sT2}, v{vU}")
    a(f"v_mov_b32 v{vSy}, {L_SYNC}")
    a(f"v_mov_b32 v{vOne}, 1")
    a("s_waitcnt vmcnt(20)")
    sstamp(3)
    for j in range(5):
        a(f"v_lshlrev_b32 v{vE+2*j}, 16, v{vXr+j}")
        a(f"v_and_b32 v{vE+2*j+1}, s{sMask}, v{vXr+j}")
    vt, vs, vMean, vR = vU + 10, vU + 12, vU + 13, vU + 14
    a(f"v_add_f32 v{vs}, v{vE}, v{vE+1}")
    for j in range(2, 10):
        a(f"v_add_f32 v{vs}, v{vs}, v{vE+j}")
    wave_sum_to_sgpr(vs, sT0)
    a("s_nop 1")
    a(f"v_mov_b32 v{vMean}, s{sT0}")
    a(f"v_mul_f32 v{vMean}, 0x{INV640:08x}, v{vMean}")
    a(f"v_sub_f32 v{vt}, v{vE}, v{vMean}")
    a(f"v_mul_f32 v{vs}, v{vt}, v{vt}")
    for j in range(1, 10):
        a(f"v_sub_f32 v{vt}, v{vE+j}, v{vMean}")
        a(f"v_fmac_f32 v{vs}, v{vt}, v{vt}")
    wave_sum_to_sgpr(vs, sT0)
    a("s_nop 1")
    a(f"v_mov_b32 v{vR}, s{sT0}")
    a(f"v_mul_f32 v{vR}, 0x{INV640:08x}, v{vR}")
    rnd_bf16(vR, vR)
    a(f"v_add_f32 v{vR}, 0x{EPS:08x}, v{vR}")
    rnd_bf16(vR, vR)
    a(f"v_sqrt_f32 v{vR}, v{vR}")
    a("s_nop 0")
    rnd_bf16(vR, vR)
    a(f"v_rcp_f32 v{vR}, v{vR}")
    rnd_bf16(vMean, vMean)
    for j in range(10):
        a(f"v_sub_f32 v{vE+j}, v{vE+j}, v{vMean}")
    for j in range(0, 10, 2):
        a(f"v_cvt_pk_bf16_f32 v{vt}, v{vE+j}, v{vE+j+1}")
        a(f"v_lshlrev_b32 v{vE+j}, 16, v{vt}")
        a(f"v_and_b32 v{vE+j+1}, s{sMask}, v{vt}")
    for j in range(10):
        a(f"v_mul_f32 v{vE+j}, v{vE+j}, v{vR}")
    for j in range(0, 10, 2):
        a(f"v_cvt_pk_bf16_f32 v{vt}, v{vE+j}, v{vE+j+1}")
        a(f"v_lshlrev_b32 v{vE+j}, 16, v{vt}")
        a(f"v_and_b32 v{vE+j+1}, s{sMask}, v{vt}")
    a(f"s_mul_i32 s{sT0}, s{sHW}, 2560")
    a(f"v_lshlrev_b32 v{vt}, 5, v{vLane}")
    a(f"v_add_u32 v{vt}, s{sT0}, v{vt}")
    a(f"v_add_u32 v{vt+1}, s{sT0}, v{vU}")
    a(f"ds_write_b128 v{vt}, {V(vE,4)} offset:{L_XN}")
    a(f"ds_write_b128 v{vt}, {V(vE+4,4)} offset:{L_XN+16}")
    a(f"ds_write_b64 v{vt+1}, {V(vE+8,2)} offset:{L_XN+2048}")
    lds_arrive(1, vSy, vOne)
    sstamp(4)
    a(f"s_lshl_b32 s{sT1}, s{sStatic}, 2")
    a(f"v_mov_b32 v{vt}, s{sT1}")
    for i in range(8):
        a(f"v_mov_b32 v{vAcc+i}, 0")
    lds_wait(1, 4, vSy, vt + 1, sT0)
    stamp(2)
    for b in range(4):
        for k in range(5):
            a(f"ds_read_b128 {V(vXN+b*20+4*k,4)}, v{vt} offset:{L_XN+b*2560+16*k}")
    a("s_waitcnt vmcnt(0) lgkmcnt(0)")
    sstamp(5)
    for i in range(20):
        t = vU + 10 + 2 * (i % 3)
        a(f"v_lshlrev_b32 v{t}, 16, v{vW+i}")
        a(f"v_and_b32 v{t+1}, s{sMask}, v{vW+i}")
        for b in range(4):
            x = vXN + b * 20 + i
            xb = x & ~1
            sel = "op_sel:[0,1,0] op_sel_hi:[1,1,1]" if (x & 1) else "op_sel_hi:[1,0,1]"
            a(f"v_pk_fma_f32 {V(vAcc+2*b,2)}, {V(t,2)}, {V(xb,2)}, {V(vAcc+2*b,2)} {sel}")
    a(f"s_lshl_b32 s{sT0}, s{sHW}, 11")
    a(f"v_add_u32 v{vU+1}, s{sT0}, v{vU}")
    for b in range(4):
        a(f"ds_write_b64 v{vU+1}, {V(vAcc+2*b,2)} offset:{L_QPART+b*512}")
    lds_arrive(2, vSy, vOne)
    a(f"s_lshl_b32 s{sT0}, s{sHW}, 9")
    a(f"v_add_u32 v{vU+1}, s{sT0}, v{vU}")
    lds_wait(2, 4, vSy, vU + 4, sT0)
    for w in range(4):
        a(f"ds_read_b64 {V(vAcc+2*w,2)}, v{vU+1} offset:{L_QPART+w*2048}")
    a("s_waitcnt lgkmcnt(0)")
    a(f"v_pk_add_f32 {V(vAcc,2)}, {V(vAcc,2)}, {V(vAcc+2,2)}")
    a(f"v_pk_add_f32 {V(vAcc+4,2)}, {V(vAcc+4,2)}, {V(vAcc+6,2)}")
    a(f"v_pk_add_f32 {V(vAcc,2)}, {V(vAcc,2)}, {V(vAcc+4,2)}")
    sstamp(6)
    lds_wait(0, 1, vSy, vU + 4, sT0)
    a(f"global_store_dwordx2 v{vU+2}, {V(vAcc,2)}, {P2(sWS)} sc1")
    stamp(3)
    sstamp(7)
    a(f"s_lshl_b32 s{sT2}, s{sHW}, 9")
    a(f"s_add_u32 s{sT2}, s{sT2}, s{sHeadW}")
    vGa = 80
    for g_ in range(8):
        a(f"s_add_u32 s{sT3}, s{sT2}, {g_*8192}")
        a(f"v_add_u32 v{vGa+g_}, s{sT3}, v{vU}")
    a(f"s_cmp_eq_u32 s{sHW}, 0")
    a("s_cbranch_scc0 L_h_b4")
    a(f"s_add_u32 s{sT0}, s{sIdx}, {OB_GO}")
    a(f"v_mov_b32 v{vU+4}, s{sT0}")
    a.label("L_qpoll")
    a(f"global_load_dword v{vU+6}, v{vU+4}, {P2(sWS)} sc1")
    a("s_waitcnt vmcnt(0)")
    a(f"v_readfirstlane_b32 s{sT1}, v{vU+6}")
    a("s_nop 1")
    a(f"s_cmp_eq_u32 s{sT1}, 1")
    a("s_cbranch_scc1 L_qok")
    a(f"s_sleep {qpoll_sleep}")
    spin_timeout("L_qpoll")
    a.label("L_qok")
    lds_arrive(4, vSy, vOne)
    a.label("L_h_b4")
    lds_wait(4, 1, vSy, vU + 4, sT0)
    stamp(4)
    vG = vXN
    a.label("L_qg")
    for g_ in range(8):
        a(f"global_load_dwordx2 {V(vG+2*g_,2)}, v{vGa+g_}, {P2(sWS)} sc1")
    a("s_waitcnt vmcnt(0)")
    sentinel_check(range(vG, vG + 16), vU + 4)
    a("s_cbranch_vccz L_qgok")
    spin_timeout("L_qg")
    a.label("L_qgok")
    for g_ in range(1, 8):
        a(f"v_pk_add_f32 {V(vG,2)}, {V(vG,2)}, {V(vG+2*g_,2)}")
    a(f"v_cvt_pk_bf16_f32 v{vU+4}, v{vG}, v{vG+1}")
    a(f"s_lshl_b32 s{sT0}, s{sHW}, 8")
    a(f"v_add_u32 v{vU+5}, s{sT0}, v{vL4}")
    a(f"ds_write_b32 v{vU+5}, v{vU+4} offset:{L_QB}")
    lds_arrive(5, vSy, vOne)
    stamp(5)
    a("s_branch L_h_post")

    a.label("L_swave")
    NR = 4
    NXR = 8
    NLK = 2 * NL
    NXT = NXR + NLK
    NPRE = NXT + NR
    assert NLK <= NXR
    vOff, vOst, vMl, vQa, vScl = 2, 4, 5, 6, 7
    vQ = 8
    vO = 12
    vM, vL = 20, 21
    vAl, vMn = 22, 23
    vS = 24
    vT = 28
    vTmp, vTk = 36, 38
    vSn = 40
    vSc = [40, 44, 48, 52]
    vTkt = [56, 57, 58, 59]
    vCo, vCo2, vScg = 60, 61, 62
    SRD_C = SRD_A
    SRD_L = SRD_K
    sBq4 = [73, 74, 75, 52]
    sTk4 = [53, 54, 55, 7]
    sVIdx, sNV, sOld = 5, 4, 82 - 1
    sOld = 3
    sMim = 82
    RING = 64
    def rbuf(j): return RING + 16 * j
    def xbuf(x): return RING + 64 + 16 * x
    PH = 4096 * 4
    def ld4(bb):
        for i in range(KL):
            a(f"buffer_load_dwordx4 {V(bb+4*i,4)}, v{vOff}, {P4(SRD_L)}, s{sOff} offen offset:{i*1024} {pol}")
    a(f"v_lshlrev_b32 v{vOff}, 4, v{vLane}")
    a(f"s_cmp_eq_u32 s{sWave}, 0")
    a("s_cbranch_scc0 L_s_nop0")
    a("s_setprio 3")
    for i in range(4):
        a(f"v_mov_b32 v{vSn+i}, -1")
    a(f"s_lshl_b32 s{sT0}, s2, 13")
    a(f"s_add_u32 s{sT0}, s{sT0}, {WS_OB}")
    a(f"v_add_u32 v{vSn+4}, s{sT0}, v{vOff}")
    a(f"v_add_u32 v{vSn+5}, 4096, v{vSn+4}")
    for k in range(OB_FILL):
        a(f"global_store_dwordx4 v{vSn+4+(k>>2)}, {V(vSn,4)}, {P2(sWS)} offset:{(k&3)*1024} sc1")
    a(f"s_lshl_b32 s{sT0}, s{sH}, 8")
    a(f"s_lshl_b32 s{sT1}, s{sG}, 3")
    a(f"s_add_u32 s{sT1}, s{sT1}, s{sT0}")
    a(f"s_add_u32 s{sT1}, s{sT1}, {WS_OPML}")
    a(f"v_lshlrev_b32 v{vSn+6}, 6, v{vLane}")
    a(f"v_add_u32 v{vSn+6}, s{sT1}, v{vSn+6}")
    a(f"s_mul_i32 s{sT2}, s{sH}, {cstride}")
    a(f"s_add_u32 s{sT2}, s{sT2}, {WS_CTR}")
    a(f"v_lshlrev_b32 v{vSn+7}, 7, v{vLane}")
    a(f"v_add_u32 v{vSn+7}, s{sT2}, v{vSn+7}")
    a(f"v_mov_b32 v{vTmp}, 0")
    a("s_mov_b64 exec, 0xf")
    a(f"global_store_dwordx2 v{vSn+6}, {V(vSn,2)}, {P2(sWS)} sc1")
    a("s_mov_b64 exec, 3")
    a(f"s_cmp_eq_u32 s{sG}, 0")
    a("s_cbranch_scc0 L_noctr")
    a(f"global_store_dword v{vSn+7}, v{vTmp}, {P2(sWS)} sc1")
    a.label("L_noctr")
    a("s_mov_b64 exec, 1")
    a(f"s_lshr_b32 s{sT1}, s{sH}, 4")
    a(f"s_lshl_b32 s{sT1}, s{sT1}, 5")
    a(f"s_and_b32 s{sT2}, s{sH}, 15")
    a(f"s_add_u32 s{sT1}, s{sT1}, s{sT2}")
    a(f"s_lshl_b32 s{sT1}, s{sT1}, 2")
    a(f"v_mov_b32 v{vSn+6}, s{sT1}")
    a(f"v_mov_b32 v{vTmp}, 1")
    a(f"v_mov_b32 v{vTk}, {L_SYNC}")
    a("s_waitcnt vmcnt(0)")
    sstamp(3)
    a(f"global_atomic_add v{vSn+7}, v{vSn+6}, v{vTmp}, {P2(sDBG)} sc0")
    a(f"ds_write_b32 v{vTk}, v{vTmp}")
    a("s_waitcnt vmcnt(0)")
    a(f"v_readfirstlane_b32 s{sT0}, v{vSn+7}")
    a("s_mov_b64 exec, -1")
    a("s_nop 0")
    a(f"s_and_b32 s{sT0}, s{sT0}, 7")
    a(f"s_cmp_eq_u32 s{sT0}, 7")
    a("s_cbranch_scc0 L_s_nogo")
    a(f"s_lshl_b32 s{sT1}, s{sH}, 16")
    a(f"s_add_u32 s{sT1}, s{sT1}, {WS_OB+OB_GO}")
    a(f"v_lshlrev_b32 v{vSn+4}, 13, v{vLane}")
    a(f"v_add_u32 v{vSn+4}, s{sT1}, v{vSn+4}")
    a(f"v_mov_b32 v{vTmp}, 1")
    a("s_mov_b64 exec, 0xff")
    a(f"global_store_dword v{vSn+4}, v{vTmp}, {P2(sWS)} sc1")
    a("s_mov_b64 exec, -1")
    a.label("L_s_nogo")
    sstamp(4)
    a("s_setprio 0")
    a.label("L_s_nop0")
    a(f"s_lshl_b32 s{sHeadW}, s{sH}, 21")
    a(f"s_lshr_b32 s{sCur}, s{sG}, 1")
    a(f"s_lshl_b32 s{sT0}, s{sCur}, 26")
    a(f"s_and_b32 s{sT1}, s{sG}, 1")
    a(f"s_lshl_b32 s{sT1}, s{sT1}, 20")
    a(f"s_add_u32 s{sStatic}, s{sHeadW}, s{sT0}")
    a(f"s_add_u32 s{sStatic}, s{sStatic}, s{sT1}")
    a(f"s_lshl_b32 s{sT0}, s{sWave}, 12")
    a(f"s_add_u32 s{sStatic}, s{sStatic}, s{sT0}")
    if stamps and sprof == 3:
        a("v_mov_b32 v63, 0")
        a("v_writelane_b32 v63, s84, 0")
    srd(SRD_L, sK, 0x10000000)
    srd(SRD_C, sWS, 0x100000)
    a(f"v_mov_b32 v{vTk}, {L_SYNC}")
    a(f"s_mul_i32 s{sT0}, s{sH}, {cstride}")
    a(f"s_add_u32 s{sT0}, s{sT0}, {WS_CTR}")
    a(f"v_mov_b32 v{vCo}, s{sT0}")
    a(f"v_add_u32 v{vCo2}, 128, v{vCo}")
    def ost_init():
        for i in range(4):
            a(f"v_mov_b32 v{vT+i}, 0")
        for b in range(4):
            a(f"ds_write_b128 v{vOst}, {V(vT,4)} offset:{b*2048}")
            a(f"ds_write_b128 v{vOst}, {V(vT,4)} offset:{b*2048+16}")
    def s_lds_init():
        a(f"s_mul_i32 s{sT0}, s{sWave}, {L_LPW}")
        a(f"v_lshlrev_b32 v{vOst}, 5, v{vLane}")
        a(f"v_add_u32 v{vOst}, s{sT0}, v{vOst}")
        a(f"v_add_u32 v{vOst}, {L_OST}, v{vOst}")
        a(f"v_lshrrev_b32 v{vMl}, 4, v{vLane}")
        a(f"v_lshlrev_b32 v{vScl}, 4, v{vMl}")
        a(f"s_lshl_b32 s{sT0}, s{sWave}, 12")
        a(f"s_add_u32 s{sT0}, s{sT0}, {L_SCL}")
        a(f"v_add_u32 v{vScl}, s{sT0}, v{vScl}")
        a(f"s_lshl_b32 s{sT0}, s{sWave}, 2")
        a(f"v_add_u32 v{vMl}, s{sT0}, v{vMl}")
        a(f"v_lshlrev_b32 v{vMl}, 3, v{vMl}")
        a(f"v_add_u32 v{vMl}, {L_ML}, v{vMl}")
        a(f"v_and_b32 v{vQa}, 15, v{vLane}")
        a(f"v_lshlrev_b32 v{vQa}, 4, v{vQa}")
        a(f"v_add_u32 v{vQa}, {L_QB}, v{vQa}")
        for i in range(8):
            a(f"v_mov_b32 v{vO+i}, 0")
        a(f"v_mov_b32 v{vM}, 0x{NEG_MAX:08x}")
        a(f"v_mov_b32 v{vL}, 0")
        for b in range(4):
            a(f"ds_write_b64 v{vMl}, {V(vM,2)} offset:{b*128}")
        if NLK == 0:
            ost_init()
    nld = 0
    th_ = min(th, 48)
    a(f"s_mul_i32 s{sT4}, s{sWave}, {L_LPW}")
    a(f"s_add_u32 s{sT4}, s{sT4}, {L_OST}")
    seq = [("x", i) for i in range(NXR)] + [("l", j) for j in range(NLK)] + [("r", j) for j in range(NR)]
    for n_, (kind, bi) in enumerate(seq):
        a(f"s_add_u32 s{sOff}, s{sStatic}, {n_ * CH}")
        if kind == "l":
            a(f"s_add_u32 m0, s{sT4}, {bi*4096}")
        for i in range(KL):
            if nld >= th_:
                a(f"s_waitcnt vmcnt({th_-1})")
            elif kind == "l" and i == 0:
                a("s_nop 0")
            if kind == "l":
                a(f"buffer_load_dwordx4 v{vOff}, {P4(SRD_L)}, s{sOff} offen offset:{i*1024} {pol} lds")
            else:
                bb = xbuf(bi) if kind == "x" else rbuf(bi)
                a(f"buffer_load_dwordx4 {V(bb+4*i,4)}, v{vOff}, {P4(SRD_L)}, s{sOff} offen offset:{i*1024} {pol}")
            nld += 1
            if nld == th_:
                sstamp(2)
    stamp(1)
    sstamp(5)
    s_lds_init()
    lds_wait(5, 4, vTk, vTmp, sT0)
    stamp(2)
    sstamp(6)
    a(f"s_lshl_b32 s{sT0}, s{sCur}, 8")
    a(f"v_add_u32 v{vTmp}, s{sT0}, v{vQa}")
    a(f"ds_read_b128 {V(vQ,4)}, v{vTmp}")
    a(f"s_mov_b32 s{sIdx}, {NPRE}")
    a(f"s_mov_b32 s{sN}, {NXT}")
    a(f"s_mov_b32 s{sNT}, 0")
    a(f"s_mov_b32 s{sVIdx}, 0")
    a(f"s_mov_b32 s{sNV}, 0x7fffffff")
    for j in range(NR):
        a(f"s_mov_b32 s{sBq4[j]}, s{sCur}")
        a(f"s_mov_b32 s{sTk4[j]}, {NXT + j}")
    a(f"s_mov_b32 s{sXc}, 0")
    a(f"s_mov_b32 s{sBn}, s{sCur}")
    sQb = sBn
    sNb, sNtag = sT3, sT2
    a("s_waitcnt lgkmcnt(0)")

    LEAD = ("s_mov_b32 exec_lo, 0x00010001", "s_mov_b32 exec_hi, 0x00010001")
    def qk(bb):
        for j in range(4):
            for i in range(KL):
                k = bb + 4 * i + j
                if j == 0:
                    a(f"v_dot2_f32_bf16 v{vS+i}, v{k}, v{vQ+j}, 0")
                else:
                    a(f"v_dot2_f32_bf16 v{vS+i}, v{k}, v{vQ+j}, v{vS+i}")
    def reduce_scores():
        row_allreduce("v_add_f32", [vS, vS+1, vS+2, vS+3], nop_first=False)
        for rep in range(2):
            if mimic:
                a(f"v_cvt_pk_bf16_f32 v{vT}, v{vS}, v{vS+1}")
                a(f"v_cvt_pk_bf16_f32 v{vT+1}, v{vS+2}, v{vS+3}")
                a(f"v_lshlrev_b32 v{vS}, 16, v{vT}")
                a(f"v_and_b32 v{vS+1}, s{sMask}, v{vT}")
                a(f"v_lshlrev_b32 v{vS+2}, 16, v{vT+1}")
                a(f"v_and_b32 v{vS+3}, s{sMask}, v{vT+1}")
            if rep == 0 and mimic:
                for i in range(4):
                    a(f"v_mul_f32 v{vS+i}, s{sMim}, v{vS+i}")
    def store_scores_static(stag):
        a(f"s_lshl_b32 s{sT0}, s{stag}, 6")
        a(f"v_add_u32 v{vTmp}, s{sT0}, v{vScl}")
        a(LEAD[0]); a(LEAD[1])
        a(f"ds_write_b128 v{vTmp}, {V(vS,4)}")
        a("s_mov_b64 exec, -1")
    def softmax(sb):
        a(f"v_max3_f32 v{vMn}, v{sb}, v{sb+1}, v{sb+2}")
        a(f"v_max_f32 v{vMn}, v{vMn}, v{sb+3}")
        a(f"v_mul_f32 v{vMn}, s{sC}, v{vMn}")
        a(f"v_max_f32 v{vMn}, v{vMn}, v{vM}")
        a(f"v_sub_f32 v{vAl}, v{vM}, v{vMn}")
        for i in range(4):
            a(f"v_fma_f32 v{sb+i}, v{sb+i}, s{sC}, -v{vMn}")
        a(f"v_exp_f32 v{vAl}, v{vAl}")
        for i in range(4):
            a(f"v_exp_f32 v{sb+i}, v{sb+i}")
        a(f"v_mov_b32 v{vM}, v{vMn}")
        a(f"v_fma_f32 v{vL}, v{vL}, v{vAl}, v{sb}")
        a(f"v_add_f32 v{vT}, v{sb+1}, v{sb+2}")
        a(f"v_add_f32 v{vL}, v{vL}, v{sb+3}")
        a(f"v_add_f32 v{vL}, v{vL}, v{vT}")
        for j in range(4):
            a(f"v_pk_mul_f32 {V(vO+2*j,2)}, {V(vO+2*j,2)}, {V(vAl,2)} op_sel_hi:[1,0]")
    def pv(bb, sb):
        for i in range(KL):
            p = sb + i
            pb = p & ~1
            sel = "op_sel:[0,1,0] op_sel_hi:[1,1,1]" if (p & 1) else "op_sel_hi:[1,0,1]"
            for j in range(4):
                v = bb + 4 * i + j
                t = vT + 2 * j
                a(f"v_lshlrev_b32 v{t}, 16, v{v}")
                a(f"v_and_b32 v{t+1}, s{sMask}, v{v}")
            for j in range(4):
                t = vT + 2 * j
                a(f"v_pk_fma_f32 {V(vO+2*j,2)}, {V(t,2)}, {V(pb,2)}, {V(vO+2*j,2)} {sel}")
    WAITN = (NR - 1) * KL
    sTyp = 8
    def set_srd(ptr):
        a(f"s_mov_b32 s{SRD_L}, s{ptr}")
        a(f"s_mov_b32 s{SRD_L+1}, s{ptr+1}")
    PP = 4 * P
    MAGIC = -(-65536 // PP) if PP else 0
    for t_ in range(D):
        assert (t_ * MAGIC) >> 16 == t_ // PP, (t_, PP)
    def decode_ticket(st):
        a(f"s_mul_i32 s{sT0}, s{st}, {MAGIC}")
        a(f"s_lshr_b32 s{sT0}, s{sT0}, 16")
        a(f"s_mul_i32 s{sOff}, s{sT0}, {PP}")
        a(f"s_sub_u32 s{sOff}, s{st}, s{sOff}")
        a(f"s_lshl_b32 s{sOff}, s{sOff}, 12")
        a(f"s_add_u32 s{sOff}, s{sOff}, {S*CH}")
        a(f"s_add_u32 s{sOff}, s{sOff}, s{sHeadW}")
        a(f"s_lshr_b32 s{sNb}, s{sT0}, 1")
        a(f"s_and_b32 s{sT0}, s{sT0}, 1")
        a(f"s_lshl_b32 s{sT0}, s{sT0}, 20")
        a(f"s_add_u32 s{sOff}, s{sOff}, s{sT0}")
        a(f"s_lshl_b32 s{sT0}, s{sNb}, 26")
        a(f"s_add_u32 s{sOff}, s{sOff}, s{sT0}")
    def issue_v_static(j):
        a(f"s_mul_i32 s{sOff}, s{sVIdx}, {CH}")
        a(f"s_add_u32 s{sOff}, s{sOff}, s{sStatic}")
        a(f"s_lshl_b32 s{sT0}, s{sVIdx}, 6")
        a(f"v_add_u32 v{vTmp}, s{sT0}, v{vScl}")
        a(f"ds_read_b128 {V(vSc[j],4)}, v{vTmp}")
        a(f"s_lshr_b32 s{sNb}, s{sG}, 1")
        a(f"s_add_u32 s{sVIdx}, s{sVIdx}, 1")
    def progstamp(tag):
        if stamps and sprof == 3:
            a(f"s_and_b32 s{sT0}, s{sN}, 7")
            a(f"s_cbranch_scc1 L_nops_{tag}")
            a(f"s_memrealtime s[84:85]")
            a(f"s_lshr_b32 m0, s{sN}, 3")
            a("s_waitcnt lgkmcnt(0)")
            a(f"v_writelane_b32 v63, s84, m0")
            a.label(f"L_nops_{tag}")
    sDOff, sDB, sDVal = 9, 10, 11
    def request_ticket(j):
        a(f"v_mov_b32 v{vTkt[j]}, 1")
        a("s_mov_b64 exec, 1")
        a(f"buffer_atomic_add v{vTkt[j]}, v{vCo}, {P4(SRD_C)}, 0 offen sc0")
        a("s_mov_b64 exec, -1")
    def next_dyn(j, tag):
        if j % 2 == 0:
            set_srd(sK)
            a(f"s_mov_b32 s{sNtag}, 0")
            a(f"s_mov_b32 s{sDVal}, 0")
            a(f"s_cmp_lg_u32 s{sNT}, 0")
            a(f"s_cbranch_scc1 L_nx_{tag}")
            a(f"v_readfirstlane_b32 s{sT1}, v{vTkt[j]}")
            a("s_nop 1")
            a(f"s_cmp_lt_u32 s{sT1}, {D}")
            a(f"s_cbranch_scc0 L_ne_{tag}")
            decode_ticket(sT1)
            a(f"s_mov_b32 s{sDOff}, s{sOff}")
            a(f"s_mov_b32 s{sDB}, s{sNb}")
            a(f"s_mov_b32 s{sDVal}, 1")
            a(f"s_mov_b32 s{sNtag}, 1")
            request_ticket(j)
            a(f"s_branch L_nd_{tag}")
            a.label(f"L_ne_{tag}")
            a(f"s_mov_b32 s{sNT}, 1")
            a.label(f"L_nx_{tag}")
            a(f"s_mov_b32 s{sOff}, 0x7ff00000")
            a(f"s_mov_b32 s{sNb}, s{sCur}")
            a.label(f"L_nd_{tag}")
        else:
            set_srd(sV)
            a(f"s_mov_b32 s{sNtag}, s{sDVal}")
            a(f"s_mov_b32 s{sNb}, s{sDB}")
            a(f"s_cmp_eq_u32 s{sDVal}, 1")
            a(f"s_cselect_b32 s{sOff}, s{sDOff}, 0x7ff00000")

    def kbody(j):
        tag = f"K{j}"
        bb = rbuf(j)
        a(f"s_cmp_lt_u32 s{sXc}, {NXT}")
        a(f"s_cbranch_scc1 L_x{tag}")
        a.label(f"L_x{tag}_ret")
        a(f"s_waitcnt vmcnt({WAITN})")
        qk(bb)
        a(f"s_cmp_lt_u32 s{sIdx}, {S}")
        a(f"s_cbranch_scc0 L_kd_{tag}")
        a(f"s_mul_i32 s{sOff}, s{sIdx}, {CH}")
        a(f"s_add_u32 s{sOff}, s{sOff}, s{sStatic}")
        a(f"s_add_u32 s{sIdx}, s{sIdx}, 1")
        a.label(f"L_kld_{tag}")
        ld4(bb)
        reduce_scores()
        store_scores_static(sN)
        a(f"s_add_u32 s{sN}, s{sN}, 1")
        progstamp(tag)
        a(f"s_cmp_ge_u32 s{sN}, {S}")
        a(f"s_cbranch_scc1 L_V{(j+1)%NR}_entry")
    def kbody_ool(j):
        tag = f"K{j}"
        a.label(f"L_kd_{tag}")
        set_srd(sV)
        issue_v_static(j)
        a(f"s_branch L_kld_{tag}")
        a.label(f"L_x{tag}")
        a(f"s_add_u32 s{sXc}, s{sXc}, 1")
        a(f"s_call_b64 {P2(sRet)}, L_xbody")
        a(f"s_branch L_x{tag}_ret")
    def vbody(j):
        tag = f"V{j}"
        bb = rbuf(j)
        a.label(f"L_V{j}_entry")
        a(f"s_waitcnt vmcnt({WAITN}) lgkmcnt(0)")
        softmax(vSc[j])
        pv(bb, vSc[j])
        a(f"s_cmp_lt_u32 s{sVIdx}, {S}")
        a(f"s_cbranch_scc0 L_vd_{tag}")
        issue_v_static(j)
        if dyn and j % 2 == 0:
            a(f"s_cmp_le_u32 s{sVIdx}, {S-NR}")
            a(f"s_cbranch_scc1 L_vld_{tag}")
            request_ticket(j)
        a.label(f"L_vld_{tag}")
        ld4(bb)
        a(f"s_add_u32 s{sN}, s{sN}, 1")
        progstamp(tag)
        a(f"s_cmp_ge_u32 s{sN}, {2*S}")
        a(f"s_cbranch_scc1 {'L_D%d_entry' % ((j+1)%NR) if dyn else 'L_sfin'}")
    def vbody_ool(j):
        tag = f"V{j}"
        a.label(f"L_vd_{tag}")
        if dyn:
            next_dyn(j, tag)
            a(f"s_mov_b32 s{sBq4[j]}, s{sNb}")
            a(f"s_mov_b32 s{sTk4[j]}, s{sNtag}")
        else:
            a(f"s_mov_b32 s{sOff}, 0x7ff00000")
        a(f"s_branch L_vld_{tag}")
    def dbody(j):
        tag = f"D{j}"
        bb = rbuf(j)
        a.label(f"L_D{j}_entry")
        a(f"s_cmp_eq_u32 s{sTk4[j]}, 0")
        a(f"s_cbranch_scc1 L_dinv_{tag}")
        if j % 2 == 0:
            a(f"s_cmp_eq_u32 s{sBq4[j]}, s{sQb}")
            a(f"s_cbranch_scc1 L_nq_{tag}")
            a(f"s_mov_b32 s{sQb}, s{sBq4[j]}")
            a(f"s_lshl_b32 s{sT0}, s{sQb}, 8")
            a(f"v_add_u32 v{vTmp}, s{sT0}, v{vQa}")
            a(f"ds_read_b128 {V(vQ,4)}, v{vTmp}")
            a("s_waitcnt lgkmcnt(0)")
            a.label(f"L_nq_{tag}")
            a(f"s_waitcnt vmcnt({WAITN})")
            qk(bb)
            next_dyn(j, tag)
            ld4(bb)
            reduce_scores()
        else:
            a(f"s_cmp_eq_u32 s{sBq4[j]}, s{sCur}")
            a(f"s_cbranch_scc1 L_nosw_{tag}")
            a(f"s_mov_b32 s{sSw}, s{sBq4[j]}")
            a(f"s_call_b64 {P2(sRet)}, L_switch")
            a.label(f"L_nosw_{tag}")
            softmax(vS)
            a(f"s_waitcnt vmcnt({WAITN})")
            pv(bb, vS)
            next_dyn(j, tag)
            ld4(bb)
        a(f"s_mov_b32 s{sBq4[j]}, s{sNb}")
        a(f"s_mov_b32 s{sTk4[j]}, s{sNtag}")
        a(f"s_add_u32 s{sN}, s{sN}, 1")
        progstamp(tag)
        if j == NR - 1:
            a("s_branch L_D0_entry")
    def dbody_ool(j):
        tag = f"D{j}"
        a.label(f"L_dinv_{tag}")
        a("s_branch L_sfin")

    sSw = 12
    a.label("L_kloop")
    for j in range(NR):
        kbody(j)
    a("s_branch L_kloop")
    a.label("L_vloop")
    for j in range(NR):
        vbody(j)
    a("s_branch L_vloop")
    if dyn:
        for j in range(NR):
            dbody(j)
        for j in range(NR):
            dbody_ool(j)
    for j in range(NR):
        kbody_ool(j)
    for j in range(NR):
        vbody_ool(j)
    a.label("L_xbody")
    a(f"s_sub_u32 s{sOld}, s{sXc}, 1")
    if NLK:
        a(f"s_cmp_le_u32 s{sXc}, {NXR}")
        a("s_cbranch_scc1 L_xreg")
        a(f"s_sub_u32 s{sT1}, s{sXc}, {NXR+1}")
        a(f"s_mul_i32 s{sT0}, s{sWave}, {L_LPW}")
        a(f"s_lshl_b32 s{sT2}, s{sT1}, 12")
        a(f"s_add_u32 s{sT0}, s{sT0}, s{sT2}")
        a(f"s_add_u32 s{sT0}, s{sT0}, {L_OST}")
        a(f"v_add_u32 v{vTmp}, s{sT0}, v{vOff}")
        for i in range(4):
            a(f"ds_read_b128 {V(xbuf(0)+4*i,4)}, v{vTmp} offset:{i*1024}")
        a("s_waitcnt lgkmcnt(0)")
        a(f"s_cmp_eq_u32 s{sXc}, {NXT}")
        a("s_cbranch_scc0 L_xb0")
        ost_init()
        a("s_branch L_xb0")
        a.label("L_xreg")
    for x in range(NXR):
        if x < NXR - 1:
            a(f"s_cmp_eq_u32 s{sXc}, {x+1}")
            a(f"s_cbranch_scc0 L_xn{x}")
        a.label(f"L_xb{x}")
        qk(xbuf(x))
        a("s_nop 2")
        reduce_scores()
        store_scores_static(sOld)
        a(f"s_setpc_b64 {P2(sRet)}")
        if x < NXR - 1:
            a.label(f"L_xn{x}")
    def save_state():
        a(f"s_lshl_b32 s{sT0}, s{sCur}, 11")
        a(f"v_add_u32 v{vTmp}, s{sT0}, v{vOst}")
        a(f"ds_write_b128 v{vTmp}, {V(vO,4)}")
        a(f"ds_write_b128 v{vTmp}, {V(vO+4,4)} offset:16")
        a(f"s_lshl_b32 s{sT0}, s{sCur}, 7")
        a(f"v_add_u32 v{vTmp+1}, s{sT0}, v{vMl}")
        a(f"ds_write_b64 v{vTmp+1}, {V(vM,2)}")
    a.label("L_switch")
    save_state()
    a(f"s_mov_b32 s{sCur}, s{sSw}")
    a(f"s_lshl_b32 s{sT0}, s{sCur}, 11")
    a(f"v_add_u32 v{vTmp}, s{sT0}, v{vOst}")
    a(f"ds_read_b128 {V(vO,4)}, v{vTmp}")
    a(f"ds_read_b128 {V(vO+4,4)}, v{vTmp} offset:16")
    a(f"s_lshl_b32 s{sT0}, s{sCur}, 7")
    a(f"v_add_u32 v{vTmp+1}, s{sT0}, v{vMl}")
    a(f"ds_read_b64 {V(vM,2)}, v{vTmp+1}")
    a("s_waitcnt lgkmcnt(0)")
    a(f"s_setpc_b64 {P2(sRet)}")

    a.label("L_sfin")
    if stamps and sprof == 3:
        a(f"s_lshl_b32 s{sT0}, s2, 2")
        a(f"s_add_u32 s{sT0}, s{sT0}, s{sWave}")
        a(f"s_lshl_b32 s{sT0}, s{sT0}, 8")
        a(f"s_add_u32 s{sT0}, s{sT0}, {WS_STAMP+0x40000}")
        a(f"v_lshlrev_b32 v39, 2, v{vLane}")
        a(f"v_add_u32 v39, s{sT0}, v39")
        a(f"global_store_dword v39, v63, {P2(sWS)}")
    stamp(3)
    save_state()
    a("s_waitcnt lgkmcnt(0)")
    a("s_barrier")
    stamp(6)
    tstamp(1)
    a(f"s_cmp_lt_u32 s{sH}, 4")
    a("s_cbranch_scc0 L_fin_stamp")
    a(f"s_cmp_lt_u32 s{sG}, 5")
    a("s_cbranch_scc0 L_fin_stamp")
    a("s_branch L_final_pre")

    a.label("L_h_post")
    a(f"v_lshlrev_b32 v{vL2}, 1, v{vLane}")
    if skippost:
        a("s_branch L_h_tailprep")
    a(f"s_cmp_lt_u32 s{sG}, 5")
    a("s_cbranch_scc0 L_h_notile")
    vTo = 8
    a(f"v_lshrrev_b32 v{vTo}, 4, v{vLane}")
    a(f"v_mul_u32_u24 v{vTo}, 1280, v{vTo}")
    a(f"v_and_b32 v{vTo+1}, 15, v{vLane}")
    a(f"v_lshlrev_b32 v{vTo+1}, 4, v{vTo+1}")
    a(f"v_add_u32 v{vTo}, v{vTo}, v{vTo+1}")
    srd(SRD_A, sWO, 4096 * 1280)
    srd(SRD_B, sW2, 1728 * 1280)
    a(f"s_lshl_b32 s{sT0}, s{sH}, 7")
    a(f"s_lshl_b32 s{sT1}, s{sHW}, 5")
    a(f"s_add_u32 s{sT0}, s{sT0}, s{sT1}")
    a(f"s_mul_i32 s{sT0}, s{sT0}, 1280")
    a(f"s_lshl_b32 s{sT1}, s{sG}, 8")
    a(f"s_add_u32 s{sT0}, s{sT0}, s{sT1}")
    a(f"s_lshl_b32 s{sT2}, s{sHW}, 13")
    a(f"s_add_u32 s{sT2}, s{sT2}, {L_WT}")
    for i in range(8):
        a(f"s_add_u32 m0, s{sT2}, {i*1024}")
        a(f"s_nop 0")
        a(f"buffer_load_dwordx4 v{vTo}, {P4(SRD_A)}, s{sT0} offen {pol} lds")
        a(f"s_add_u32 s{sT0}, s{sT0}, {4*1280}")
    a(f"s_lshl_b32 s{sT0}, s{sH}, 6")
    a(f"s_lshl_b32 s{sT3}, s{sHW}, 4")
    a(f"s_add_u32 s{sT0}, s{sT0}, s{sT3}")
    a(f"s_mul_i32 s{sT0}, s{sT0}, 1280")
    a(f"s_add_u32 s{sT0}, s{sT0}, s{sT1}")
    a(f"s_lshl_b32 s{sT2}, s{sHW}, 12")
    a(f"s_add_u32 s{sT2}, s{sT2}, {L_W2T}")
    for i in range(4):
        a(f"s_add_u32 m0, s{sT2}, {i*1024}")
        a(f"s_nop 0")
        a(f"buffer_load_dwordx4 v{vTo}, {P4(SRD_B)}, s{sT0} offen {pol} lds")
        a(f"s_add_u32 s{sT0}, s{sT0}, {4*1280}")
    a("s_waitcnt vmcnt(0)")
    lds_arrive(6, vSy, vOne)
    a(f"v_lshrrev_b32 v{vU}, 4, v{vLane}")
    a(f"v_lshlrev_b32 v{vBo}, 11, v{vU}")
    a(f"v_and_b32 v{vU+1}, 15, v{vLane}")
    a(f"v_lshlrev_b32 v{vU+1}, 1, v{vU+1}")
    a(f"v_add_u32 v{vBo}, v{vBo}, v{vU+1}")
    a(f"s_lshl_b32 s{sT1}, s{sHW}, 6")
    a(f"v_add_u32 v{vBo}, s{sT1}, v{vBo}")
    def build_btile(dst, ldsoff, nsteps, tmp):
        for s in range(nsteps):
            for j in range(8):
                a(f"ds_read_u16 v{tmp+8*s+j}, v{vBo} offset:{ldsoff + (32*s+j)*256}")
            a("s_waitcnt lgkmcnt(0)")
            for j2 in range(4):
                a(f"v_lshl_or_b32 v{dst+4*s+j2}, v{tmp+8*s+2*j2+1}, 16, v{tmp+8*s+2*j2}")
    lds_wait(6, 4, vSy, vU + 4, sT0)
    for tt in range(2):
        build_btile(vWO + 16 * tt, L_WT + tt * 32, 4, 64)
    for tt in range(2):
        build_btile(vW2 + 8 * tt, L_W2T + tt * 32, 2, 64)
    a.label("L_h_notile")
    a(f"s_cmp_eq_u32 s{sHW}, 3")
    a("s_cbranch_scc1 L_h3")
    a(f"s_cmp_eq_u32 s{sHW}, 0")
    a("s_cbranch_scc0 L_h_ffn2")
    a(f"s_cmp_lt_u32 s{sH}, 4")
    a("s_cbranch_scc0 L_h_ffn2")
    a.label("L_fflag")
    a(f"global_load_dword v{vU+1}, v{vL4}, {P2(sDBG)} sc1")
    a(f"v_and_b32 v{vU+2}, 16, v{vLane}")
    a(f"v_lshrrev_b32 v{vU+2}, 1, v{vU+2}")
    a("s_waitcnt vmcnt(0)")
    a(f"v_add_u32 v{vU+1}, v{vU+1}, v{vU+2}")
    a(f"v_cmp_gt_u32 vcc, 8, v{vU+1}")
    a("s_nop 4")
    a("s_cbranch_vccz L_h_ffn2")
    a("s_sleep 8")
    spin_timeout("L_fflag")
    a("s_branch L_h_ffn2")

    a.label("L_h3")
    vW1 = 32
    vXq = 112
    vHA = 128
    vHG = 32
    vHa = 112
    if skipffn:
        a("s_branch L_h_tailprep")
    srd(SRD_B, sW1, 640 * 3456)
    a(f"s_mul_i32 s{sOff}, s{sG}, {80*3456}")
    a(f"s_lshl_b32 s{sT0}, s{sH}, 7")
    a(f"s_add_u32 s{sOff}, s{sOff}, s{sT0}")
    a(f"s_cmp_lt_u32 s{sH}, 27")
    a(f"s_cselect_b32 s{sOff}, s{sOff}, 0x7f000000")
    for q4 in range(80 // w1b):
        for i in range(w1b):
            a(f"buffer_load_ushort v{vW1+w1b*q4+i}, v{vL2}, {P4(SRD_B)}, s{sOff} offen {pol}")
            a(f"s_add_u32 s{sOff}, s{sOff}, 3456")
        a("s_waitcnt vmcnt(0)")
    for b in range(4):
        a(f"v_mov_b32 v{vHA+b}, 0")
    a(f"s_mul_i32 s{sT0}, s{sG}, 320")
    a(f"v_mov_b32 v{vU}, s{sT0}")
    for q4 in range(20):
        for b in range(4):
            a(f"ds_read_b128 {V(vXq+4*b,4)}, v{vU} offset:{L_XN+b*2560+16*q4}")
        for r in range(4):
            a(f"v_lshlrev_b32 v{vW1+4*q4+r}, 16, v{vW1+4*q4+r}")
        a("s_waitcnt lgkmcnt(0)")
        for r in range(4):
            for b in range(4):
                a(f"v_fmac_f32 v{vHA+b}, v{vXq+4*b+r}, v{vW1+4*q4+r}")
    a(f"s_add_u32 s{sT0}, s{sIdx}, {OB_HP}")
    a(f"v_add_u32 v{vU+1}, s{sT0}, v{vL4}")
    for b in range(4):
        a(f"global_store_dword v{vU+1}, v{vHA+b}, {P2(sWS)} offset:{b*256} sc1")
    a(f"s_cmp_lt_u32 s{sG}, 5")
    a("s_cbranch_scc0 L_h_tailprep")
    srd(SRD_B, sB1, 1728 * 2)
    a(f"s_lshl_b32 s{sT0}, s{sH}, 7")
    a(f"buffer_load_ushort v{vU+3}, v{vL2}, {P4(SRD_B)}, s{sT0} offen")
    for g_ in range(8):
        a(f"s_add_u32 s{sT0}, s{sHeadW}, {OB_HP+g_*8192}")
        a(f"v_add_u32 v{vHa+g_}, s{sT0}, v{vL4}")
    a(f"v_and_b32 v{vU+5}, 7, v{vLane}")
    a(f"v_lshlrev_b32 v{vU+5}, 13, v{vU+5}")
    a(f"s_add_u32 s{sT0}, s{sHeadW}, {OB_HP+3*256}")
    a(f"v_add_u32 v{vU+5}, s{sT0}, v{vU+5}")
    a("s_mov_b64 exec, 0xff")
    a.label("L_hlp")
    a(f"global_load_dword v{vU+6}, v{vU+5}, {P2(sWS)} sc1")
    a("s_waitcnt vmcnt(0)")
    a(f"v_cmp_eq_u32 vcc, -1, v{vU+6}")
    a("s_nop 4")
    a("s_cbranch_vccz L_hlpok")
    a("s_sleep 32")
    spin_timeout("L_hlp")
    a.label("L_hlpok")
    a("s_mov_b64 exec, -1")
    a.label("L_hg")
    for b in range(4):
        for g_ in range(8):
            a(f"global_load_dword v{vHG+8*b+g_}, v{vHa+g_}, {P2(sWS)} offset:{b*256} sc1")
    a("s_waitcnt vmcnt(0)")
    sentinel_check(range(vHG, vHG + 32), vU + 4)
    a("s_cbranch_vccz L_hgok")
    a("s_sleep 16")
    spin_timeout("L_hg")
    a.label("L_hgok")
    a(f"v_lshlrev_b32 v{vU+3}, 16, v{vU+3}")
    for b in range(4):
        r = vHG + 8 * b
        for g_ in range(1, 8):
            a(f"v_add_f32 v{r}, v{r}, v{r+g_}")
        rnd_bf16(r, r)
        a(f"v_add_f32 v{r}, v{r}, v{vU+3}")
        rnd_bf16(r, r)
        a(f"v_max_f32 v{r}, 0, v{r}")
        a(f"v_mul_f32 v{r}, v{r}, v{r}")
        a(f"v_cvt_pk_bf16_f32 v{r}, v{r}, v{r}")
        a(f"ds_write_b16 v{vL2}, v{r} offset:{L_HB+b*128}")
    lds_arrive(7, vSy, vOne)
    a.label("L_h_ffn2")
    a(f"s_cmp_lt_u32 s{sG}, 5")
    a("s_cbranch_scc0 L_h_tailprep")
    vHAo = 132
    if not skipffn:
        lds_wait(7, 1, vSy, vU + 4, sT0, sleep=32)
    a(f"v_and_b32 v{vU}, 3, v{vLane}")
    a(f"v_lshlrev_b32 v{vU}, 7, v{vU}")
    a(f"v_lshrrev_b32 v{vU+1}, 4, v{vLane}")
    a(f"v_lshlrev_b32 v{vU+1}, 4, v{vU+1}")
    a(f"v_add_u32 v{vU}, v{vU}, v{vU+1}")
    a(f"ds_read_b128 {V(vHAo,4)}, v{vU} offset:{L_HB}")
    a(f"ds_read_b128 {V(vHAo+4,4)}, v{vU} offset:{L_HB+64}")
    for i in range(8):
        a(f"v_mov_b32 v{vY+i}, 0")
    a("s_waitcnt lgkmcnt(0)")
    for s in range(2):
        for tt in range(2):
            a(f"v_mfma_f32_16x16x32_bf16 {V(vY+4*tt,4)}, {V(vHAo+4*s,4)}, {V(vW2+8*tt+4*s,4)}, {V(vY+4*tt,4)}")

    a.label("L_h_tailprep")
    vA0, vA1, vMlA, vPub, vMlP, vMlG, vDbG, vDbO, vOaW, vOaR, vYp = 8, 9, 10, 11, 12, 13, 14, 15, 16, 17, 18
    vGa2 = 20
    vMl2, vC, vLs, vMx = 28, 30, 31, 32
    vOo = 34
    vZ = 38
    vOv = 64
    vGg = 64
    vAo = 96
    a(f"s_lshl_b32 s{sT0}, s{sHW}, 11")
    a(f"s_add_u32 s{sT0}, s{sT0}, {L_OST}")
    a(f"v_lshlrev_b32 v{vZ}, 3, v{vLane}")
    a(f"v_add_u32 v{vA0}, s{sT0}, v{vZ}")
    a(f"v_add_u32 v{vA1}, {2*L_LPW}, v{vA0}")
    a(f"v_and_b32 v{vZ+1}, 15, v{vLane}")
    a(f"v_lshlrev_b32 v{vMlA}, 3, v{vZ+1}")
    a(f"s_lshl_b32 s{sT0}, s{sHW}, 7")
    a(f"v_add_u32 v{vMlA}, s{sT0}, v{vMlA}")
    a(f"s_lshl_b32 s{sT0}, s{sHW}, 9")
    a(f"s_add_u32 s{sT1}, s{sIdx}, s{sT0}")
    a(f"s_add_u32 s{sT1}, s{sT1}, {OB_OP}")
    a(f"v_add_u32 v{vPub}, s{sT1}, v{vZ}")
    a(f"s_add_u32 s{sT1}, s{sHeadW}, s{sT0}")
    for g_ in range(8):
        a(f"s_add_u32 s{sT2}, s{sT1}, {OB_OP+g_*8192}")
        a(f"v_add_u32 v{vGa2+g_}, s{sT2}, v{vZ}")
    a(f"v_and_b32 v{vZ+2}, 7, v{vLane}")
    if mlmode == 0:
        a(f"s_lshl_b32 s{sT0}, s{sH}, 2")
        a(f"s_add_u32 s{sT0}, s{sT0}, s{sHW}")
        a(f"s_lshl_b32 s{sT1}, s{sT0}, 6")
        a(f"s_add_u32 s{sT1}, s{sT1}, {WS_OPML}")
        a(f"s_lshl_b32 s{sT2}, s{sG}, 3")
        a(f"s_add_u32 s{sT2}, s{sT2}, s{sT1}")
        a(f"v_mov_b32 v{vMlP}, s{sT2}")
        a(f"v_lshlrev_b32 v{vMlG}, 3, v{vZ+2}")
        a(f"v_add_u32 v{vMlG}, s{sT1}, v{vMlG}")
    else:
        a(f"s_lshl_b32 s{sT0}, s{sHW}, 3")
        a(f"s_add_u32 s{sT1}, s{sIdx}, s{sT0}")
        a(f"s_add_u32 s{sT1}, s{sT1}, {OB_ML}")
        a(f"v_mov_b32 v{vMlP}, s{sT1}")
        a(f"s_add_u32 s{sT1}, s{sHeadW}, s{sT0}")
        a(f"s_add_u32 s{sT1}, s{sT1}, {OB_ML}")
        a(f"v_lshlrev_b32 v{vMlG}, 13, v{vZ+2}")
        a(f"v_add_u32 v{vMlG}, s{sT1}, v{vMlG}")
    a(f"v_lshlrev_b32 v{vDbG}, 13, v{vZ+2}")
    a(f"s_add_u32 s{sT2}, s{sHeadW}, {OB_DB}")
    a(f"v_add_u32 v{vDbG}, s{sT2}, v{vDbG}")
    a(f"s_add_u32 s{sT2}, s{sIdx}, {OB_DB}")
    a(f"v_mov_b32 v{vDbO}, s{sT2}")
    a(f"s_lshl_b32 s{sT0}, s{sHW}, 8")
    a(f"v_add_u32 v{vOaW}, s{sT0}, v{vL4}")
    a(f"v_and_b32 v{vOaR}, 3, v{vLane}")
    a(f"v_lshlrev_b32 v{vOaR}, 8, v{vOaR}")
    a(f"v_lshrrev_b32 v{vZ+2}, 4, v{vLane}")
    a(f"v_lshlrev_b32 v{vZ+2}, 4, v{vZ+2}")
    a(f"v_add_u32 v{vOaR}, v{vOaR}, v{vZ+2}")
    a(f"v_lshlrev_b32 v{vYp}, 2, v{vZ+1}")
    a(f"s_lshl_b32 s{sT0}, s{sHW}, 7")
    a(f"s_add_u32 s{sT0}, s{sT0}, s{sIdx}")
    a(f"s_add_u32 s{sT0}, s{sT0}, {OB_YP}")
    a(f"v_add_u32 v{vYp}, s{sT0}, v{vYp}")
    a(f"s_mov_b32 s{sSpin}, {spin_cap}")
    stamp(1)
    a("s_waitcnt vmcnt(0) lgkmcnt(0)")
    a("s_barrier")
    stamp(6)
    tstamp(1)
    a(f"ds_read_b64 {V(vMl2,2)}, v{vMlA} offset:{L_ML}")
    for i in range(16):
        w_ = i >> 2
        if i == 14:
            a("s_waitcnt lgkmcnt(14)")
        a(f"ds_read_b64 {V(vOv+2*i,2)}, v{vA0 if w_ < 2 else vA1} offset:{(w_&1)*L_LPW+(i&3)*512}")
    def merge_coef(dup):
        a(f"v_mov_b32 v{vMx}, v{vMl2}")
        row_allreduce("v_max_f32", [vMx])
        a(f"v_sub_f32 v{vC}, v{vMl2}, v{vMx}")
        a(f"v_exp_f32 v{vC}, v{vC}")
        a("s_nop 0")
        a(f"v_mul_f32 v{vLs}, v{vC}, v{vMl2+1}")
        row_allreduce("v_add_f32", [vLs])
        if dup:
            a(f"v_mul_f32 v{vLs}, 0.5, v{vLs}")
    def merge_o(n, base):
        for i in range(4):
            a(f"v_mov_b32 v{vOo+i}, 0")
        for i in range(n):
            for e in range(2):
                a(f"v_fmac_f32_dpp v{vOo+2*(i&1)+e}, v{vC}, v{base+2*i+e} row_newbcast:{i} {DPPM}")
        a(f"v_pk_add_f32 {V(vOo,2)}, {V(vOo,2)}, {V(vOo+2,2)}")
    merge_coef(False)
    a("s_waitcnt lgkmcnt(0)")
    merge_o(16, vOv)
    a(f"global_store_dwordx2 v{vPub}, {V(vOo,2)}, {P2(sWS)} sc1")
    a(f"v_mov_b32 v{vZ+2}, v{vMx}")
    a(f"v_mov_b32 v{vZ+3}, v{vLs}")
    assert (vZ + 2) % 2 == 0
    a("s_mov_b64 exec, 1")
    a(f"global_store_dwordx2 v{vMlP}, {V(vZ+2,2)}, {P2(sWS)} sc1")
    a("s_mov_b64 exec, -1")
    tstamp(2)
    if stamps and sprof == 2 and ackprof:
        a("s_waitcnt vmcnt(0)")
        tstamp(3)
    a(f"s_cmp_lt_u32 s{sG}, 5")
    a("s_cbranch_scc0 L_fin_stamp")
    a(f"s_mov_b32 s{sT4}, 0xff")
    a(f"s_mov_b32 s{sT0}, 0")
    a.label("L_opoll")
    a(f"global_load_dwordx2 {V(vMl2,2)}, v{vMlG}, {P2(sWS)} sc1")
    for g_ in range(8):
        a(f"s_bitcmp1_b32 s{sT4}, {g_}")
        a(f"s_cbranch_scc0 L_sk{g_}")
        a(f"global_load_dwordx2 {V(vGg+2*g_,2)}, v{vGa2+g_}, {P2(sWS)} sc1")
        a.label(f"L_sk{g_}")
    a("s_waitcnt vmcnt(0)")
    a(f"v_max_u32 v{vZ+2}, v{vMl2}, v{vMl2+1}")
    a(f"v_cmp_eq_u32 vcc, -1, v{vZ+2}")
    a("s_nop 4")
    a(f"s_mov_b32 s{sT1}, s{sT4}")
    a(f"s_and_b32 s{sT4}, vcc_lo, 0xff")
    a("s_cbranch_scc1 L_oretry")
    sentinel_check(list(range(vGg, vGg + 16)), vZ + 2)
    a("s_cbranch_vccz L_ook")
    a(f"s_xor_b32 s{sT0}, s{sT0}, 1")
    a(f"s_cmp_eq_u32 s{sT0}, 1")
    a(f"s_cselect_b32 s{sT4}, s{sT1}, 0xff")
    a.label("L_oretry")
    if resleep:
        a(f"s_sleep {resleep}")
    spin_timeout("L_opoll")
    a.label("L_ook")
    stamp(7)
    tstamp(4)
    merge_coef(True)
    a(f"v_rcp_f32 v{vLs}, v{vLs}")
    merge_o(8, vGg)
    a(f"v_pk_mul_f32 {V(vOo,2)}, {V(vOo,2)}, {V(vLs-1,2)} op_sel:[0,1] op_sel_hi:[1,1]")
    assert (vLs - 1) % 2 == 0
    a(f"v_cvt_pk_bf16_f32 v{vOo}, v{vOo}, v{vOo+1}")
    a(f"ds_write_b32 v{vOaW}, v{vOo} offset:{L_OA}")
    a("s_waitcnt lgkmcnt(0)")
    a("s_barrier")
    tstamp(5)
    for s in range(4):
        a(f"ds_read_b128 {V(vAo+4*s,4)}, v{vOaR} offset:{L_OA+64*s}")
    for s in range(4):
        a(f"s_waitcnt lgkmcnt({3-s})")
        for tt in range(2):
            a(f"v_mfma_f32_16x16x32_bf16 {V(vY+4*tt,4)}, {V(vAo+4*s,4)}, {V(vWO+16*tt+4*s,4)}, {V(vY+4*tt,4)}")
    a("s_mov_b64 exec, 0xffff")
    a("s_nop 7")
    for tt in range(2):
        for b in range(4):
            a(f"global_store_dword v{vYp}, v{vY+4*tt+b}, {P2(sWS)} offset:{b*512+tt*64} sc1")
    a("s_mov_b64 exec, -1")
    tstamp(6)
    a(f"s_cmp_lt_u32 s{sH}, 4")
    a("s_cbranch_scc0 L_fin_stamp")
    a("s_branch L_final")

    a.label("L_final_pre")
    a("s_barrier")
    a.label("L_final")
    vFa, vFx, vF0, vY_ = 2, 4, 8, 30
    vZ2 = 30
    a(f"v_lshrrev_b32 v{vZ2}, 4, v{vLane}")
    a(f"v_lshlrev_b32 v{vZ2}, 2, v{vZ2}")
    a(f"s_lshl_b32 s{sT0}, s{sWave}, 4")
    a(f"v_add_u32 v{vZ2}, s{sT0}, v{vZ2}")
    a(f"v_and_b32 v{vZ2+1}, 15, v{vLane}")
    a(f"v_lshlrev_b32 v{vFa}, 16, v{vZ2+1}")
    a(f"v_lshlrev_b32 v{vZ2+2}, 2, v{vZ2}")
    a(f"v_add_u32 v{vFa}, v{vFa}, v{vZ2+2}")
    a(f"s_lshl_b32 s{sT1}, s{sG}, 13")
    a(f"s_lshl_b32 s{sT0}, s{sH}, 9")
    a(f"s_add_u32 s{sT1}, s{sT1}, s{sT0}")
    a(f"s_add_u32 s{sT1}, s{sT1}, {WS_OB+OB_YP}")
    a(f"v_add_u32 v{vFa}, s{sT1}, v{vFa}")
    a(f"v_add_u32 v{vFa+1}, {16*65536}, v{vFa}")
    a(f"s_lshl_b32 s{sT2}, s{sG}, 7")
    a(f"v_add_u32 v{vZ2}, s{sT2}, v{vZ2}")
    a(f"v_lshlrev_b32 v{vZ2}, 1, v{vZ2}")
    a(f"s_mul_i32 s{sT3}, s{sH}, 1280")
    a(f"v_add_u32 v{vZ2+3}, s{sT3}, v{vZ2}")
    a(f"global_load_dwordx2 {V(vFx,2)}, v{vZ2+3}, {P2(sX)}")
    a(f"global_load_dwordx2 {V(vFx+2,2)}, v{vZ2}, {P2(sB2)}")
    a(f"s_mov_b32 s{sSpin}, {spin_cap}")
    if not ystag:
        a.label("L_ypoll")
        a(f"global_load_dwordx4 {V(vF0,4)}, v{vFa}, {P2(sWS)} sc1")
        a(f"global_load_dwordx4 {V(vF0+4,4)}, v{vFa+1}, {P2(sWS)} sc1")
        a("s_waitcnt vmcnt(0)")
        sentinel_check(range(vF0, vF0 + 8), vZ2 + 4)
        a("s_cbranch_vccz L_yok")
        spin_timeout("L_ypoll")
    else:
        vF1 = 16
        def yload(base):
            a(f"global_load_dwordx4 {V(base,4)}, v{vFa}, {P2(sWS)} sc1")
            a(f"global_load_dwordx4 {V(base+4,4)}, v{vFa+1}, {P2(sWS)} sc1")
        yload(vF0)
        a(f"s_sleep {ystag}")
        yload(vF1)
        a.label("L_ypoll")
        a("s_waitcnt vmcnt(2)")
        sentinel_check(range(vF0, vF0 + 8), vZ2 + 4)
        a("s_cbranch_vccz L_yok")
        yload(vF0)
        a("s_waitcnt vmcnt(2)")
        sentinel_check(range(vF1, vF1 + 8), vZ2 + 4)
        a("s_cbranch_vccz L_yokB")
        yload(vF1)
        spin_timeout("L_ypoll")
        a("s_branch L_yok")
    def final_math(F):
        tstamp(7)
        for i in range(4):
            a(f"v_add_f32 v{F+i}, v{F+i}, v{F+4+i}")
        row_allreduce("v_add_f32", [F, F+1, F+2, F+3])
        for j in range(2):
            a(f"v_lshlrev_b32 v{vZ2+4}, 16, v{vFx+j}")
            a(f"v_and_b32 v{vZ2+5}, s{sMask}, v{vFx+j}")
            a(f"v_add_f32 v{F+2*j}, v{F+2*j}, v{vZ2+4}")
            a(f"v_add_f32 v{F+2*j+1}, v{F+2*j+1}, v{vZ2+5}")
            a(f"v_lshlrev_b32 v{vZ2+4}, 16, v{vFx+2+j}")
            a(f"v_and_b32 v{vZ2+5}, s{sMask}, v{vFx+2+j}")
            a(f"v_add_f32 v{F+2*j}, v{F+2*j}, v{vZ2+4}")
            a(f"v_add_f32 v{F+2*j+1}, v{F+2*j+1}, v{vZ2+5}")
        a(f"v_cvt_pk_bf16_f32 v{F+4}, v{F}, v{F+1}")
        a(f"v_cvt_pk_bf16_f32 v{F+5}, v{F+2}, v{F+3}")
        a("s_mov_b32 exec_lo, 0x00010001")
        a("s_mov_b32 exec_hi, 0x00010001")
        a(f"global_store_dwordx2 v{vZ2+3}, {V(F+4,2)}, {P2(sOUT)}")
        a("s_mov_b64 exec, -1")
    a.label("L_yok")
    final_math(vF0)
    if ystag:
        a("s_branch L_fin_stamp")
        a.label("L_yokB")
        final_math(16)
    a.label("L_fin_stamp")
    if stamps:
        a("s_memrealtime s[4:5]")
        a("s_waitcnt lgkmcnt(0)")
        a(f"s_lshl_b32 s{sT0}, s2, 3")
        a(f"s_add_u32 s{sT0}, s{sT0}, s{sWave}")
        a(f"s_lshl_b32 s{sT0}, s{sT0}, 6")
        a(f"s_add_u32 s{sT0}, s{sT0}, {WS_STAMP}")
        a(f"v_mov_b32 v2, s{sT0}")
        for i in range(8):
            a(f"v_mov_b32 v{8+i}, s{STAMP0+2*i}")
        a("v_mov_b32 v16, s4")
        a("s_getreg_b32 s6, hwreg(HW_REG_XCC_ID)")
        a("v_mov_b32 v17, s6")
        a(f"v_mov_b32 v18, s{sN}")
        a("v_mov_b32 v19, 0")
        a("s_mov_b64 exec, 1")
        a(f"global_store_dwordx4 v2, v[8:11], {P2(sWS)}")
        a(f"global_store_dwordx4 v2, v[12:15], {P2(sWS)} offset:16")
        a(f"global_store_dwordx4 v2, v[16:19], {P2(sWS)} offset:32")
    a.label("L_end")
    a("s_endpgm")
    a.raw('.section .rodata,"a"')
    a.raw(".p2align 6")
    a.raw(f".amdhsa_kernel {KNAME}")
    a.raw("  .amdhsa_next_free_vgpr 256")
    a.raw("  .amdhsa_next_free_sgpr 102")
    a.raw("  .amdhsa_accum_offset 256")
    a.raw("  .amdhsa_group_segment_fixed_size 0")
    a.raw("  .amdhsa_kernarg_size 104")
    a.raw("  .amdhsa_user_sgpr_count 2")
    a.raw("  .amdhsa_user_sgpr_kernarg_segment_ptr 1")
    a.raw("  .amdhsa_system_sgpr_workgroup_id_x 1")
    a.raw(".end_amdhsa_kernel")
    return "\n".join(x for x in a.L if x is not None) + "\n"

if __name__ == "__main__":
    import argparse, ast
    ap = argparse.ArgumentParser()
    ap.add_argument("-o", default="k.s")
    ap.add_argument("kv", nargs="*")
    args = ap.parse_args()
    kw = {}
    for x in args.kv:
        k, v = x.split("=")
        try: v = ast.literal_eval(v)
        except Exception: pass
        kw[k] = v
    open(args.o, "w").write(gen(**kw))
```
